```python
import torch

def _softmax(x, axis=-1):
    return torch.softmax(x, dim=axis)
def _gelu(x):
    return torch.nn.functional.gelu(x, approximate="tanh")
def _silu(x):
    return torch.nn.functional.silu(x)
def _sigmoid(x):
    return torch.sigmoid(x)
def _layernorm(x, axis=-1, eps=1e-5):
    m = x.mean(dim=axis, keepdim=True)
    v = x.var(dim=axis, keepdim=True, unbiased=False)
    return (x - m) / torch.sqrt(v + eps)
def _scatter_add(tgt, idx, src, axis=0):
    return tgt.clone().index_add_(axis, idx, src)
def _segment_sum(src, seg, n):
    out = torch.zeros((n,) + src.shape[1:], dtype=src.dtype)
    return out.index_add_(0, seg, src)
def _pad(x, pw):
    flat = tuple(v for pair in reversed(pw) for v in pair)
    return torch.nn.functional.pad(x, flat)

kernel_name = 'sequential_preLN__ssm_conv_h3__glu_gated_swiglu__prompt'

def setup_inputs():

    _w = (lambda a: (lambda t: t.to(torch.bfloat16) if t.is_floating_point() else t)(torch.as_tensor(a)))
    def _A_setup():
        B, S, D = 1, 2048, 640
        ks = 4
        return {
            "q": _w((lambda *s: torch.randn(*s, dtype=torch.bfloat16) * 0.05)(B, S, D)),
            "k": _w((lambda *s: torch.randn(*s, dtype=torch.bfloat16) * 0.2)(B, S, D)),
            "v": _w((lambda *s: torch.randn(*s, dtype=torch.bfloat16) * 0.2)(B, S, D)),
            "shift_k": _w((lambda *s: torch.randn(*s, dtype=torch.bfloat16) * 0.2)(D, ks) * 0.5),
            "ssm_k": _w((lambda *s: torch.randn(*s, dtype=torch.bfloat16) * 0.4)(D, S) * (1.0 / S ** 0.5)),
            "ssm_D": _w((lambda *s: torch.randn(*s, dtype=torch.bfloat16) * 0.2)(D)),
        }
    _A_in = _A_setup()

    def _B_setup():
        B, S, D, F = 1, 2048, 640, 1536
        return {
            "x": _w((lambda *s: torch.randn(*s, dtype=torch.bfloat16) * 0.05)(B, S, D)),
            "w1": _w((lambda *s: torch.randn(*s, dtype=torch.bfloat16) * 0.2)(D, F) * (2.0 / D) ** 0.5),
            "w3": _w((lambda *s: torch.randn(*s, dtype=torch.bfloat16) * 0.2)(D, F) * (2.0 / D) ** 0.5),
            "w2": _w((lambda *s: torch.randn(*s, dtype=torch.bfloat16) * 0.2)(F, D) * (2.0 / F) ** 0.5),
        }
    _B_in = _B_setup()

    return {
        "A_q": _A_in["q"],
        "A_k": _A_in["k"],
        "A_v": _A_in["v"],
        "A_shift_k": _A_in["shift_k"],
        "A_ssm_k": _A_in["ssm_k"],
        "A_ssm_D": _A_in["ssm_D"],
        "B_x": _B_in["x"],
        "B_w1": _B_in["w1"],
        "B_w3": _B_in["w3"],
        "B_w2": _B_in["w2"],
    }

def reference(A_q, A_k, A_v, A_shift_k, A_ssm_k, A_ssm_D, B_x, B_w1, B_w3, B_w2):
    def _A_ref(q, k, v, shift_k, ssm_k, ssm_D):
        B, S, D = q.shape
        ks = shift_k.shape[-1]
        k_pad = _pad(k, ((0, 0), (ks - 1, 0), (0, 0)))
        k_shift = torch.zeros_like(k)
        for t in range(ks):
            k_shift = k_shift + k_pad[:, t:t + S, :] * shift_k[:, ks - 1 - t][None, None, :]
        kv = k_shift * v
        L = 2 * S
        kv_pad = _pad(kv, ((0, 0), (0, S), (0, 0)))
        kf_pad = _pad(ssm_k, ((0, 0), (0, S)))
        kv_f = (lambda x, axes=(-2,-1): torch.fft.rfft2(x.float(), dim=axes))(kv_pad[:, None, :, :], axes=(1, 2))
        kf_f = (lambda x, axes=(-2,-1): torch.fft.rfft2(x.float(), dim=axes))(kf_pad[:, None, :], axes=(1, 2))
        kf_f = (lambda x, *d: x.permute(*d))(kf_f, 1, 2, 0)
        y_f = kv_f * kf_f[None, :, :, :]
        y = (lambda x, s, axes=(-2,-1): torch.fft.irfft2(x, s=s, dim=axes).to(torch.bfloat16))(y_f, (1, L), axes=(1, 2))[:, 0, :S, :]
        y = y + kv * ssm_D[None, None, :]
        return q * y

    def _B_ref(x, w1, w3, w2):
        gate = torch.einsum("bsd,df->bsf", x, w1)
        up = torch.einsum("bsd,df->bsf", x, w3)
        h = _silu(gate) * up
        out = torch.einsum("bsf,fd->bsd", h, w2)
        return out

    x = A_q
    h = x + _A_ref(_layernorm(x, axis=-1), A_k, A_v, A_shift_k, A_ssm_k, A_ssm_D)
    h2 = h + _B_ref(_layernorm(h, axis=-1), B_w1, B_w3, B_w2)
    return h2
```

```python
import re, copy

REG_RE = re.compile(r'^(-|abs\()?([vas])(\d+|\[(\d+):(\d+)\])\)?$')


def regs_of(tok):
    tok = tok.strip()
    if tok in ('vcc', 'vcc_lo', 'vcc_hi'):
        return [('s', 'vcc')]
    if tok in ('exec', 'exec_lo', 'exec_hi'):
        return [('s', 'exec')]
    if tok == 'm0':
        return [('s', 'm0')]
    m = REG_RE.match(tok)
    if not m:
        return []
    k = m.group(2)
    if m.group(4) is not None:
        lo, hi = int(m.group(4)), int(m.group(5))
    else:
        lo = hi = int(m.group(3))
    return [(k, i) for i in range(lo, hi + 1)]


def v(i, n=1):
    return f'v{i}' if n == 1 else f'v[{i}:{i + n - 1}]'


def a(i, n=1):
    return f'a{i}' if n == 1 else f'a[{i}:{i + n - 1}]'


def s(i, n=1):
    return f's{i}' if n == 1 else f's[{i}:{i + n - 1}]'


def R(r, n=1):
    return v(r, n) if r < 256 else a(r - 256, n)


TRANS = ('v_exp_f32', 'v_log_f32', 'v_rcp_f32', 'v_rsq_f32', 'v_sqrt_f32', 'v_sin_f32', 'v_cos_f32')


class Ins:
    __slots__ = ('text', 'mn', 'rd', 'wr', 'kind', 'ws', 'mods')

    def __init__(self, text):
        self.text = text
        t = text.split(';')[0].strip()
        parts = t.split(None, 1)
        self.mn = mn = parts[0]
        rest = parts[1] if len(parts) > 1 else ''
        ops = [o.strip() for o in rest.split(',')] if rest else []
        mods = ''
        if ops:
            joined = []
            depth = 0
            cur = ''
            for ch in rest:
                if ch == '[':
                    depth += 1
                if ch == ']':
                    depth -= 1
                if ch == ',' and depth == 0:
                    joined.append(cur.strip())
                    cur = ''
                else:
                    cur += ch
            joined.append(cur.strip())
            last = joined[-1].split(None, 1)
            joined[-1] = last[0] if last else ''
            mods = last[1] if len(last) > 1 else ''
            ops = joined
        self.mods = mods
        rd, wr = [], []
        self.ws = 1
        kind = 'other'
        R_ = regs_of
        if mn.startswith('v_mfma') or mn.startswith('v_smfmac'):
            kind = 'mfma'
            wr = R_(ops[0])
            rd = R_(ops[1]) + R_(ops[2]) + R_(ops[3])
            if mn.startswith('v_smfmac'):
                rd += R_(ops[0])
        elif mn.startswith('v_'):
            kind = 'valu'
            if mn.startswith('v_permlane') and 'swap' in mn:
                wr = R_(ops[0]) + R_(ops[1])
                rd = list(wr)
            elif mn.startswith('v_cmp'):
                wr = R_(ops[0])
                for o in ops[1:]:
                    rd += R_(o)
            elif mn.startswith(('v_add_co', 'v_sub_co', 'v_addc_co', 'v_subb_co')):
                wr = R_(ops[0]) + R_(ops[1])
                for o in ops[2:]:
                    rd += R_(o)
            elif mn == 'v_nop':
                pass
            else:
                wr = R_(ops[0])
                for o in ops[1:]:
                    rd += R_(o)
                if mn.startswith(('v_fmac', 'v_dot2c', 'v_pk_fmac')) or 'dpp' in mn or 'row_' in mods or 'quad_perm' in mods:
                    rd += R_(ops[0])
        elif mn.startswith('ds_'):
            kind = 'ds'
            if mn.startswith('ds_read') or mn.startswith('ds_bpermute') or mn.startswith('ds_swizzle'):
                wr = R_(ops[0])
                for o in ops[1:]:
                    rd += R_(o)
            else:
                for o in ops:
                    rd += R_(o)
        elif mn.startswith('buffer_'):
            kind = 'vmem'
            if mn.startswith('buffer_load'):
                if ' lds' in (' ' + mods):
                    for o in ops:
                        rd += R_(o)
                    rd += [('s', 'm0')]
                else:
                    wr = R_(ops[0])
                    for o in ops[1:]:
                        rd += R_(o)
            else:
                for o in ops:
                    rd += R_(o)
                if mn.startswith('buffer_atomic') and 'sc0' in mods:
                    wr = R_(ops[0])
        elif mn.startswith('global_'):
            kind = 'vmem'
            if mn.startswith('global_load'):
                wr = R_(ops[0])
                for o in ops[1:]:
                    rd += R_(o)
            else:
                for o in ops:
                    rd += R_(o)
        elif mn.startswith('s_load') or mn in ('s_memtime', 's_memrealtime'):
            kind = 'smem'
            wr = R_(ops[0])
            for o in ops[1:]:
                rd += R_(o)
        elif mn == 's_nop':
            kind = 'nop'
            self.ws = int(ops[0], 0) + 1
        elif mn.startswith('s_'):
            kind = 'salu'
            if mn.startswith(('s_cmp', 's_cbranch', 's_branch', 's_waitcnt', 's_barrier', 's_endpgm', 's_sleep', 's_setprio', 's_bitcmp')):
                for o in ops:
                    rd += R_(o)
            else:
                wr = R_(ops[0])
                for o in ops[1:]:
                    rd += R_(o)
                if 'saveexec' in mn:
                    wr += [('s', 'exec')]
        self.kind = kind
        self.rd = set(self._u(x) for x in rd)
        self.wr = set(self._u(x) for x in wr)

    @staticmethod
    def _u(x):
        k, i = x
        if k == 'a':
            return ('v', 256 + i)
        return (k, i)


class State:
    def __init__(self):
        self.vm = []
        self.lg = []
        self.smem = False
        self.smem_dst = set()
        self.hist = []

    def clone(self):
        n = State()
        n.vm = list(self.vm)
        n.lg = list(self.lg)
        n.smem = self.smem
        n.smem_dst = set(self.smem_dst)
        n.hist = list(self.hist)
        return n


def mfma_passes(mn):
    if '32x32x16' in mn:
        return 8
    if '16x16x32' in mn or '16x16x64' in mn:
        return 4
    raise ValueError(mn)


class Asm:
    def __init__(self):
        self.lines = []
        self.st = State()
        self.ntag = 0
        self.nlabel = 0
        self.nins = 0
        self.stats = {'nop': 0, 'wait': 0}

    def raw(self, text):
        self.lines.append(text)

    def comment(self, text):
        self.lines.append('    ; ' + text)

    def label(self, name):
        self.lines.append(name + ':')

    def newlabel(self, base='L'):
        self.nlabel += 1
        return f'{base}_{self.nlabel}'

    def _push(self, ins):
        self.lines.append('    ' + ins.text)
        self.nins += 1
        h = self.st.hist
        h.append(ins)
        if len(h) > 40:
            del h[0]

    def _emit_wait(self, vm=None, lg=None):
        st = self.st
        parts = []
        if vm is not None and vm < len(st.vm):
            parts.append(f'vmcnt({min(vm, 63)})')
            if vm <= 63:
                st.vm = st.vm[len(st.vm) - vm:] if vm else []
            else:
                st.vm = st.vm[len(st.vm) - 63:]
        if lg is not None and (lg < len(st.lg) or (lg == 0 and st.smem)):
            if st.smem:
                lg = 0
            lg = min(lg, 15)
            parts.append(f'lgkmcnt({lg})')
            st.lg = st.lg[len(st.lg) - lg:] if lg else []
            if lg == 0:
                st.smem = False
                st.smem_dst = set()
        if parts:
            self.stats['wait'] += 1
            self._push(Ins('s_waitcnt ' + ' '.join(parts)))

    def wait_vm(self, tag):
        st = self.st
        hit = [i for i, (t, _) in enumerate(st.vm) if t == tag]
        if hit:
            self._emit_wait(vm=len(st.vm) - 1 - hit[-1])

    def wait_lg(self, tag):
        st = self.st
        hit = [i for i, (t, _) in enumerate(st.lg) if t == tag]
        if hit:
            self._emit_wait(lg=len(st.lg) - 1 - hit[-1])

    def wait_all(self, vm=True, lg=True):
        self._emit_wait(vm=0 if vm else None, lg=0 if lg else None)

    def hard_wait(self, text):
        m = re.search(r'vmcnt\((\d+)\)', text)
        st = self.st
        if m:
            n = int(m.group(1))
            st.vm = st.vm[max(0, len(st.vm) - n):] if n else []
        m = re.search(r'lgkmcnt\((\d+)\)', text)
        if m:
            n = int(m.group(1))
            st.lg = st.lg[max(0, len(st.lg) - n):] if n else []
            if n == 0:
                st.smem = False
                st.smem_dst = set()
        self._push(Ins('s_waitcnt ' + text))

    def _need_ws(self, ins):
        need = 0
        dist = 0
        vr = {r for r in ins.rd if r[0] == 'v'}
        vw = {r for r in ins.wr if r[0] == 'v'}
        sr = {r for r in ins.rd if r[0] == 's'}
        is_dpp = ins.kind == 'valu' and ('dpp' in ins.mn or 'row_' in ins.mods or 'quad_perm' in ins.mods)
        for p in reversed(self.st.hist):
            req = 0
            pw_v = {r for r in p.wr if r[0] == 'v'}
            pw_s = {r for r in p.wr if r[0] == 's'}
            if p.kind == 'valu':
                if ins.kind == 'mfma' and (pw_v & vr):
                    req = max(req, 2)
                if ins.kind == 'valu':
                    if p.mn.startswith(TRANS) and (pw_v & vr) and not ins.mn.startswith(TRANS):
                        req = max(req, 1)
                    if p.mn.startswith(TRANS) and (pw_v & vr):
                        req = max(req, 1)
                    if ins.mn.startswith('v_permlane') and (pw_v & vr):
                        req = max(req, 2)
                    if is_dpp and (pw_v & vr):
                        req = max(req, 2)
                    if ins.mn.startswith(('v_readlane', 'v_readfirstlane')) and (pw_v & vr):
                        req = max(req, 1)
                    if pw_s & (sr | ({('s', 'vcc')} if ins.mn.startswith('v_cndmask') else set())):
                        req = max(req, 2)
                    if ('op_sel' in p.mods or 'sdwa' in p.mn) and not p.mn.startswith('v_pk_') and (pw_v & (vr | vw)):
                        req = max(req, 1)
                if ins.kind == 'vmem' and (pw_s & sr):
                    req = max(req, 5)
                if ins.kind == 'salu' and (pw_s & sr):
                    req = max(req, 1)
            if p.kind == 'mfma':
                n = mfma_passes(p.mn)
                d_other = {4: 8, 8: 12}[n]
                d_c = {4: 6, 8: 10}[n]
                war = {4: 3, 8: 7}[n]
                if ins.kind == 'mfma':
                    ops = [o.strip() for o in re.split(r',(?![^\[]*\])', ins.text.split(None, 1)[1])]
                    ab = set(Ins._u(x) for x in regs_of(ops[1]) + regs_of(ops[2]))
                    cc = set(Ins._u(x) for x in regs_of(ops[3].split()[0]))
                    if ins.mn.startswith('v_smfmac'):
                        ab |= cc
                        cc = set(ins.wr)
                    if pw_v & ab:
                        req = max(req, d_other)
                    if pw_v & cc:
                        if not (cc == pw_v and mfma_passes(ins.mn) == n):
                            req = max(req, d_c)
                    elif pw_v & vw:
                        req = max(req, d_c)
                elif ins.kind in ('valu', 'vmem', 'ds'):
                    if pw_v & (vr | vw):
                        req = max(req, d_other)
                    if ins.kind == 'valu':
                        ops = [o.strip() for o in re.split(r',(?![^\[]*\])', p.text.split(None, 1)[1])]
                        cc = set(Ins._u(x) for x in regs_of(ops[3].split()[0]))
                        if cc & vw:
                            req = max(req, war)
            if p.kind == 'vmem' and ('store' in p.mn or 'atomic' in p.mn) and ('x4' in p.mn or 'x3' in p.mn):
                if {r for r in p.rd if r[0] == 'v'} & vw:
                    req = max(req, 2)
            if p.kind == 'salu' and ('s', 'm0') in p.wr and ins.kind == 'vmem' and ('s', 'm0') in ins.rd:
                req = max(req, 1)
            if req - dist > need:
                need = req - dist
            dist += p.ws
            if dist >= 20:
                break
        return need

    def I(self, text, tag=None):
        ins = Ins(text)
        st = self.st
        touch = ins.rd | ins.wr
        vm = None
        for i, (t, d) in enumerate(st.vm):
            if d & touch:
                vm = len(st.vm) - 1 - i
        lg = None
        for i, (t, d) in enumerate(st.lg):
            if d & touch:
                lg = len(st.lg) - 1 - i
        if st.smem and (st.smem_dst & touch):
            lg = 0
        if vm is not None or lg is not None:
            self._emit_wait(vm, lg)
        n = self._need_ws(ins)
        while n > 0:
            k = min(n, 16)
            self.stats['nop'] += 1
            self._push(Ins(f's_nop {k - 1}'))
            n -= k
        self._push(ins)
        if ins.kind in ('vmem', 'ds'):
            if tag is None:
                self.ntag += 1
                tag = self.ntag
            (st.vm if ins.kind == 'vmem' else st.lg).append((tag, set(ins.wr)))
            return tag
        if ins.kind == 'smem':
            st.smem = True
            st.smem_dst |= ins.wr
        return None

    def many(self, text):
        for l in text.strip().split('\n'):
            l = l.strip()
            if l and not l.startswith(';'):
                self.I(l)

    def fork(self):
        return self.st.clone()

    def restore(self, st):
        self.st = st.clone()

    def join(self, states):
        def merge(lists):
            info = {}
            for L in lists:
                n = len(L)
                for i, (t, d) in enumerate(L):
                    y = n - 1 - i
                    if t in info:
                        info[t] = (min(info[t][0], y), info[t][1] | d)
                    else:
                        info[t] = (y, set(d))
            if not info:
                return []
            mx = max(y for y, _ in info.values())
            out = [[None, set(), []] for _ in range(mx + 1)]
            for t, (y, d) in info.items():
                out[mx - y][1] |= d
                out[mx - y][2].append(t)
            res = []
            for e in out:
                res.append((MultiTag(e[2]), e[1]))
            return res
        n = State()
        n.vm = merge([x.vm for x in states])
        n.lg = merge([x.lg for x in states])
        n.smem = any(x.smem for x in states)
        n.smem_dst = set().union(*[x.smem_dst for x in states])
        n.hist = []
        self.st = n
        worst = False
        for x in states:
            d = 0
            for p in reversed(x.hist):
                if p.kind == 'mfma' and d < 12:
                    worst = True
                d += p.ws
        self._push(Ins('s_nop 11' if worst else 's_nop 4'))

    def text(self):
        return '\n'.join(self.lines) + '\n'


class MultiTag:
    def __init__(self, tags):
        self.tags = []
        for t in tags:
            if isinstance(t, MultiTag):
                self.tags += t.tags
            else:
                self.tags.append(t)

    def __eq__(self, o):
        if isinstance(o, MultiTag):
            return self.tags == o.tags
        return o in self.tags

    def __hash__(self):
        return hash(tuple(self.tags))
```

```python
import sys
sys.path.insert(0, 'tools')
from asmlib import *

NAME = 'sequential_preLN__ssm_conv_h3__glu_gated_swiglu__prompt'

CNT = 0
SY_A, SY_W, SY_B1, SY_B2 = 0, 16384, 32768, 49152
SY_C = 65536
STATS = 81920
PROF = 98304
T_OFF, TS = 262144, 32896
H_OFF, HS = 5767168, 82048
WF13 = 8650752
WF2 = 12582912
HH, HHS = 14680064, 49408
WS_SIZE = HH + 128 * HHS

TPITCH = 131 * 16
THALF = 8 * TPITCH
TL_ALL = 4 * THALF
KTBL = 0x64175302
RP = 4624
STL = 40960
HB = [0, 81920]

sWAVE, sX, sIDX, sB = 3, 4, 5, 6
sSELLO, sSELHI, sMASK = 8, 9, 10
sT0, sT1, sT2, sT3 = 12, 13, 14, 15
sCNT = 11
sD = 16
sR, sC, sC2, sCH = 17, 18, 19, 20
sDV = 21
sU0, sU1, sU2, sU3 = 22, 23, 24, 25
sPROF = 26
sTM = 28
sEX = 30
SRD_X, SRD_K, SRD_V, SRD_SH, SRD_SK, SRD_W1, SRD_W3, SRD_W2, SRD_OUT, SRD_WS, SRD_DBG = 44, 48, 52, 56, 60, 64, 68, 72, 76, 80, 84
sDP = 88
sPC = 90


def srd(b):
    return s(b, 4)


class Gen:
    def __init__(self, stop=99, prof=False, mapr=2):
        self.A = Asm()
        self.stop = stop
        self.prof = prof
        self.mapr = mapr
        self.nstamp = 0
        self.stamp_names = []

    def stamp(self, name, idx=None):
        if not self.prof:
            return
        A = self.A
        if idx is None:
            if name in self.stamp_names:
                idx = self.stamp_names.index(name)
            else:
                idx = len(self.stamp_names)
                self.stamp_names.append(name)
        assert idx < 32
        A.I(f's_memrealtime {s(sTM, 2)}')
        A.hard_wait('lgkmcnt(0)')
        A.I(f'v_writelane_b32 v255, {s(sTM)}, {idx}')

    def flush_stamps(self):
        if not self.prof:
            return
        A = self.A
        A.I(f's_lshl_b32 {s(sT0)}, s2, 2')
        A.I(f's_add_u32 {s(sT0)}, {s(sT0)}, {s(sWAVE)}')
        A.I(f's_lshl_b32 {s(sT0)}, {s(sT0)}, 7')
        A.I(f's_add_u32 {s(sT0)}, {s(sT0)}, {PROF}')
        A.I('v_lshlrev_b32 v254, 2, v1')
        A.I('s_mov_b64 exec, 0xffffffff')
        A.I(f'buffer_store_dword v255, v254, {srd(SRD_WS)}, {s(sT0)} offen')
        A.I('s_mov_b64 exec, -1')

    def interleave(self, main, fill, per=2, start=0):
        A = self.A
        n = len(main) - start
        k = 0
        for i, m in enumerate(main):
            self.emit(m)
            if i < start:
                continue
            upto = min(len(fill), k + per, -(-len(fill) * (i - start + 1) // n) if n else len(fill))
            while k < upto:
                self.emit(fill[k])
                k += 1
        while k < len(fill):
            self.emit(fill[k])
            k += 1

    def emit(self, x):
        if callable(x):
            x()
        else:
            self.A.I(x)

    def only_wave(self, w, body):
        A = self.A
        L = A.newlabel('L_skip')
        A.I(f's_cmp_lg_u32 {s(sWAVE)}, {w}')
        A.I(f's_cbranch_scc1 {L}')
        st = A.fork()
        body()
        st2 = A.fork()
        A.label(L)
        A.join([st, st2])

    def poll_loop(self, voff, soff, target, srdb=SRD_WS, vtmp=7):
        A = self.A
        Ll, Ld = A.newlabel('L_poll'), A.newlabel('L_polld')
        A.I(f's_mov_b32 {s(sCNT)}, 0x20000')
        A.label(Ll)
        A.I(f'buffer_load_dword v{vtmp}, v{voff}, {srd(srdb)}, {soff} offen sc1')
        A.hard_wait('vmcnt(0)')
        A.I(f'v_cmp_le_u32 vcc, {target}, v{vtmp}')
        A.I('s_cmp_eq_u64 vcc, -1')
        A.I(f's_cbranch_scc1 {Ld}')
        A.I(f's_sub_u32 {s(sCNT)}, {s(sCNT)}, 1')
        A.I(f's_cbranch_scc0 {Ll}')
        A.label(Ld)

    def signal_global(self, sy):
        A = self.A
        A.I(f's_mov_b32 {s(sT0)}, {CNT + sy}')
        A.I('s_mov_b64 exec, 0xff')
        A.I(f'buffer_atomic_add v6, v4, {srd(SRD_WS)}, {s(sT0)} offen sc1')
        A.I('s_mov_b64 exec, -1')

    def poll_global(self, sy, target):
        A = self.A
        A.I(f's_mov_b32 {s(sT0)}, {CNT + sy}')
        self.poll_loop(5, s(sT0), target)

    def c_off(self, half):
        A = self.A
        A.I(f's_lshl_b32 {s(sT0)}, {s(sR)}, 8')
        A.I(f's_add_u32 {s(sT0)}, {s(sT0)}, {CNT + SY_C + half * 4096}')

    def signal_c(self, half):
        A = self.A
        self.c_off(half)
        A.I('s_mov_b64 exec, 1')
        A.I(f'buffer_atomic_add v6, v3, {srd(SRD_WS)}, {s(sT0)} offen sc1')
        A.I('s_mov_b64 exec, -1')

    def poll_c(self, half):
        self.c_off(half)
        self.poll_loop(3, s(sT0), 16)

    def barrier(self):
        self.A.I('s_barrier')

    def end(self):
        self.flush_stamps()
        self.A.I('s_branch L_end')

    def prologue(self):
        A = self.A
        A.I('s_cmp_ge_u32 s2, 256')
        A.I('s_cbranch_scc1 L_end')
        for b, off in ((SRD_K, 8), (SRD_V, 16), (SRD_X, 0), (SRD_SH, 24), (SRD_SK, 32), (SRD_WS, 96), (SRD_DBG, 88),
                       (SRD_W1, 56), (SRD_W3, 64), (SRD_W2, 72), (SRD_OUT, 80), (sDP, 40)):
            A.I(f's_load_dwordx2 {s(b, 2)}, s[0:1], {off}')
        A.I('v_lshrrev_b32 v2, 6, v0')
        A.I('v_and_b32 v1, 63, v0')
        A.I(f'v_readfirstlane_b32 {s(sWAVE)}, v2')
        A.I(f's_and_b32 {s(sX)}, s2, 7')
        A.I(f's_lshr_b32 {s(sIDX)}, s2, 3')
        A.I(f's_lshl_b32 {s(sB)}, {s(sX)}, 5')
        A.I(f's_add_u32 {s(sB)}, {s(sB)}, {s(sIDX)}')
        for b, size in ((SRD_K, 2621440), (SRD_V, 2621440), (SRD_X, 2621440), (SRD_SH, 5120), (SRD_WS, WS_SIZE), (SRD_DBG, 256),
                        (SRD_W1, 1966080), (SRD_W3, 1966080), (SRD_W2, 1966080), (SRD_OUT, 2621440)):
            A.I(f's_mov_b32 {s(b + 2)}, {size}')
            A.I(f's_mov_b32 {s(b + 3)}, 0x20000')
        A.I(f's_mov_b32 {s(SRD_SK + 3)}, 0x20000')
        A.I(f's_mul_i32 {s(sD)}, {s(sX)}, 20')
        A.I(f's_add_u32 {s(sD)}, {s(sD)}, {s(sIDX)}')
        A.I(f's_lshl_b32 {s(sD)}, {s(sD)}, 2')
        A.I(f's_add_u32 {s(sD)}, {s(sD)}, {s(sWAVE)}')
        A.I(f's_cmp_lt_u32 {s(sIDX)}, 20')
        A.I(f's_cselect_b32 {s(SRD_SK + 2)}, 4096, 0')
        A.I(f's_cselect_b32 {s(sD)}, {s(sD)}, 0')
        A.I(f's_mul_i32 {s(sT1)}, {s(sB)}, 10240')
        A.I(f's_mov_b32 {s(sSELLO)}, 0x05040100')
        A.I(f's_mov_b32 {s(sSELHI)}, 0x07060302')
        A.I(f's_mov_b32 {s(sMASK)}, 0xffff0000')
        A.I(f's_lshl_b32 {s(sT0)}, {s(sD)}, 12')
        A.wait_all()
        A.I(f's_add_u32 {s(SRD_SK)}, {s(SRD_SK)}, {s(sT0)}')
        A.I(f's_addc_u32 {s(SRD_SK + 1)}, {s(SRD_SK + 1)}, 0')
        if self.prof:
            A.I('v_mov_b32 v255, 0')
        self.stamp('start')

    def common_consts(self):
        A = self.A
        A.I('v_mov_b32 v3, 0')
        A.I('v_mov_b32 v6, 1')
        A.I('v_lshlrev_b32 v4, 3, v1')
        A.I(f'v_add_u32 v4, {s(sX)}, v4')
        A.I('v_lshlrev_b32 v4, 8, v4')
        A.I('v_and_b32 v5, 7, v1')
        A.I(f's_lshl_b32 {s(sT2)}, {s(sX)}, 3')
        A.I(f'v_add_u32 v5, {s(sT2)}, v5')
        A.I('v_lshlrev_b32 v5, 8, v5')
        if self.mapr == 2:
            A.I(f's_lshr_b32 {s(sR)}, {s(sIDX)}, 4')
            A.I(f's_lshl_b32 {s(sT2)}, {s(sX)}, 1')
            A.I(f's_add_u32 {s(sR)}, {s(sR)}, {s(sT2)}')
            A.I(f's_and_b32 {s(sC)}, {s(sIDX)}, 15')
        else:
            A.I(f's_lshr_b32 {s(sR)}, {s(sIDX)}, 3')
            A.I(f's_lshr_b32 {s(sT2)}, {s(sX)}, 1')
            A.I(f's_lshl_b32 {s(sT2)}, {s(sT2)}, 2')
            A.I(f's_add_u32 {s(sR)}, {s(sR)}, {s(sT2)}')
            A.I(f's_and_b32 {s(sC)}, {s(sIDX)}, 7')
            A.I(f's_and_b32 {s(sT2)}, {s(sX)}, 1')
            A.I(f's_lshl_b32 {s(sT2)}, {s(sT2)}, 3')
            A.I(f's_add_u32 {s(sC)}, {s(sC)}, {s(sT2)}')
        A.I(f's_and_b32 {s(sC2)}, {s(sC)}, 7')
        A.I(f's_lshr_b32 {s(sCH)}, {s(sC)}, 3')

    XS = 220

    def ssmk_loads(self):
        A = self.A
        A.I('v_lshlrev_b32 v2, 4, v1')
        A.I('v_subrev_u32 v7, 16, v2')
        for i in range(4):
            if i == 0:
                A.I(f'buffer_load_dwordx4 {v(self.XS, 4)}, v7, {srd(SRD_SK)}, 0 offen nt')
            else:
                A.I(f'buffer_load_dwordx4 {v(self.XS + 8 * i, 4)}, v2, {srd(SRD_SK)}, 0 offen offset:{1024 * i - 16} nt')
            A.I(f'buffer_load_dwordx4 {v(self.XS + 8 * i + 4, 4)}, v2, {srd(SRD_SK)}, 0 offen offset:{1024 * i} nt')
        A.I(f's_lshl_b32 {s(sT2)}, {s(sD)}, 1')
        A.I(f's_and_b32 {s(sT2)}, {s(sT2)}, -4')
        A.I(f's_load_dword {s(sDV)}, {s(sDP, 2)}, {s(sT2)}')

    def p0_kv(self):
        A = self.A
        SH, KR, VR, XR, S, KF, KV, O = 8, 16, 38, 54, 70, 86, 130, 86
        A.I('v_lshlrev_b32 v2, 3, v0')
        A.I(f'v_add_u32 v166, {s(sT1)}, v2')
        A.I('v_subrev_u32 v167, 3840, v166')
        A.I('v_lshlrev_b32 v168, 5, v0')
        A.I('v_cmp_gt_u32 vcc, 160, v0')
        A.I(f's_mov_b32 {s(sT2)}, 5120')
        A.I('s_and_b64 exec, exec, vcc')
        A.I(f'buffer_load_dwordx4 {v(SH, 4)}, v168, {srd(SRD_SH)}, 0 offen')
        A.I(f'buffer_load_dwordx4 {v(SH + 4, 4)}, v168, {srd(SRD_SH)}, 0 offen offset:16')
        for j in range(3):
            A.I(f'buffer_load_dwordx2 {v(KR + 2 * j, 2)}, v167, {srd(SRD_K)}, 0 offen offset:{1280 * j} nt')

        def rows(dst, sr):
            for j in range(8):
                so = '0' if j < 4 else s(sT2)
                A.I(f'buffer_load_dwordx2 {v(dst + 2 * j, 2)}, v166, {srd(sr)}, {so} offen offset:{1280 * (j & 3)} nt')
        rows(KR + 6, SRD_K)
        rows(VR, SRD_V)
        rows(XR, SRD_X)
        A.I('s_mov_b64 exec, -1')
        self.ssmk_loads()
        self.common_consts()
        A.I(f's_mul_i32 {s(sT3)}, {s(sWAVE)}, {THALF}')
        A.I('v_mul_u32_u24 v169, 144, v1')
        A.I(f'v_add_u32 v169, {s(sT3)}, v169')
        A.I('v_lshrrev_b32 v170, 3, v1')
        A.I('v_and_b32 v171, 7, v1')
        A.I('v_lshlrev_b32 v171, 4, v171')
        A.I('v_mul_u32_u24 v172, 144, v170')
        A.I(f'v_add3_u32 v172, v172, v171, {s(sT3)}')
        A.I(f'v_mul_u32_u24 v173, {TS}, v170')
        A.I('v_add_u32 v173, v173, v171')
        for c in range(4):
            A.I(f'v_lshlrev_b32 v{S + 0 + c}, 16, v{SH + 2 * c}')
            A.I(f'v_and_b32 v{S + 4 + c}, {s(sMASK)}, v{SH + 2 * c}')
            A.I(f'v_lshlrev_b32 v{S + 8 + c}, 16, v{SH + 2 * c + 1}')
            A.I(f'v_and_b32 v{S + 12 + c}, {s(sMASK)}, v{SH + 2 * c + 1}')
        for j in range(11):
            for e in range(2):
                A.I(f'v_lshlrev_b32 v{KF + 4 * j + 2 * e}, 16, v{KR + 2 * j + e}')
                A.I(f'v_and_b32 v{KF + 4 * j + 2 * e + 1}, {s(sMASK)}, v{KR + 2 * j + e}')
        for tap in range(4):
            for t in range(8):
                for e in range(2):
                    d = v(KV + 4 * t + 2 * e, 2)
                    kk = v(KF + 4 * (t + 3 - tap) + 2 * e, 2)
                    ss = v(S + 4 * tap + 2 * e, 2)
                    if tap == 0:
                        A.I(f'v_pk_mul_f32 {d}, {kk}, {ss}')
                    else:
                        A.I(f'v_pk_fma_f32 {d}, {kk}, {ss}, {d}')
        VF = 16
        VF = 174
        for t in range(8):
            for e in range(2):
                A.I(f'v_lshlrev_b32 v{VF + 4 * t + 2 * e}, 16, v{VR + 2 * t + e}')
                A.I(f'v_and_b32 v{VF + 4 * t + 2 * e + 1}, {s(sMASK)}, v{VR + 2 * t + e}')
        for t in range(8):
            for e in range(2):
                d = v(KV + 4 * t + 2 * e, 2)
                A.I(f'v_pk_mul_f32 {d}, {d}, {v(VF + 4 * t + 2 * e, 2)}')
        for c in range(4):
            for e in range(4):
                A.I(f'v_cvt_pk_bf16_f32 v{O + 8 * c + e}, v{KV + 4 * (7 - 2 * e) + c}, v{KV + 4 * (6 - 2 * e) + c}')
            A.I(f'ds_write_b128 v169, {v(O + 8 * c, 4)} offset:{32 * c}')
        for c in range(4):
            for e in range(4):
                sel = sSELHI if c & 1 else sSELLO
                A.I(f'v_perm_b32 v{O + 8 * c + 4 + e}, v{XR + 2 * (2 * e + 1) + (c >> 1)}, v{XR + 2 * (2 * e) + (c >> 1)}, {s(sel)}')
            A.I(f'ds_write_b128 v169, {v(O + 8 * c + 4, 4)} offset:{32 * c + 16}')
        A.wait_all(vm=False)
        RB = 130
        for i in range(8):
            A.I(f'ds_read_b128 {v(RB + 4 * i, 4)}, v172 offset:{1152 * i}')
        A.I(f's_mul_i32 {s(sT2)}, {s(sWAVE)}, {64 * TS}')
        A.I(f's_lshl_b32 {s(sT3)}, {s(sB)}, 7')
        A.I(f's_add_u32 {s(sT2)}, {s(sT2)}, {s(sT3)}')
        A.I(f's_add_u32 {s(sT2)}, {s(sT2)}, {T_OFF}')
        for i in range(8):
            if i == 4:
                A.I(f's_cmp_eq_u32 {s(sWAVE)}, 2')
                A.I('s_cbranch_scc1 L_p0_join')
            A.I(f'buffer_store_dwordx4 {v(RB + 4 * i, 4)}, v173, {srd(SRD_WS)}, {s(sT2)} offen sc1')
            A.I(f's_add_u32 {s(sT2)}, {s(sT2)}, {8 * TS}')

    def p0_stats(self):
        A = self.A
        FR, G_, S_, ONE = 16, 56, 60, 64
        A.I('v_and_b32 v8, 7, v1')
        A.I('v_mul_u32_u24 v8, 1280, v8')
        A.I('v_bfe_u32 v9, v1, 3, 1')
        A.I('v_lshlrev_b32 v9, 6, v9')
        A.I('v_and_b32 v10, 48, v1')
        A.I('v_add3_u32 v8, v8, v9, v10')
        for f in range(10):
            A.I(f'buffer_load_dwordx4 {v(FR + 4 * f, 4)}, v8, {srd(SRD_X)}, {s(sT1)} offen offset:{128 * f} nt')
        self.ssmk_loads()
        A.I(f's_getpc_b64 {s(sPC, 2)}')
        A.label('L_pc')
        A.I(f's_sub_u32 {s(sPC)}, {s(sPC)}, L_pc-{NAME}_kernel')
        A.I(f's_subb_u32 {s(sPC + 1)}, {s(sPC + 1)}, 0')
        A.I(f's_lshl_b32 {s(sT2)}, {s(sIDX)}, 11')
        A.I('v_lshlrev_b32 v9, 7, v1')
        A.I(f'v_add_u32 v9, {s(sT2)}, v9')
        A.I('v_min_u32 v9, CODE_PF_MAX, v9')
        A.I('s_mov_b64 exec, 0xffff')
        A.I(f'global_load_dword v11, v9, {s(sPC, 2)}')
        A.I('s_mov_b64 exec, -1')
        self.common_consts()
        L = A.newlabel('L_noinit')
        A.I('s_cmp_lg_u32 s2, 0')
        A.I(f's_cbranch_scc1 {L}')
        st = A.fork()
        A.I('v_lshlrev_b32 v9, 8, v1')
        for i in range(5):
            A.I(f's_mov_b32 {s(sT2)}, {CNT + i * 16384}')
            A.I(f'buffer_store_dword v3, v9, {srd(SRD_WS)}, {s(sT2)} offen sc1')
        A.hard_wait('vmcnt(0)')
        A.I('s_mov_b64 exec, 1')
        A.I(f'buffer_store_dword v6, v3, {srd(SRD_DBG)}, 0 offen sc1')
        A.I('s_mov_b64 exec, -1')
        st2 = A.fork()
        A.label(L)
        A.join([st, st2])
        for i in range(4):
            A.I(f'v_mov_b32 v{ONE + i}, 0x3f803f80')
        for f in range(10):
            fr = v(FR + 4 * f, 4)
            A.I(f'v_mfma_f32_16x16x32_bf16 {v(G_, 4)}, {fr}, {fr}, {v(G_, 4) if f else 0}')
            A.I(f'v_mfma_f32_16x16x32_bf16 {v(S_, 4)}, {v(ONE, 4)}, {fr}, {v(S_, 4) if f else 0}')
        A.I('v_and_b32 v9, 3, v1')
        A.I('v_and_b32 v10, 15, v1')
        A.I('v_lshrrev_b32 v12, 2, v10')
        A.I('v_lshl_add_u32 v12, v12, 4, v10')
        A.I('v_lshlrev_b32 v12, 2, v12')
        for i in range(1, 4):
            A.I(f'v_cmp_eq_u32 vcc, {i}, v9')
            A.I(f'v_cndmask_b32 v{G_}, v{G_}, v{G_ + i}, vcc')
        A.I(f'ds_bpermute_b32 v13, v12, v{G_}')
        A.I(f'v_add_f32_dpp v14, v{S_}, v{S_} row_ror:8 row_mask:0xf bank_mask:0xf')
        A.I('v_add_f32_dpp v13, v13, v13 row_ror:8 row_mask:0xf bank_mask:0xf')
        A.I('v_mul_f32 v14, 0x3acccccd, v14')
        A.I('v_mul_f32 v13, 0x3acccccd, v13')
        A.I('v_fma_f32 v13, -v14, v14, v13')
        A.I('v_max_f32 v13, 0, v13')
        A.I('v_add_f32 v13, 0x3727c5ac, v13')
        A.I('v_rsq_f32 v13, v13')
        A.I('v_cmp_gt_u32 vcc, 8, v10')
        A.I('v_mul_f32_e64 v14, -v14, v13')
        A.I('v_cndmask_b32 v13, v14, v13, vcc')
        A.I('v_lshlrev_b32 v9, 2, v1')
        A.I(f's_lshl_b32 {s(sT2)}, {s(sB)}, 6')
        A.I(f's_add_u32 {s(sT2)}, {s(sT2)}, {STATS}')
        A.I('s_mov_b64 exec, 0xffff')
        A.I(f'buffer_store_dword v13, v9, {srd(SRD_WS)}, {s(sT2)} offen sc1')
        A.I('s_mov_b64 exec, -1')

    def p0(self):
        A = self.A
        A.I(f's_cmp_eq_u32 {s(sWAVE)}, 3')
        A.I('s_cbranch_scc1 L_p0_stats')
        st = A.fork()
        self.p0_kv()
        A.I('s_branch L_p0_join')
        A.label('L_p0_stats')
        A.restore(st)
        self.p0_stats()
        A.label('L_p0_join')
        self.stamp('p0_stores')
        A.hard_wait('vmcnt(0) lgkmcnt(0)')
        A.st = State()
        self.stamp('p0_drained')
        self.barrier()

        def sig():
            self.poll_loop(3, '0', 1, srdb=SRD_DBG)
            self.signal_global(SY_A)
        self.only_wave(0, sig)

    def fmt13_load(self, raw, sU):
        A = self.A
        A.I(f's_mul_i32 {s(sT0)}, {s(sU)}, 2731')
        A.I(f's_lshr_b32 {s(sT0)}, {s(sT0)}, 16')
        A.I(f's_mul_i32 {s(sT1)}, {s(sT0)}, 24')
        A.I(f's_sub_u32 {s(sT1)}, {s(sU)}, {s(sT1)}')
        A.I(f's_mul_i32 {s(sT2)}, {s(sT0)}, {32 * 3072}')
        A.I(f's_lshl_b32 {s(sT3)}, {s(sT1)}, 7')
        A.I(f's_add_u32 {s(sT2)}, {s(sT2)}, {s(sT3)}')
        A.I(f's_mul_i32 {s(sU)}, {s(sT1)}, {8 * 20480}')
        A.I(f's_lshl_b32 {s(sT0)}, {s(sT0)}, 10')
        A.I(f's_add_u32 {s(sU)}, {s(sU)}, {s(sT0)}')
        A.I(f's_add_u32 {s(sU)}, {s(sU)}, {WF13}')
        for mat, mask in ((SRD_W1, 0x33333333), (SRD_W3, 0xcccccccc)):
            A.I(f's_mov_b32 exec_lo, {mask:#x}')
            A.I(f's_mov_b32 exec_hi, {mask:#x}')
            for j in range(8):
                row = (j & 3) + 16 * (j >> 2)
                A.I(f's_add_u32 {s(sT3)}, {s(sT2)}, {row * 3072}')
                if mat == SRD_W1:
                    A._push(Ins(f'buffer_load_dwordx4 {v(raw + 4 * j, 4)}, v8, {srd(mat)}, {s(sT3)} offen nt'))
                    A.st.vm.append((('f', raw, j), set()))
                else:
                    A.I(f'buffer_load_dwordx4 {v(raw + 4 * j, 4)}, v8, {srd(mat)}, {s(sT3)} offen nt')
        A.I('s_mov_b64 exec, -1')

    def fmt13_store(self, raw, out, sU):
        A = self.A
        for i in range(8):
            for jj in range(4):
                sel = sSELHI if i & 1 else sSELLO
                A.I(f'v_perm_b32 v{out + 4 * i + jj}, v{raw + 4 * (2 * jj + 1) + (i >> 1)}, v{raw + 4 * (2 * jj) + (i >> 1)}, {s(sel)}')
            A.I(f'buffer_store_dwordx4 {v(out + 4 * i, 4)}, v9, {srd(SRD_WS)}, {s(sU)} offen sc1')
            A.I(f's_add_u32 {s(sU)}, {s(sU)}, 20480')

    def formatter(self):
        A = self.A
        A.I(f's_mul_i32 {s(sU0)}, {s(sX)}, 12')
        A.I(f's_add_u32 {s(sU0)}, {s(sU0)}, {s(sIDX)}')
        A.I(f's_sub_u32 {s(sU0)}, {s(sU0)}, 20')
        A.I(f's_mul_i32 {s(sT0)}, {s(sWAVE)}, 96')
        A.I(f's_add_u32 {s(sU0)}, {s(sU0)}, {s(sT0)}')
        A.I(f's_mov_b32 {s(sU2)}, {s(sU0)}')
        A.I('v_lshrrev_b32 v8, 4, v1')
        A.I('v_mul_u32_u24 v8, 12288, v8')
        A.I('v_bfe_u32 v10, v1, 2, 2')
        A.I('v_lshlrev_b32 v10, 5, v10')
        A.I('v_and_b32 v11, 1, v1')
        A.I('v_lshlrev_b32 v11, 4, v11')
        A.I('v_add3_u32 v8, v8, v10, v11')
        A.I('v_lshlrev_b32 v9, 4, v1')
        self.fmt13_load(16, sU0)
        A.I(f's_cmp_lt_u32 {s(sU2)}, 96')
        A.I('s_cbranch_scc0 L_fmt_w2')
        st = A.fork()
        A.I(f's_add_u32 {s(sU1)}, {s(sU2)}, 384')
        self.fmt13_load(48, sU1)
        self.fmt13_store(16, 80, sU0)
        self.fmt13_store(48, 112, sU1)
        A.I('s_branch L_fmt_done')
        A.label('L_fmt_w2')
        A.restore(st)
        A.I(f's_cmp_lt_u32 {s(sU2)}, 336')
        A.I('s_cbranch_scc1 L_fmt_w2b')
        st = A.fork()
        self.fmt13_store(16, 80, sU0)
        A.I('s_branch L_fmt_done')
        A.label('L_fmt_w2b')
        A.restore(st)
        A.I(f's_sub_u32 {s(sU1)}, {s(sU2)}, 96')
        A.I(f's_mul_i32 {s(sT0)}, {s(sU1)}, 13108')
        A.I(f's_lshr_b32 {s(sT0)}, {s(sT0)}, 16')
        A.I(f's_mul_i32 {s(sT1)}, {s(sT0)}, 5')
        A.I(f's_sub_u32 {s(sT1)}, {s(sU1)}, {s(sT1)}')
        A.I(f's_lshr_b32 {s(sT2)}, {s(sT0)}, 1')
        A.I(f's_lshl_b32 {s(sT2)}, {s(sT2)}, 6')
        A.I(f's_and_b32 {s(sT3)}, {s(sT0)}, 1')
        A.I(f's_lshl_b32 {s(sT3)}, {s(sT3)}, 2')
        A.I(f's_add_u32 {s(sT2)}, {s(sT2)}, {s(sT3)}')
        A.I(f's_mul_i32 {s(sT2)}, {s(sT2)}, 1280')
        A.I(f's_lshl_b32 {s(sT3)}, {s(sT1)}, 8')
        A.I(f's_add_u32 {s(sT2)}, {s(sT2)}, {s(sT3)}')
        A.I(f's_mul_i32 {s(sU1)}, {s(sT1)}, {8 * 49152}')
        A.I(f's_lshl_b32 {s(sT0)}, {s(sT0)}, 10')
        A.I(f's_add_u32 {s(sU1)}, {s(sU1)}, {s(sT0)}')
        A.I(f's_add_u32 {s(sU1)}, {s(sU1)}, {WF2}')
        A.I('v_lshrrev_b32 v10, 4, v1')
        A.I('v_mul_u32_u24 v11, 1280, v10')
        A.I('v_and_b32 v12, 15, v1')
        A.I('v_lshl_add_u32 v11, v12, 4, v11')
        A.I(f's_lshl_b32 {s(sU3)}, {s(sWAVE)}, 13')
        A.I(f's_mov_b32 m0, {s(sU3)}')
        last = None
        for j in range(8):
            last = A.I(f'buffer_load_dwordx4 v11, {srd(SRD_W2)}, {s(sT2)} offen nt lds')
            if j < 7:
                A.I(f's_add_u32 {s(sT2)}, {s(sT2)}, {8 * 1280}')
                A.I('s_add_u32 m0, m0, 1024')
        A.I('v_bfe_u32 v12, v1, 2, 2')
        A.I('v_lshlrev_b32 v12, 10, v12')
        A.I('v_lshl_add_u32 v12, v10, 8, v12')
        A.I('v_and_b32 v13, 3, v1')
        A.I('v_lshlrev_b32 v13, 3, v13')
        A.I(f'v_add3_u32 v12, v12, v13, {s(sU3)}')
        self.fmt13_store(16, 80, sU0)
        A.wait_vm(last)
        for i in range(8):
            A.I(f'ds_read_b64_tr_b16 {v(112 + 4 * i, 2)}, v12 offset:{32 * i}')
            A.I(f'ds_read_b64_tr_b16 {v(114 + 4 * i, 2)}, v12 offset:{4096 + 32 * i}')
        for i in range(8):
            A.I(f'buffer_store_dwordx4 {v(112 + 4 * i, 4)}, v9, {srd(SRD_WS)}, {s(sU1)} offen sc1')
            A.I(f's_add_u32 {s(sU1)}, {s(sU1)}, 49152')
        A.label('L_fmt_done')
        self.stamp('fmt_stores')
        A.hard_wait('vmcnt(0) lgkmcnt(0)')
        A.st = State()
        self.barrier()
        self.only_wave(0, lambda: self.signal_global(SY_W))
        self.stamp('fmt_done')

    ALO = 256 + 112

    def conv_prep(self):
        A = self.A
        XS = self.XS
        kt = [(KTBL >> (4 * sh)) & 15 for sh in range(8)]
        A.I(f's_mul_i32 {s(sT3)}, {s(sWAVE)}, {THALF}')
        A.I('v_lshlrev_b32 v8, 4, v1')
        A.I(f'v_add_u32 v8, {s(sT3)}, v8')
        A.I(f'v_add_u32 v9, {TL_ALL}, v8')
        for i in range(4):
            X = XS + 8 * i
            T = 32 + 24 * (i & 1)
            Y, O0, O1 = T, T + 6, T + 12
            base = 'v8' if i < 2 else 'v9'

            def wr(sh, reg):
                off = kt[sh] * TPITCH + (64 * (i & 1) + (1 if sh else 2)) * 16
                A.I(f'ds_write_b128 {base}, {v(reg, 4)} offset:{off}')
            wr(0, X + 4)
            wr(4, X + 2)
            for e in range(6):
                A.I(f'v_mov_b32 v{Y + e}, v{X + 1 + e}')
            wr(2, Y)
            wr(6, Y + 2)
            for e in range(6):
                A.I(f'v_alignbit_b32 v{O0 + e}, v{X + e + 1}, v{X + e}, 16')
            wr(1, O0)
            wr(5, O0 + 2)
            for e in range(6):
                A.I(f'v_alignbit_b32 v{O1 + e}, v{X + e + 2}, v{X + e + 1}, 16')
            wr(3, O1)
            wr(7, O1 + 2)
        A.I('v_lshlrev_b32 v10, 2, v1')
        A.I(f's_mov_b32 {s(sT2)}, {KTBL:#x}')
        A.I(f'v_bfe_u32 v10, {s(sT2)}, v10, 4')
        A.I(f'v_mul_u32_u24 v10, {TPITCH}, v10')
        A.I('v_cmp_eq_u32 vcc, 0, v1')
        A.I('v_cndmask_b32_e64 v11, 0, 16, vcc')
        A.I(f'v_add3_u32 v10, v10, v11, {s(sT3)}')
        A.I(f'v_add_u32 v11, {TL_ALL}, v10')
        for e in range(4):
            A.I(f'v_mov_b32 v{28 + e}, 0')
        A.I('s_mov_b64 exec, 0xff')
        A.I('ds_write_b128 v10, v[28:31]')
        A.I('ds_read_b128 v[24:27], v10 offset:2048')
        A.I('ds_write_b128 v11, v[24:27]')
        A.I('s_mov_b64 exec, -1')
        A.I('v_lshrrev_b32 v12, 4, v1')
        A.I('v_and_b32 v13, 15, v1')
        A.I('v_lshl_add_u32 v14, v12, 3, v13')
        A.I('v_add_u32 v14, 1, v14')
        A.I('v_and_b32 v15, 7, v14')
        A.I('v_lshlrev_b32 v15, 2, v15')
        A.I(f'v_bfe_u32 v15, {s(sT2)}, v15, 4')
        A.I(f'v_mul_u32_u24 v15, {TPITCH}, v15')
        A.I('v_lshrrev_b32 v14, 3, v14')
        A.I('v_lshlrev_b32 v14, 4, v14')
        A.I(f'v_add3_u32 v8, v14, v15, {s(sT3)}')
        A.I(f'v_add_u32 v9, {TL_ALL}, v8')
        for p in range(32):
            A.I(f'ds_read_b128 {R(self.ALO + 4 * p, 4)}, v8 offset:{64 * p}')
        A.I(f's_mul_i32 {s(sT3)}, {s(sWAVE)}, {2 * RP}')
        A.I('v_lshlrev_b32 v10, 1, v13')
        A.I('v_sub_u32 v10, v10, v12')
        A.I('v_add_u32 v10, 5, v10')
        A.I('v_lshlrev_b32 v10, 4, v10')
        A.I(f'v_add_u32 v10, {s(sT3)}, v10')
        A.I('v_lshlrev_b32 v11, 5, v13')
        A.I('v_lshl_add_u32 v11, v12, 3, v11')
        A.I(f's_add_u32 {s(sT2)}, {s(sT3)}, {RP + 512}')
        A.I(f'v_add_u32 v11, {s(sT2)}, v11')
        A.I('v_lshrrev_b32 v14, 1, v12')
        A.I('v_lshl_add_u32 v14, v13, 1, v14')
        A.I('v_lshlrev_b32 v14, 6, v14')
        A.I('v_and_b32 v15, 1, v12')
        A.I('v_lshlrev_b32 v16, 4, v15')
        A.I(f'v_add_u32 v14, {STL}, v14')
        A.I('v_add_u32 v14, v14, v16')
        A.I('v_lshrrev_b32 v16, 2, v13')
        A.I('v_lshl_add_u32 v15, v15, 2, v16')
        A.I(f'v_mul_u32_u24 v15, {HS}, v15')
        A.I(f's_bfe_u32 {s(sT2)}, {s(sD)}, 0x20001')
        A.I('v_and_b32 v16, 3, v13')
        A.I(f'v_xor_b32 v16, {s(sT2)}, v16')
        A.I('v_lshlrev_b32 v16, 5, v16')
        A.I('v_lshrrev_b32 v17, 1, v12')
        A.I('v_lshlrev_b32 v17, 4, v17')
        A.I('v_add3_u32 v15, v15, v16, v17')
        A.I(f's_and_b32 {s(sT2)}, {s(sD)}, 1')
        A.I(f's_lshl_b32 {s(sT2)}, {s(sT2)}, 4')
        A.I(f's_lshr_b32 {s(sDV)}, {s(sDV)}, {s(sT2)}')
        A.I(f's_and_b32 {s(sDV)}, {s(sDV)}, 0xffff')
        A.I('v_lshl_add_u32 v16, v12, 3, v13')
        A.I('v_sub_u32 v16, 15, v16')
        A.I('v_and_b32 v17, 1, v16')
        A.I('v_lshlrev_b32 v17, 4, v17')
        A.I(f'v_lshlrev_b32_e64 v17, v17, {s(sDV)}')
        A.I('v_lshrrev_b32 v16, 1, v16')
        for e in range(4):
            A.I(f'v_cmp_eq_u32 vcc, {e}, v16')
            A.I(f'v_cndmask_b32 v{28 + e}, 0, v17, vcc')
        A.I('v_lshlrev_b32 v16, 4, v0')
        A.I('v_and_b32 v17, 7, v0')
        A.I(f'v_mul_u32_u24 v17, {RP}, v17')
        A.I('v_lshrrev_b32 v18, 3, v0')
        A.I('v_lshl_add_u32 v17, v18, 4, v17')
        A.I('v_lshlrev_b32 v19, 4, v1')
        for e in range(4):
            A.I(f'v_mov_b32 v{24 + e}, 0')
        A.wait_all()

    def conv(self):
        A = self.A
        ACC, VB, AH, STG, XQ, TMP, PK = 32, 64, 128, 160, 192, 224, 244
        self.only_wave(0, lambda: self.poll_global(SY_A, 32))
        self.barrier()
        self.stamp('A_seen')
        A.I(f's_lshr_b32 {s(sT0)}, {s(sD)}, 2')
        A.I(f's_mul_i32 {s(sT0)}, {s(sT0)}, {TS}')
        A.I(f's_add_u32 {s(sT0)}, {s(sT0)}, {T_OFF}')
        for i in range(4):
            A.I(f'buffer_load_dwordx4 {v(STG + 4 * i, 4)}, v16, {srd(SRD_WS)}, {s(sT0)} offen sc1')
            A.I(f's_add_u32 {s(sT0)}, {s(sT0)}, 4096')
        A.I(f's_lshl_b32 {s(sT1)}, {s(sWAVE)}, 12')
        A.I(f's_add_u32 m0, {s(sT1)}, {STL}')
        A.I(f's_add_u32 {s(sT1)}, {s(sT1)}, {STATS}')
        for i in range(4):
            tst = A.I(f'buffer_load_dwordx4 v19, {srd(SRD_WS)}, {s(sT1)} offen offset:{1024 * i} sc1 lds')
        for i in range(4, 8):
            A.I(f'buffer_load_dwordx4 {v(STG + 4 * i, 4)}, v16, {srd(SRD_WS)}, {s(sT0)} offen sc1')
            A.I(f's_add_u32 {s(sT0)}, {s(sT0)}, 4096')
        A.I('ds_write_b128 v17, v[24:27]')
        for i in range(4):
            A.I(f'ds_write_b128 v17, {v(STG + 4 * i, 4)} offset:{512 + 512 * i}')
        A.wait_vm(tst)
        A.wait_all(vm=False)
        self.barrier()
        self.stamp('T_staged')

        def vread(buf, tau, mu):
            return f'ds_read_b128 {v(VB + 32 * buf + 4 * tau, 4)}, v10 offset:{(32 * tau + 28 - 4 * mu) * 16}'

        def aread(buf, c, mu):
            return f'ds_read_b128 {v(AH + 16 * buf + 4 * (c - 4), 4)}, v9 offset:{64 * (8 * c + mu - 32)}'

        def qprep(t):
            tt = t & 3
            x0 = TMP + 10 * (t & 1)
            q = XQ + 8 * tt
            L = [f'ds_read_b64 {v(x0, 2)}, v11 offset:{512 * t}',
                 f'ds_read_b128 {v(x0 + 2, 4)}, v14 offset:{2048 * t}',
                 f'ds_read_b128 {v(x0 + 6, 4)}, v14 offset:{2048 * t + 32}']
            M = [f'v_lshlrev_b32 v{q}, 16, v{x0}', f'v_and_b32 v{q + 1}, {s(sMASK)}, v{x0}',
                 f'v_lshlrev_b32 v{q + 2}, 16, v{x0 + 1}', f'v_and_b32 v{q + 3}, {s(sMASK)}, v{x0 + 1}']
            M += [f'v_fma_f32 v{q + 4 + i}, v{q + i}, v{x0 + 2 + i}, v{x0 + 6 + i}' for i in range(4)]
            return L, M

        def areg(buf, c, mu):
            return R(self.ALO + 4 * (8 * c + mu), 4) if c < 4 else v(AH + 16 * buf + 4 * (c - 4), 4)

        def half(hf, extra):
            ts = range(4 * hf, 4 * hf + 4)
            ntau = 4 * hf + 4
            for tau in range(ntau):
                A.I(vread(0, tau, 0))
            if hf:
                for c in range(4, 8):
                    A.I(aread(0, c, 0))
            for mu in range(8):
                buf = mu & 1
                main = []
                if mu == 0:
                    for t in ts:
                        main.append(f'v_mfma_f32_16x16x32_bf16 {v(ACC + 4 * t, 4)}, v[28:31], {v(VB + 4 * t, 4)}, 0')
                for c in range(ntau):
                    for t in ts:
                        if c <= t:
                            main.append(f'v_mfma_f32_16x16x32_bf16 {v(ACC + 4 * t, 4)}, {areg(buf, c, mu)}, {v(VB + 32 * buf + 4 * (t - c), 4)}, {v(ACC + 4 * t, 4)}')
                fill = []
                if mu < 7:
                    order = list(range(ntau - 1, -1, -1))
                    fill += [vread(buf ^ 1, tau, mu + 1) for tau in order]
                    if hf:
                        fill += [aread(buf ^ 1, c, mu + 1) for c in range(4, 8)]
                fill += extra.get(mu, [])
                self.interleave(main, fill)

        def epilogue(hf):
            A.I(f's_lshl_b32 {s(sT0)}, {s(sD)}, 7')
            A.I(f's_add_u32 {s(sT0)}, {s(sT0)}, {H_OFF + 16 * hf * HS}')
            for tp in range(2):
                pk = PK + 4 * tp
                for dt in range(2):
                    t = 4 * hf + 2 * tp + dt
                    q = XQ + 8 * (t & 3)
                    for i in range(4):
                        A.I(f'v_fma_f32 v{q + i}, v{q + 4 + i}, v{ACC + 4 * t + i}, v{q + i}')
                    A.I(f'v_cvt_pk_bf16_f32 v{pk + 2 * dt}, v{q}, v{q + 1}')
                    A.I(f'v_cvt_pk_bf16_f32 v{pk + 2 * dt + 1}, v{q + 2}, v{q + 3}')
                A.I(f'v_permlane16_swap_b32 v{pk}, v{pk + 2}')
                A.I(f'v_permlane16_swap_b32 v{pk + 1}, v{pk + 3}')
                A.I(f'buffer_store_dwordx4 {v(pk, 4)}, v15, {srd(SRD_WS)}, {s(sT0)} offen sc1')
                if tp == 0:
                    A.I(f's_add_u32 {s(sT0)}, {s(sT0)}, {8 * HS}')

        def qextra(hf):
            ex = {}
            for j in range(4):
                L, M = qprep(4 * hf + j)
                ex.setdefault(j + 1, []).extend(L)
                ex.setdefault(j + 2, []).extend(M)
            return ex
        ex = qextra(0)
        ex.setdefault(6, []).extend([f'ds_write_b128 v17, {v(STG + 4 * i, 4)} offset:{512 + 512 * i}' for i in range(4, 8)])
        half(0, ex)
        epilogue(0)
        self.stamp('conv_h1')
        A.wait_all()
        self.barrier()
        self.only_wave(0, lambda: self.signal_global(SY_B1))
        half(1, qextra(1))
        epilogue(1)
        self.stamp('conv_h2')
        A.wait_all()
        self.barrier()
        self.only_wave(0, lambda: self.signal_global(SY_B2))

    ACC1, GR, SM, CS, ONE, HF, RES = 32, 80, 84, 88, 100, 104, 136

    def w13(self, kap, q):
        return 256 + 12 * kap + 4 * q

    def g1_setup(self):
        A = self.A
        self.only_wave(0, lambda: self.poll_global(SY_W, 12))
        self.barrier()
        self.stamp('W_seen')
        A.I('v_lshlrev_b32 v2, 4, v1')
        A.I(f's_lshl_b32 {s(sT0)}, {s(sC)}, 2')
        A.I(f's_add_u32 {s(sT0)}, {s(sT0)}, {s(sWAVE)}')
        A.I(f's_mul_i32 {s(sU0)}, {s(sT0)}, {3 * 20480}')
        A.I(f's_add_u32 {s(sU0)}, {s(sU0)}, {WF13}')
        for k4 in range(5):
            for q in range(3):
                A.I(f's_add_u32 {s(sT0 + q)}, {s(sU0)}, {q * 20480 + k4 * 4096}')
            for kk in range(4):
                for q in range(3):
                    A.I(f'buffer_load_dwordx4 {R(self.w13(4 * k4 + kk, q), 4)}, v2, {srd(SRD_WS)}, {s(sT0 + q)} offen offset:{1024 * kk} sc1')
        A.I('v_lshrrev_b32 v12, 2, v1')
        A.I('v_lshlrev_b32 v13, 7, v12')
        A.I('v_and_b32 v14, 3, v1')
        A.I('v_lshl_add_u32 v13, v14, 3, v13')
        A.I('v_bfe_u32 v14, v1, 3, 2')
        A.I(f'v_xor_b32 v15, {s(sWAVE)}, v14')
        for u in range(4):
            A.I(f'v_xor_b32 v16, {u}, v15')
            A.I(f'v_lshl_add_u32 v{8 + u}, v16, 5, v13')
        A.I(f's_and_b32 {s(sT0)}, {s(sWAVE)}, 1')
        A.I(f's_lshl_b32 {s(sT1)}, {s(sCH)}, 1')
        A.I(f's_add_u32 {s(sT0)}, {s(sT0)}, {s(sT1)}')
        A.I(f'v_xor_b32 v16, {s(sT0)}, v14')
        A.I('v_lshl_add_u32 v17, v16, 5, v13')
        A.I(f's_mul_i32 {s(sT0)}, {s(sC2)}, {80 * 128}')
        A.I(f's_lshr_b32 {s(sT1)}, {s(sWAVE)}, 1')
        A.I(f's_lshl_b32 {s(sT1)}, {s(sT1)}, 11')
        A.I(f's_add_u32 {s(sT0)}, {s(sT0)}, {s(sT1)}')
        A.I(f'v_add_u32 v17, {s(sT0)}, v17')
        A.I(f's_cmp_eq_u32 {s(sC2)}, 0')
        A.I(f's_cselect_b32 {s(sU1)}, {96 * 128}, 0')
        A.I('v_and_b32 v16, 15, v1')
        A.I('v_lshlrev_b32 v16, 4, v16')
        A.I(f'v_add_u32 v16, {s(sU1)}, v16')
        for u in range(4):
            A.I(f's_xor_b32 {s(sT0)}, {s(sWAVE)}, {u}')
            A.I(f's_lshl_b32 {s(sT0)}, {s(sT0)}, 8')
            A.I(f'v_add_u32 v{19 + u}, {s(sT0)}, v16')
        A.I('v_lshrrev_b32 v16, 4, v1')
        A.I(f'v_xor_b32 v16, {s(sWAVE)}, v16')
        A.I(f'v_mul_u32_u24 v16, {HHS}, v16')
        A.I('v_and_b32 v23, 15, v1')
        A.I('v_lshl_add_u32 v23, v23, 4, v16')
        A.I('v_and_b32 v16, 3, v1')
        for i in range(1, 4):
            A.I(f'v_cmp_eq_u32 {s(30 + 2 * i, 2)}, {i}, v16')
        for i in range(4):
            A.I(f'v_mov_b32 v{self.ONE + i}, 0x3f803f80')
        for kap in range(20):
            for q in range(3):
                cs = v(self.CS + 4 * q, 4)
                A.I(f'v_mfma_f32_16x16x32_bf16 {cs}, {R(self.w13(kap, q), 4)}, {v(self.ONE, 4)}, {cs if kap else 0}')
        self.stamp('W13_loaded')

    def g1_half(self, hf):
        A = self.A
        ACC, GR, SM, CS, ONE, HF = self.ACC1, self.GR, self.SM, self.CS, self.ONE, self.HF
        self.only_wave(0, lambda: self.poll_global(SY_B1 if hf == 0 else SY_B2, 20))
        self.barrier()
        self.stamp(f'B{hf + 1}_seen')
        A.I(f's_mul_i32 {s(sT0)}, {s(sR)}, {HS}')
        A.I(f's_lshl_b32 {s(sT1)}, {s(sWAVE)}, 12')
        A.I(f's_add_u32 {s(sT0)}, {s(sT0)}, {s(sT1)}')
        A.I(f's_add_u32 {s(sT0)}, {s(sT0)}, {H_OFF + 16 * hf * HS}')
        A.I(f's_add_u32 m0, {s(sT1)}, {HB[hf]}')
        tags = []
        for j in range(5):
            for i in range(4):
                t = A.I(f'buffer_load_dwordx4 v2, {srd(SRD_WS)}, {s(sT0)} offen offset:{1024 * i} sc1 lds')
            tags.append(t)
            if j < 4:
                A.I(f's_add_u32 {s(sT0)}, {s(sT0)}, 16384')
                A.I('s_add_u32 m0, m0, 16384')
        cur = [0]

        def reads(kap):
            buf = kap & 1
            L = []
            for u in range(4):
                for hh in range(2):
                    L.append(f'ds_read_b64_tr_b16 {v(HF + 16 * buf + 4 * u + 2 * hh, 2)}, v{8 + u} offset:{(kap % 10) * 4096 + 2048 * hh}')
            return L

        def chunk_ready(j):
            def f():
                A.wait_vm(tags[j])
                self.barrier()
            return f
        chunk_ready(0)()
        self.stamp(f'h{hf + 1}_first')
        for x in reads(0):
            A.I(x)
        for kap in range(20):
            buf = kap & 1
            fr = lambda u: v(HF + 16 * buf + 4 * u, 4)
            main = [f'v_mfma_f32_16x16x32_bf16 {v(GR, 4)}, {fr(0)}, {fr(0)}, {v(GR, 4) if kap else 0}',
                    f'v_mfma_f32_16x16x32_bf16 {v(SM, 4)}, {v(ONE, 4)}, {fr(0)}, {v(SM, 4) if kap else 0}']
            for u in range(4):
                for q in range(3):
                    ac = v(ACC + 4 * (3 * u + q), 4)
                    main.append(f'v_mfma_f32_16x16x32_bf16 {ac}, {R(self.w13(kap, q), 4)}, {fr(u)}, {ac if kap else 0}')
            fill = []
            if kap < 19:
                if (kap + 1) % 4 == 0:
                    fill.append(chunk_ready((kap + 1) // 4))
                if kap + 1 == 10:
                    fill += [f'v_add_u32 v{8 + u}, 40960, v{8 + u}' for u in range(4)]
                fill += reads(kap + 1)
                if kap == 16:
                    fill += [f'ds_read_b64_tr_b16 {v(self.RES + 6 * hf + 2 * n, 2)}, v17 offset:{4096 * n}' for n in range(3)]
                self.interleave(main, fill)
            else:
                T = 148
                fill = [f'v_add_u32 v{8 + u}, 40960, v{8 + u}' for u in range(4)]
                fill += ['v_add_u32 v17, 81920, v17']
                fill += [f'v_cndmask_b32 v{T}, v{GR}, v{GR + 1}, {s(32, 2)}',
                         f'v_cndmask_b32 v{T}, v{T}, v{GR + 2}, {s(34, 2)}',
                         f'v_cndmask_b32 v{T}, v{T}, v{GR + 3}, {s(36, 2)}',
                         f'v_mul_f32 v{T + 4}, 0xbacccccd, v{SM}',
                         f'v_mul_f32 v{T}, 0x3acccccd, v{T}',
                         f'v_fma_f32 v{T}, -v{T + 4}, v{T + 4}, v{T}',
                         f'v_max_f32 v{T}, 0, v{T}',
                         f'v_add_f32 v{T + 6}, 0x3727c5ac, v{T}',
                         f'v_rsq_f32 v{T + 5}, v{T + 6}',
                         f'v_mov_b32 v{T + 7}, 0',
                         f'v_mul_f32 v{T + 5}, 0xbfb8aa3b, v{T + 5}']
                self.interleave(main, fill, start=2)
                A.I('s_mov_b32 exec_lo, 0x00f0000f')
                A.I('s_mov_b32 exec_hi, 0xf0000f00')
                A.I(f'ds_write_b128 v19, {v(T + 4, 4)}')
                A.I('s_mov_b64 exec, -1')
        A.wait_all(vm=False)
        self.barrier()
        self.stamp(f'g1h{hf + 1}_mfma')
        ST = 156
        for u in range(4):
            A.I(f'ds_read_b128 {v(ST + 4 * u, 4)}, v{19 + u}')
        for u in range(4):
            A.I(f'v_add_u32 v{19 + u}, 81920, v{19 + u}')
        A.I(f's_mul_i32 {s(sT0)}, {s(sR)}, {4 * HHS}')
        A.I(f's_lshl_b32 {s(sT1)}, {s(sC)}, 2')
        A.I(f's_add_u32 {s(sT1)}, {s(sT1)}, {s(sWAVE)}')
        A.I(f's_mul_i32 {s(sT1)}, {s(sT1)}, 768')
        A.I(f's_add_u32 {s(sT0)}, {s(sT0)}, {s(sT1)}')
        A.I(f's_add_u32 {s(sT0)}, {s(sT0)}, {HH + 64 * hf * HHS}')
        E, PK = 172, 188
        for q in range(3):
            cg, cu = v(CS + 4 * q, 2), v(CS + 4 * q + 2, 2)
            for u in range(4):
                ac = ACC + 4 * (3 * u + q)
                st = ST + 4 * u
                A.I(f'v_pk_fma_f32 {v(ac, 2)}, {cg}, {v(st, 2)}, {v(ac, 2)} op_sel_hi:[1,0,1]')
                A.I(f'v_pk_mul_f32 {v(E + 2 * u, 2)}, {v(ac, 2)}, {v(st, 2)} op_sel:[0,1] op_sel_hi:[1,1]')
                A.I(f'v_pk_fma_f32 {v(ac + 2, 2)}, {cu}, {v(st, 2)}, {v(ac + 2, 2)} op_sel_hi:[1,0,1]')
            for u in range(4):
                A.I(f'v_exp_f32 v{E + 2 * u}, v{E + 2 * u}')
                A.I(f'v_exp_f32 v{E + 2 * u + 1}, v{E + 2 * u + 1}')
            for u in range(4):
                ac = ACC + 4 * (3 * u + q)
                st = ST + 4 * u
                A.I(f'v_pk_mul_f32 {v(ac, 2)}, {v(ac, 2)}, {v(ac + 2, 2)}')
                A.I(f'v_pk_fma_f32 {v(E + 2 * u, 2)}, {v(E + 2 * u, 2)}, {v(st + 2, 2)}, {v(st + 2, 2)} op_sel_hi:[1,0,0]')
            for u in range(4):
                A.I(f'v_rcp_f32 v{E + 2 * u}, v{E + 2 * u}')
                A.I(f'v_rcp_f32 v{E + 2 * u + 1}, v{E + 2 * u + 1}')
            pk = PK + 4 * q
            for u in range(4):
                ac = ACC + 4 * (3 * u + q)
                A.I(f'v_pk_mul_f32 {v(ac, 2)}, {v(ac, 2)}, {v(E + 2 * u, 2)}')
            for u in range(4):
                ac = ACC + 4 * (3 * u + q)
                A.I(f'v_cvt_pk_bf16_f32 v{pk + u}, v{ac}, v{ac + 1}')
            A.I(f'v_permlane32_swap_b32 v{pk}, v{pk + 2}')
            A.I(f'v_permlane32_swap_b32 v{pk + 1}, v{pk + 3}')
            A.I(f'v_permlane16_swap_b32 v{pk}, v{pk + 1}')
            A.I(f'v_permlane16_swap_b32 v{pk + 2}, v{pk + 3}')
            A.I(f'buffer_store_dwordx4 {v(pk, 4)}, v23, {srd(SRD_WS)}, {s(sT0)} offen offset:{256 * q} sc1')
        self.stamp(f'g1h{hf + 1}_epi')
        A.wait_all()
        self.barrier()
        self.only_wave(0, lambda: self.signal_c(hf))

    def w2(self, kk, t5):
        return 256 + 20 * kk + 4 * t5

    def g2_setup(self):
        A = self.A
        A.I(f's_mul_i32 {s(sU0)}, {s(sC2)}, {5 * 49152}')
        A.I(f's_mul_i32 {s(sT0)}, {s(sWAVE)}, 12288')
        A.I(f's_add_u32 {s(sU0)}, {s(sU0)}, {s(sT0)}')
        A.I(f's_add_u32 {s(sU0)}, {s(sU0)}, {WF2}')
        for k4 in range(3):
            for t5 in range(5):
                A.I(f's_add_u32 {s(38 + t5)}, {s(sU0)}, {t5 * 49152 + k4 * 4096}')
            for kk in range(4):
                for t5 in range(5):
                    A.I(f'buffer_load_dwordx4 {R(self.w2(4 * k4 + kk, t5), 4)}, v2, {srd(SRD_WS)}, {s(38 + t5)} offen offset:{1024 * kk} sc1')
        A.I(f's_mul_i32 {s(sT0)}, {s(sWAVE)}, 10240')
        A.I(f'v_add_u32 v8, {s(sT0)}, v2')
        A.I(f's_lshl_b32 {s(sT0)}, {s(sWAVE)}, 10')
        A.I(f'v_add_u32 v9, {s(sT0)}, v2')
        A.I('v_and_b32 v10, 15, v1')
        A.I('v_mul_u32_u24 v10, 1280, v10')
        A.I('v_lshrrev_b32 v11, 4, v1')
        A.I('v_lshl_add_u32 v10, v11, 3, v10')

    def g2_half(self, hf):
        A = self.A
        ACC, HR = 32, 156
        self.only_wave(0, lambda: self.poll_c(hf))
        self.barrier()
        self.stamp(f'C{hf + 1}_seen')
        A.I(f's_lshl_b32 {s(sT0)}, {s(sR)}, 1')
        A.I(f's_add_u32 {s(sT0)}, {s(sT0)}, {s(sCH)}')
        A.I(f's_mul_i32 {s(sT1)}, {s(sT0)}, {2 * HHS}')
        A.I(f's_mul_i32 {s(sT2)}, {s(sWAVE)}, 12288')
        A.I(f's_add_u32 {s(sT1)}, {s(sT1)}, {s(sT2)}')
        A.I(f's_add_u32 {s(sT1)}, {s(sT1)}, {HH + 64 * hf * HHS}')
        for k4 in range(3):
            A.I(f's_add_u32 {s(sT2)}, {s(sT1)}, {4096 * k4}')
            A.I(f's_add_u32 {s(sT3)}, {s(sT1)}, {4096 * k4 + HHS}')
            for kk in range(4):
                for m2 in range(2):
                    A.I(f'buffer_load_dwordx4 {v(HR + 8 * (4 * k4 + kk) + 4 * m2, 4)}, v2, {srd(SRD_WS)}, {s(sT2 + m2)} offen offset:{1024 * kk} sc1')
        A.I(f's_lshl_b32 {s(sT0)}, {s(sT0)}, 1')
        A.I(f's_and_b32 {s(sT1)}, {s(sWAVE)}, 1')
        A.I(f's_add_u32 {s(sT0)}, {s(sT0)}, {s(sT1)}')
        A.I(f's_mul_i32 {s(sT0)}, {s(sT0)}, {16 * 1280}')
        A.I(f's_mul_i32 {s(sT1)}, {s(sC2)}, 160')
        A.I(f's_add_u32 {s(sT0)}, {s(sT0)}, {s(sT1)}')
        A.I(f's_lshr_b32 {s(sT1)}, {s(sWAVE)}, 1')
        A.I(f's_lshl_b32 {s(sT1)}, {s(sT1)}, 5')
        A.I(f's_add_u32 {s(sT0)}, {s(sT0)}, {s(sT1)}')
        A.I(f's_add_u32 {s(sU1)}, {s(sT0)}, {1024 * hf * 1280}')
        for kk in range(12):
            for m2 in range(2):
                for t5 in range(5):
                    ac = v(ACC + 4 * (2 * t5 + m2), 4)
                    A.I(f'v_mfma_f32_16x16x32_bf16 {ac}, {R(self.w2(kk, t5), 4)}, {v(HR + 8 * kk + 4 * m2, 4)}, {ac if kk else 0}')
        self.stamp(f'g2h{hf + 1}_mfma')
        base = 40960 * hf
        if hf:
            A.I('v_add_u32 v8, 40960, v8')
            A.I('v_add_u32 v9, 40960, v9')
        for e in (0, 2, 4, 6, 8, 1, 3, 5, 7, 9):
            A.I(f'ds_write_b128 v8, {v(ACC + 4 * e, 4)} offset:{1024 * e}')
        A.wait_all(vm=False)
        self.barrier()
        P = 72
        for n in range(3):
            for w in range(4):
                A.I(f'ds_read_b128 {v(P + 16 * n + 4 * w, 4)}, v9 offset:{10240 * w + 4096 * n}')
        Lskip = A.newlabel('L_g2skip')
        for n in range(3):
            if n == 2:
                A.I(f's_cmp_ge_u32 {s(sWAVE)}, 2')
                A.I(f's_cbranch_scc1 {Lskip}')
                st = A.fork()
            p = P + 16 * n
            rs = self.RES + 6 * hf + 2 * n
            T = 120
            A.I(f'v_lshlrev_b32 v{T}, 16, v{rs}')
            A.I(f'v_and_b32 v{T + 1}, {s(sMASK)}, v{rs}')
            A.I(f'v_lshlrev_b32 v{T + 2}, 16, v{rs + 1}')
            A.I(f'v_and_b32 v{T + 3}, {s(sMASK)}, v{rs + 1}')
            for h in range(2):
                A.I(f'v_pk_add_f32 {v(p + 2 * h, 2)}, {v(p + 2 * h, 2)}, {v(p + 4 + 2 * h, 2)}')
                A.I(f'v_pk_add_f32 {v(p + 8 + 2 * h, 2)}, {v(p + 8 + 2 * h, 2)}, {v(p + 12 + 2 * h, 2)}')
            for h in range(2):
                A.I(f'v_pk_add_f32 {v(p + 2 * h, 2)}, {v(p + 2 * h, 2)}, {v(p + 8 + 2 * h, 2)}')
            for h in range(2):
                A.I(f'v_pk_add_f32 {v(p + 2 * h, 2)}, {v(p + 2 * h, 2)}, {v(T + 2 * h, 2)}')
            A.I(f'v_cvt_pk_bf16_f32 v{p + 4}, v{p}, v{p + 1}')
            A.I(f'v_cvt_pk_bf16_f32 v{p + 5}, v{p + 2}, v{p + 3}')
            A.I(f'buffer_store_dwordx2 {v(p + 4, 2)}, v10, {srd(SRD_OUT)}, {s(sU1)} offen offset:{64 * n}')
        st2 = A.fork()
        A.label(Lskip)
        A.join([st, st2])
        self.stamp(f'g2h{hf + 1}_done')

    def build(self):
        A = self.A
        self.prologue()
        self.p0()
        if self.stop == 0:
            self.end()
            return self.finish()
        A.I(f's_cmp_lt_u32 {s(sIDX)}, 20')
        A.I('s_cbranch_scc1 L_conv')
        st = A.fork()
        self.formatter()
        st1 = A.fork()
        A.I('s_branch L_gemm')
        A.label('L_conv')
        A.restore(st)
        self.conv_prep()
        self.stamp('prep_done')
        self.conv()
        st2 = A.fork()
        A.label('L_gemm')
        A.join([st1, st2])
        if self.stop == 1:
            self.end()
            return self.finish()
        self.g1_setup()
        self.g1_half(0)
        self.g1_half(1)
        if self.stop == 2:
            self.end()
            return self.finish()
        self.g2_setup()
        self.g2_half(0)
        self.g2_half(1)
        self.flush_stamps()
        return self.finish()

    def finish(self):
        body = self.A.text()
        hdr = open('cdna_kernels/' + NAME + '.s.ref').read().split('; Override launch')[0]
        out = hdr
        out += '; Single persistent kernel, one workgroup per CU (generated by tools/gen.py)\n'
        out += '; @launch grid=(256,1,1) block=(256,1,1) lds=163840\n'
        out += '.amdgcn_target "amdgcn-amd-amdhsa--gfx950"\n.text\n'
        out += f'.globl {NAME}_kernel\n.p2align 8\n.type {NAME}_kernel,@function\n{NAME}_kernel:\n'
        out += body
        out += 'L_end:\n    s_endpgm\nL_code_end:\n'
        out += '.set CODE_PF_MAX, (L_code_end - ' + NAME + '_kernel - 4) & 0xffffff80\n'
        out += f'''.section .rodata,"a"
.p2align 6
.amdhsa_kernel {NAME}_kernel
  .amdhsa_next_free_vgpr 512
  .amdhsa_next_free_sgpr 96
  .amdhsa_accum_offset 256
  .amdhsa_group_segment_fixed_size 0
  .amdhsa_kernarg_size 104
  .amdhsa_user_sgpr_count 2
  .amdhsa_user_sgpr_kernarg_segment_ptr 1
  .amdhsa_system_sgpr_workgroup_id_x 1
  .amdhsa_float_denorm_mode_32 3
.end_amdhsa_kernel
'''
        return out


if __name__ == '__main__':
    import argparse
    ap = argparse.ArgumentParser()
    ap.add_argument('-o', default='cdna_kernels/' + NAME + '.s')
    ap.add_argument('--stop', type=int, default=99)
    ap.add_argument('--prof', action='store_true')
    ap.add_argument('--mapr', type=int, default=2)
    args = ap.parse_args()
    g = Gen(stop=args.stop, prof=args.prof, mapr=args.mapr)
    txt = g.build()
    open(args.o, 'w').write(txt)
    print('instructions', g.A.nins, g.A.stats, 'stamps', g.stamp_names)
```

```python
import sys
sys.path.insert(0, 'tools')
from asmlib import *

NAME = 'sequential_preLN__ssm_conv_h3__glu_gated_swiglu__prompt'

CNT = 0
SY_A, SY_W, SY_B1, SY_B2 = 0, 16384, 32768, 49152
SY_C = 65536
STATS = 81920
PROF = 98304
T_OFF, TS = 262144, 32896
H_OFF, HS = 5767168, 82048
WF13 = 8650752
WF2 = 12582912
HH, HHS = 14680064, 49408
WS_SIZE = HH + 128 * HHS

TPITCH = 131 * 16
THALF = 8 * TPITCH
TL_ALL = 4 * THALF
KTBL = 0x64175302
RP = 4624
STL = 40960
HB = [0, 81920]

sWAVE, sX, sIDX, sB = 3, 4, 5, 6
sSELLO, sSELHI, sMASK = 8, 9, 10
sT0, sT1, sT2, sT3 = 12, 13, 14, 15
sCNT = 11
sD = 16
sR, sC, sC2, sCH = 17, 18, 19, 20
sDV = 21
sU0, sU1, sU2, sU3 = 22, 23, 24, 25
sPROF = 26
sTM = 28
sEX = 30
SRD_X, SRD_K, SRD_V, SRD_SH, SRD_SK, SRD_W1, SRD_W3, SRD_W2, SRD_OUT, SRD_WS, SRD_DBG = 44, 48, 52, 56, 60, 64, 68, 72, 76, 80, 84
sDP = 88
sPC = 90


def srd(b):
    return s(b, 4)


class Gen:
    def __init__(self, stop=99, prof=False, mapr=2, probe=None):
        self.probe = probe
        self.A = Asm()
        self.stop = stop
        self.prof = prof
        self.mapr = mapr
        self.nstamp = 0
        self.stamp_names = []

    def stamp(self, name, idx=None):
        if self.probe and name in self.probe:
            k = 92 if name == self.probe[0] else 94
            self.A.I(f's_memrealtime {s(k, 2)}')
            self.A.hard_wait('lgkmcnt(0)')
        if not self.prof:
            return
        A = self.A
        if idx is None:
            if name in self.stamp_names:
                idx = self.stamp_names.index(name)
            else:
                idx = len(self.stamp_names)
                self.stamp_names.append(name)
        assert idx < 32
        A.I(f's_memrealtime {s(sTM, 2)}')
        A.hard_wait('lgkmcnt(0)')
        A.I(f'v_writelane_b32 v255, {s(sTM)}, {idx}')

    def flush_stamps(self):
        if self.probe:
            A = self.A
            A.I('s_cmp_lg_u32 s2, 9')
            A.I('s_cbranch_scc1 L_end')
            A.I('s_sub_u32 s94, s94, s92')
            A.I('s_mul_i32 s94, s94, 10')
            A.I('s_memrealtime s[92:93]')
            A.hard_wait('lgkmcnt(0)')
            A.label('L_probe')
            A.I(f's_memrealtime {s(sTM, 2)}')
            A.hard_wait('lgkmcnt(0)')
            A.I(f's_sub_u32 {s(sTM)}, {s(sTM)}, s92')
            A.I(f's_cmp_lt_u32 {s(sTM)}, s94')
            A.I('s_cbranch_scc1 L_probe')
        if not self.prof:
            return
        A = self.A
        A.I(f's_lshl_b32 {s(sT0)}, s2, 2')
        A.I(f's_add_u32 {s(sT0)}, {s(sT0)}, {s(sWAVE)}')
        A.I(f's_lshl_b32 {s(sT0)}, {s(sT0)}, 7')
        A.I(f's_add_u32 {s(sT0)}, {s(sT0)}, {PROF}')
        A.I('v_lshlrev_b32 v254, 2, v1')
        A.I('s_mov_b64 exec, 0xffffffff')
        A.I(f'buffer_store_dword v255, v254, {srd(SRD_WS)}, {s(sT0)} offen')
        A.I('s_mov_b64 exec, -1')

    def interleave(self, main, fill, per=2, start=0):
        A = self.A
        n = len(main) - start
        k = 0
        for i, m in enumerate(main):
            self.emit(m)
            if i < start:
                continue
            upto = min(len(fill), k + per, -(-len(fill) * (i - start + 1) // n) if n else len(fill))
            while k < upto:
                self.emit(fill[k])
                k += 1
        while k < len(fill):
            self.emit(fill[k])
            k += 1

    def emit(self, x):
        if callable(x):
            x()
        else:
            self.A.I(x)

    def only_wave(self, w, body):
        A = self.A
        L = A.newlabel('L_skip')
        A.I(f's_cmp_lg_u32 {s(sWAVE)}, {w}')
        A.I(f's_cbranch_scc1 {L}')
        st = A.fork()
        body()
        st2 = A.fork()
        A.label(L)
        A.join([st, st2])

    def poll_loop(self, voff, soff, target, srdb=SRD_WS, vtmp=7):
        A = self.A
        Ll, Ld = A.newlabel('L_poll'), A.newlabel('L_polld')
        A.I(f's_mov_b32 {s(sCNT)}, 0x20000')
        A.label(Ll)
        A.I(f'buffer_load_dword v{vtmp}, v{voff}, {srd(srdb)}, {soff} offen sc1')
        A.hard_wait('vmcnt(0)')
        A.I(f'v_cmp_le_u32 vcc, {target}, v{vtmp}')
        A.I('s_cmp_eq_u64 vcc, -1')
        A.I(f's_cbranch_scc1 {Ld}')
        A.I(f's_sub_u32 {s(sCNT)}, {s(sCNT)}, 1')
        A.I(f's_cbranch_scc0 {Ll}')
        A.label(Ld)

    def signal_global(self, sy):
        A = self.A
        A.I(f's_mov_b32 {s(sT0)}, {CNT + sy}')
        A.I('s_mov_b64 exec, 0xff')
        A.I(f'buffer_atomic_add v6, v4, {srd(SRD_WS)}, {s(sT0)} offen sc1')
        A.I('s_mov_b64 exec, -1')

    def poll_global(self, sy, target):
        A = self.A
        A.I(f's_mov_b32 {s(sT0)}, {CNT + sy}')
        self.poll_loop(5, s(sT0), target)

    def c_off(self, half):
        A = self.A
        A.I(f's_lshl_b32 {s(sT0)}, {s(sR)}, 8')
        A.I(f's_add_u32 {s(sT0)}, {s(sT0)}, {CNT + SY_C + half * 4096}')

    def signal_c(self, half):
        A = self.A
        self.c_off(half)
        A.I('s_mov_b64 exec, 1')
        A.I(f'buffer_atomic_add v6, v3, {srd(SRD_WS)}, {s(sT0)} offen sc1')
        A.I('s_mov_b64 exec, -1')

    def poll_c(self, half):
        self.c_off(half)
        self.poll_loop(3, s(sT0), 16)

    def barrier(self):
        self.A.I('s_barrier')

    def end(self):
        self.flush_stamps()
        self.A.I('s_branch L_end')

    def prologue(self):
        A = self.A
        A.I('s_cmp_ge_u32 s2, 256')
        A.I('s_cbranch_scc1 L_end')
        for b, off in ((SRD_K, 8), (SRD_V, 16), (SRD_X, 0), (SRD_SH, 24), (SRD_SK, 32), (SRD_WS, 96), (SRD_DBG, 88),
                       (SRD_W1, 56), (SRD_W3, 64), (SRD_W2, 72), (SRD_OUT, 80), (sDP, 40)):
            A.I(f's_load_dwordx2 {s(b, 2)}, s[0:1], {off}')
        A.I('v_lshrrev_b32 v2, 6, v0')
        A.I('v_and_b32 v1, 63, v0')
        A.I(f'v_readfirstlane_b32 {s(sWAVE)}, v2')
        A.I(f's_and_b32 {s(sX)}, s2, 7')
        A.I(f's_lshr_b32 {s(sIDX)}, s2, 3')
        A.I(f's_lshl_b32 {s(sB)}, {s(sX)}, 5')
        A.I(f's_add_u32 {s(sB)}, {s(sB)}, {s(sIDX)}')
        for b, size in ((SRD_K, 2621440), (SRD_V, 2621440), (SRD_X, 2621440), (SRD_SH, 5120), (SRD_WS, WS_SIZE), (SRD_DBG, 256),
                        (SRD_W1, 1966080), (SRD_W3, 1966080), (SRD_W2, 1966080), (SRD_OUT, 2621440)):
            A.I(f's_mov_b32 {s(b + 2)}, {size}')
            A.I(f's_mov_b32 {s(b + 3)}, 0x20000')
        A.I(f's_mov_b32 {s(SRD_SK + 3)}, 0x20000')
        A.I(f's_mul_i32 {s(sD)}, {s(sX)}, 20')
        A.I(f's_add_u32 {s(sD)}, {s(sD)}, {s(sIDX)}')
        A.I(f's_lshl_b32 {s(sD)}, {s(sD)}, 2')
        A.I(f's_add_u32 {s(sD)}, {s(sD)}, {s(sWAVE)}')
        A.I(f's_cmp_lt_u32 {s(sIDX)}, 20')
        A.I(f's_cselect_b32 {s(SRD_SK + 2)}, 4096, 0')
        A.I(f's_cselect_b32 {s(sD)}, {s(sD)}, 0')
        A.I(f's_mul_i32 {s(sT1)}, {s(sB)}, 10240')
        A.I(f's_mov_b32 {s(sSELLO)}, 0x05040100')
        A.I(f's_mov_b32 {s(sSELHI)}, 0x07060302')
        A.I(f's_mov_b32 {s(sMASK)}, 0xffff0000')
        A.I(f's_lshl_b32 {s(sT0)}, {s(sD)}, 12')
        A.wait_all()
        A.I(f's_add_u32 {s(SRD_SK)}, {s(SRD_SK)}, {s(sT0)}')
        A.I(f's_addc_u32 {s(SRD_SK + 1)}, {s(SRD_SK + 1)}, 0')
        if self.prof:
            A.I('v_mov_b32 v255, 0')
        self.stamp('start')

    def common_consts(self):
        A = self.A
        A.I('v_mov_b32 v3, 0')
        A.I('v_mov_b32 v6, 1')
        A.I('v_lshlrev_b32 v4, 3, v1')
        A.I(f'v_add_u32 v4, {s(sX)}, v4')
        A.I('v_lshlrev_b32 v4, 8, v4')
        A.I('v_and_b32 v5, 7, v1')
        A.I(f's_lshl_b32 {s(sT2)}, {s(sX)}, 3')
        A.I(f'v_add_u32 v5, {s(sT2)}, v5')
        A.I('v_lshlrev_b32 v5, 8, v5')
        if self.mapr == 2:
            A.I(f's_lshr_b32 {s(sR)}, {s(sIDX)}, 4')
            A.I(f's_lshl_b32 {s(sT2)}, {s(sX)}, 1')
            A.I(f's_add_u32 {s(sR)}, {s(sR)}, {s(sT2)}')
            A.I(f's_and_b32 {s(sC)}, {s(sIDX)}, 15')
        else:
            A.I(f's_lshr_b32 {s(sR)}, {s(sIDX)}, 3')
            A.I(f's_lshr_b32 {s(sT2)}, {s(sX)}, 1')
            A.I(f's_lshl_b32 {s(sT2)}, {s(sT2)}, 2')
            A.I(f's_add_u32 {s(sR)}, {s(sR)}, {s(sT2)}')
            A.I(f's_and_b32 {s(sC)}, {s(sIDX)}, 7')
            A.I(f's_and_b32 {s(sT2)}, {s(sX)}, 1')
            A.I(f's_lshl_b32 {s(sT2)}, {s(sT2)}, 3')
            A.I(f's_add_u32 {s(sC)}, {s(sC)}, {s(sT2)}')
        A.I(f's_and_b32 {s(sC2)}, {s(sC)}, 7')
        A.I(f's_lshr_b32 {s(sCH)}, {s(sC)}, 3')

    XS = 220

    def ssmk_loads(self):
        A = self.A
        A.I('v_lshlrev_b32 v2, 4, v1')
        A.I('v_subrev_u32 v7, 16, v2')
        for i in range(4):
            if i == 0:
                A.I(f'buffer_load_dwordx4 {v(self.XS, 4)}, v7, {srd(SRD_SK)}, 0 offen nt')
            else:
                A.I(f'buffer_load_dwordx4 {v(self.XS + 8 * i, 4)}, v2, {srd(SRD_SK)}, 0 offen offset:{1024 * i - 16} nt')
            A.I(f'buffer_load_dwordx4 {v(self.XS + 8 * i + 4, 4)}, v2, {srd(SRD_SK)}, 0 offen offset:{1024 * i} nt')
        A.I(f's_lshl_b32 {s(sT2)}, {s(sD)}, 1')
        A.I(f's_and_b32 {s(sT2)}, {s(sT2)}, -4')
        A.I(f's_load_dword {s(sDV)}, {s(sDP, 2)}, {s(sT2)}')

    def p0_kv(self):
        A = self.A
        SH, KR, VR, XR, S, KF, KV, O = 8, 16, 38, 54, 70, 86, 130, 86
        A.I('v_lshlrev_b32 v2, 3, v0')
        A.I(f'v_add_u32 v166, {s(sT1)}, v2')
        A.I('v_subrev_u32 v167, 3840, v166')
        A.I('v_lshlrev_b32 v168, 5, v0')
        A.I('v_cmp_gt_u32 vcc, 160, v0')
        A.I(f's_mov_b32 {s(sT2)}, 5120')
        A.I('s_and_b64 exec, exec, vcc')
        A.I(f'buffer_load_dwordx4 {v(SH, 4)}, v168, {srd(SRD_SH)}, 0 offen')
        A.I(f'buffer_load_dwordx4 {v(SH + 4, 4)}, v168, {srd(SRD_SH)}, 0 offen offset:16')
        for j in range(3):
            A.I(f'buffer_load_dwordx2 {v(KR + 2 * j, 2)}, v167, {srd(SRD_K)}, 0 offen offset:{1280 * j} nt')

        def rows(dst, sr):
            for j in range(8):
                so = '0' if j < 4 else s(sT2)
                A.I(f'buffer_load_dwordx2 {v(dst + 2 * j, 2)}, v166, {srd(sr)}, {so} offen offset:{1280 * (j & 3)} nt')
        rows(KR + 6, SRD_K)
        rows(VR, SRD_V)
        rows(XR, SRD_X)
        A.I('s_mov_b64 exec, -1')
        self.ssmk_loads()
        self.common_consts()
        A.I(f's_mul_i32 {s(sT3)}, {s(sWAVE)}, {THALF}')
        A.I('v_mul_u32_u24 v169, 144, v1')
        A.I(f'v_add_u32 v169, {s(sT3)}, v169')
        A.I('v_lshrrev_b32 v170, 3, v1')
        A.I('v_and_b32 v171, 7, v1')
        A.I('v_lshlrev_b32 v171, 4, v171')
        A.I('v_mul_u32_u24 v172, 144, v170')
        A.I(f'v_add3_u32 v172, v172, v171, {s(sT3)}')
        A.I(f'v_mul_u32_u24 v173, {TS}, v170')
        A.I('v_add_u32 v173, v173, v171')
        for c in range(4):
            A.I(f'v_lshlrev_b32 v{S + 0 + c}, 16, v{SH + 2 * c}')
            A.I(f'v_and_b32 v{S + 4 + c}, {s(sMASK)}, v{SH + 2 * c}')
            A.I(f'v_lshlrev_b32 v{S + 8 + c}, 16, v{SH + 2 * c + 1}')
            A.I(f'v_and_b32 v{S + 12 + c}, {s(sMASK)}, v{SH + 2 * c + 1}')
        for j in range(11):
            for e in range(2):
                A.I(f'v_lshlrev_b32 v{KF + 4 * j + 2 * e}, 16, v{KR + 2 * j + e}')
                A.I(f'v_and_b32 v{KF + 4 * j + 2 * e + 1}, {s(sMASK)}, v{KR + 2 * j + e}')
        for tap in range(4):
            for t in range(8):
                for e in range(2):
                    d = v(KV + 4 * t + 2 * e, 2)
                    kk = v(KF + 4 * (t + 3 - tap) + 2 * e, 2)
                    ss = v(S + 4 * tap + 2 * e, 2)
                    if tap == 0:
                        A.I(f'v_pk_mul_f32 {d}, {kk}, {ss}')
                    else:
                        A.I(f'v_pk_fma_f32 {d}, {kk}, {ss}, {d}')
        VF = 16
        VF = 174
        for t in range(8):
            for e in range(2):
                A.I(f'v_lshlrev_b32 v{VF + 4 * t + 2 * e}, 16, v{VR + 2 * t + e}')
                A.I(f'v_and_b32 v{VF + 4 * t + 2 * e + 1}, {s(sMASK)}, v{VR + 2 * t + e}')
        for t in range(8):
            for e in range(2):
                d = v(KV + 4 * t + 2 * e, 2)
                A.I(f'v_pk_mul_f32 {d}, {d}, {v(VF + 4 * t + 2 * e, 2)}')
        for c in range(4):
            for e in range(4):
                A.I(f'v_cvt_pk_bf16_f32 v{O + 8 * c + e}, v{KV + 4 * (7 - 2 * e) + c}, v{KV + 4 * (6 - 2 * e) + c}')
            A.I(f'ds_write_b128 v169, {v(O + 8 * c, 4)} offset:{32 * c}')
        for c in range(4):
            for e in range(4):
                sel = sSELHI if c & 1 else sSELLO
                A.I(f'v_perm_b32 v{O + 8 * c + 4 + e}, v{XR + 2 * (2 * e + 1) + (c >> 1)}, v{XR + 2 * (2 * e) + (c >> 1)}, {s(sel)}')
            A.I(f'ds_write_b128 v169, {v(O + 8 * c + 4, 4)} offset:{32 * c + 16}')
        A.wait_all(vm=False)
        RB = 130
        for i in range(8):
            A.I(f'ds_read_b128 {v(RB + 4 * i, 4)}, v172 offset:{1152 * i}')
        A.I(f's_mul_i32 {s(sT2)}, {s(sWAVE)}, {64 * TS}')
        A.I(f's_lshl_b32 {s(sT3)}, {s(sB)}, 7')
        A.I(f's_add_u32 {s(sT2)}, {s(sT2)}, {s(sT3)}')
        A.I(f's_add_u32 {s(sT2)}, {s(sT2)}, {T_OFF}')
        for i in range(8):
            if i == 4:
                A.I(f's_cmp_eq_u32 {s(sWAVE)}, 2')
                A.I('s_cbranch_scc1 L_p0_join')
            A.I(f'buffer_store_dwordx4 {v(RB + 4 * i, 4)}, v173, {srd(SRD_WS)}, {s(sT2)} offen sc1')
            A.I(f's_add_u32 {s(sT2)}, {s(sT2)}, {8 * TS}')

    def p0_stats(self):
        A = self.A
        FR, G_, S_, ONE = 16, 56, 60, 64
        A.I('v_and_b32 v8, 7, v1')
        A.I('v_mul_u32_u24 v8, 1280, v8')
        A.I('v_bfe_u32 v9, v1, 3, 1')
        A.I('v_lshlrev_b32 v9, 6, v9')
        A.I('v_and_b32 v10, 48, v1')
        A.I('v_add3_u32 v8, v8, v9, v10')
        for f in range(10):
            A.I(f'buffer_load_dwordx4 {v(FR + 4 * f, 4)}, v8, {srd(SRD_X)}, {s(sT1)} offen offset:{128 * f} nt')
        self.ssmk_loads()
        A.I(f's_getpc_b64 {s(sPC, 2)}')
        A.label('L_pc')
        A.I(f's_sub_u32 {s(sPC)}, {s(sPC)}, L_pc-{NAME}_kernel')
        A.I(f's_subb_u32 {s(sPC + 1)}, {s(sPC + 1)}, 0')
        A.I(f's_lshl_b32 {s(sT2)}, {s(sIDX)}, 11')
        A.I('v_lshlrev_b32 v9, 7, v1')
        A.I(f'v_add_u32 v9, {s(sT2)}, v9')
        A.I('v_min_u32 v9, CODE_PF_MAX, v9')
        A.I('s_mov_b64 exec, 0xffff')
        A.I(f'global_load_dword v11, v9, {s(sPC, 2)}')
        A.I('s_mov_b64 exec, -1')
        self.common_consts()
        L = A.newlabel('L_noinit')
        A.I('s_cmp_lg_u32 s2, 0')
        A.I(f's_cbranch_scc1 {L}')
        st = A.fork()
        A.I('v_lshlrev_b32 v9, 8, v1')
        for i in range(5):
            A.I(f's_mov_b32 {s(sT2)}, {CNT + i * 16384}')
            A.I(f'buffer_store_dword v3, v9, {srd(SRD_WS)}, {s(sT2)} offen sc1')
        A.hard_wait('vmcnt(0)')
        A.I('s_mov_b64 exec, 1')
        A.I(f'buffer_store_dword v6, v3, {srd(SRD_DBG)}, 0 offen sc1')
        A.I('s_mov_b64 exec, -1')
        st2 = A.fork()
        A.label(L)
        A.join([st, st2])
        for i in range(4):
            A.I(f'v_mov_b32 v{ONE + i}, 0x3f803f80')
        for f in range(10):
            fr = v(FR + 4 * f, 4)
            A.I(f'v_mfma_f32_16x16x32_bf16 {v(G_, 4)}, {fr}, {fr}, {v(G_, 4) if f else 0}')
            A.I(f'v_mfma_f32_16x16x32_bf16 {v(S_, 4)}, {v(ONE, 4)}, {fr}, {v(S_, 4) if f else 0}')
        A.I('v_and_b32 v9, 3, v1')
        A.I('v_and_b32 v10, 15, v1')
        A.I('v_lshrrev_b32 v12, 2, v10')
        A.I('v_lshl_add_u32 v12, v12, 4, v10')
        A.I('v_lshlrev_b32 v12, 2, v12')
        for i in range(1, 4):
            A.I(f'v_cmp_eq_u32 vcc, {i}, v9')
            A.I(f'v_cndmask_b32 v{G_}, v{G_}, v{G_ + i}, vcc')
        A.I(f'ds_bpermute_b32 v13, v12, v{G_}')
        A.I(f'v_add_f32_dpp v14, v{S_}, v{S_} row_ror:8 row_mask:0xf bank_mask:0xf')
        A.I('v_add_f32_dpp v13, v13, v13 row_ror:8 row_mask:0xf bank_mask:0xf')
        A.I('v_mul_f32 v14, 0x3acccccd, v14')
        A.I('v_mul_f32 v13, 0x3acccccd, v13')
        A.I('v_fma_f32 v13, -v14, v14, v13')
        A.I('v_max_f32 v13, 0, v13')
        A.I('v_add_f32 v13, 0x3727c5ac, v13')
        A.I('v_rsq_f32 v13, v13')
        A.I('v_cmp_gt_u32 vcc, 8, v10')
        A.I('v_mul_f32_e64 v14, -v14, v13')
        A.I('v_cndmask_b32 v13, v14, v13, vcc')
        A.I('v_lshlrev_b32 v9, 2, v1')
        A.I(f's_lshl_b32 {s(sT2)}, {s(sB)}, 6')
        A.I(f's_add_u32 {s(sT2)}, {s(sT2)}, {STATS}')
        A.I('s_mov_b64 exec, 0xffff')
        A.I(f'buffer_store_dword v13, v9, {srd(SRD_WS)}, {s(sT2)} offen sc1')
        A.I('s_mov_b64 exec, -1')

    def p0(self):
        A = self.A
        A.I(f's_cmp_eq_u32 {s(sWAVE)}, 3')
        A.I('s_cbranch_scc1 L_p0_stats')
        st = A.fork()
        self.p0_kv()
        A.I('s_branch L_p0_join')
        A.label('L_p0_stats')
        A.restore(st)
        self.p0_stats()
        A.label('L_p0_join')
        self.stamp('p0_stores')
        A.hard_wait('vmcnt(0) lgkmcnt(0)')
        A.st = State()
        self.stamp('p0_drained')
        self.barrier()

        def sig():
            self.poll_loop(3, '0', 1, srdb=SRD_DBG)
            self.signal_global(SY_A)
        self.only_wave(0, sig)

    def fmt13_load(self, raw, sU):
        A = self.A
        A.I(f's_mul_i32 {s(sT0)}, {s(sU)}, 2731')
        A.I(f's_lshr_b32 {s(sT0)}, {s(sT0)}, 16')
        A.I(f's_mul_i32 {s(sT1)}, {s(sT0)}, 24')
        A.I(f's_sub_u32 {s(sT1)}, {s(sU)}, {s(sT1)}')
        A.I(f's_mul_i32 {s(sT2)}, {s(sT0)}, {32 * 3072}')
        A.I(f's_lshl_b32 {s(sT3)}, {s(sT1)}, 7')
        A.I(f's_add_u32 {s(sT2)}, {s(sT2)}, {s(sT3)}')
        A.I(f's_mul_i32 {s(sU)}, {s(sT1)}, {8 * 20480}')
        A.I(f's_lshl_b32 {s(sT0)}, {s(sT0)}, 10')
        A.I(f's_add_u32 {s(sU)}, {s(sU)}, {s(sT0)}')
        A.I(f's_add_u32 {s(sU)}, {s(sU)}, {WF13}')
        for mat, mask in ((SRD_W1, 0x33333333), (SRD_W3, 0xcccccccc)):
            A.I(f's_mov_b32 exec_lo, {mask:#x}')
            A.I(f's_mov_b32 exec_hi, {mask:#x}')
            for j in range(8):
                row = (j & 3) + 16 * (j >> 2)
                A.I(f's_add_u32 {s(sT3)}, {s(sT2)}, {row * 3072}')
                if mat == SRD_W1:
                    A._push(Ins(f'buffer_load_dwordx4 {v(raw + 4 * j, 4)}, v8, {srd(mat)}, {s(sT3)} offen nt'))
                    A.st.vm.append((('f', raw, j), set()))
                else:
                    A.I(f'buffer_load_dwordx4 {v(raw + 4 * j, 4)}, v8, {srd(mat)}, {s(sT3)} offen nt')
        A.I('s_mov_b64 exec, -1')

    def fmt13_store(self, raw, out, sU):
        A = self.A
        for i in range(8):
            for jj in range(4):
                sel = sSELHI if i & 1 else sSELLO
                A.I(f'v_perm_b32 v{out + 4 * i + jj}, v{raw + 4 * (2 * jj + 1) + (i >> 1)}, v{raw + 4 * (2 * jj) + (i >> 1)}, {s(sel)}')
            A.I(f'buffer_store_dwordx4 {v(out + 4 * i, 4)}, v9, {srd(SRD_WS)}, {s(sU)} offen sc1')
            A.I(f's_add_u32 {s(sU)}, {s(sU)}, 20480')

    def formatter(self):
        A = self.A
        A.I(f's_mul_i32 {s(sU0)}, {s(sX)}, 12')
        A.I(f's_add_u32 {s(sU0)}, {s(sU0)}, {s(sIDX)}')
        A.I(f's_sub_u32 {s(sU0)}, {s(sU0)}, 20')
        A.I(f's_mul_i32 {s(sT0)}, {s(sWAVE)}, 96')
        A.I(f's_add_u32 {s(sU0)}, {s(sU0)}, {s(sT0)}')
        A.I(f's_mov_b32 {s(sU2)}, {s(sU0)}')
        A.I('v_lshrrev_b32 v8, 4, v1')
        A.I('v_mul_u32_u24 v8, 12288, v8')
        A.I('v_bfe_u32 v10, v1, 2, 2')
        A.I('v_lshlrev_b32 v10, 5, v10')
        A.I('v_and_b32 v11, 1, v1')
        A.I('v_lshlrev_b32 v11, 4, v11')
        A.I('v_add3_u32 v8, v8, v10, v11')
        A.I('v_lshlrev_b32 v9, 4, v1')
        self.fmt13_load(16, sU0)
        A.I(f's_cmp_lt_u32 {s(sU2)}, 96')
        A.I('s_cbranch_scc0 L_fmt_w2')
        st = A.fork()
        A.I(f's_add_u32 {s(sU1)}, {s(sU2)}, 384')
        self.fmt13_load(48, sU1)
        self.fmt13_store(16, 80, sU0)
        self.fmt13_store(48, 112, sU1)
        A.I('s_branch L_fmt_done')
        A.label('L_fmt_w2')
        A.restore(st)
        A.I(f's_cmp_lt_u32 {s(sU2)}, 336')
        A.I('s_cbranch_scc1 L_fmt_w2b')
        st = A.fork()
        self.fmt13_store(16, 80, sU0)
        A.I('s_branch L_fmt_done')
        A.label('L_fmt_w2b')
        A.restore(st)
        A.I(f's_sub_u32 {s(sU1)}, {s(sU2)}, 96')
        A.I(f's_mul_i32 {s(sT0)}, {s(sU1)}, 13108')
        A.I(f's_lshr_b32 {s(sT0)}, {s(sT0)}, 16')
        A.I(f's_mul_i32 {s(sT1)}, {s(sT0)}, 5')
        A.I(f's_sub_u32 {s(sT1)}, {s(sU1)}, {s(sT1)}')
        A.I(f's_lshr_b32 {s(sT2)}, {s(sT0)}, 1')
        A.I(f's_lshl_b32 {s(sT2)}, {s(sT2)}, 6')
        A.I(f's_and_b32 {s(sT3)}, {s(sT0)}, 1')
        A.I(f's_lshl_b32 {s(sT3)}, {s(sT3)}, 2')
        A.I(f's_add_u32 {s(sT2)}, {s(sT2)}, {s(sT3)}')
        A.I(f's_mul_i32 {s(sT2)}, {s(sT2)}, 1280')
        A.I(f's_lshl_b32 {s(sT3)}, {s(sT1)}, 8')
        A.I(f's_add_u32 {s(sT2)}, {s(sT2)}, {s(sT3)}')
        A.I(f's_mul_i32 {s(sU1)}, {s(sT1)}, {8 * 49152}')
        A.I(f's_lshl_b32 {s(sT0)}, {s(sT0)}, 10')
        A.I(f's_add_u32 {s(sU1)}, {s(sU1)}, {s(sT0)}')
        A.I(f's_add_u32 {s(sU1)}, {s(sU1)}, {WF2}')
        A.I('v_lshrrev_b32 v10, 4, v1')
        A.I('v_mul_u32_u24 v11, 1280, v10')
        A.I('v_and_b32 v12, 15, v1')
        A.I('v_lshl_add_u32 v11, v12, 4, v11')
        A.I(f's_lshl_b32 {s(sU3)}, {s(sWAVE)}, 13')
        A.I(f's_mov_b32 m0, {s(sU3)}')
        last = None
        for j in range(8):
            last = A.I(f'buffer_load_dwordx4 v11, {srd(SRD_W2)}, {s(sT2)} offen nt lds')
            if j < 7:
                A.I(f's_add_u32 {s(sT2)}, {s(sT2)}, {8 * 1280}')
                A.I('s_add_u32 m0, m0, 1024')
        A.I('v_bfe_u32 v12, v1, 2, 2')
        A.I('v_lshlrev_b32 v12, 10, v12')
        A.I('v_lshl_add_u32 v12, v10, 8, v12')
        A.I('v_and_b32 v13, 3, v1')
        A.I('v_lshlrev_b32 v13, 3, v13')
        A.I(f'v_add3_u32 v12, v12, v13, {s(sU3)}')
        self.fmt13_store(16, 80, sU0)
        A.wait_vm(last)
        for i in range(8):
            A.I(f'ds_read_b64_tr_b16 {v(112 + 4 * i, 2)}, v12 offset:{32 * i}')
            A.I(f'ds_read_b64_tr_b16 {v(114 + 4 * i, 2)}, v12 offset:{4096 + 32 * i}')
        for i in range(8):
            A.I(f'buffer_store_dwordx4 {v(112 + 4 * i, 4)}, v9, {srd(SRD_WS)}, {s(sU1)} offen sc1')
            A.I(f's_add_u32 {s(sU1)}, {s(sU1)}, 49152')
        A.label('L_fmt_done')
        self.stamp('fmt_stores')
        A.hard_wait('vmcnt(0) lgkmcnt(0)')
        A.st = State()
        self.barrier()
        self.only_wave(0, lambda: self.signal_global(SY_W))
        self.stamp('fmt_done')

    ALO = 256 + 112

    def conv_prep(self):
        A = self.A
        XS = self.XS
        kt = [(KTBL >> (4 * sh)) & 15 for sh in range(8)]
        A.I(f's_mul_i32 {s(sT3)}, {s(sWAVE)}, {THALF}')
        A.I('v_lshlrev_b32 v8, 4, v1')
        A.I(f'v_add_u32 v8, {s(sT3)}, v8')
        A.I(f'v_add_u32 v9, {TL_ALL}, v8')
        for i in range(4):
            X = XS + 8 * i
            T = 32 + 24 * (i & 1)
            Y, O0, O1 = T, T + 6, T + 12
            base = 'v8' if i < 2 else 'v9'

            def wr(sh, reg):
                off = kt[sh] * TPITCH + (64 * (i & 1) + (1 if sh else 2)) * 16
                A.I(f'ds_write_b128 {base}, {v(reg, 4)} offset:{off}')
            wr(0, X + 4)
            wr(4, X + 2)
            for e in range(6):
                A.I(f'v_mov_b32 v{Y + e}, v{X + 1 + e}')
            wr(2, Y)
            wr(6, Y + 2)
            for e in range(6):
                A.I(f'v_alignbit_b32 v{O0 + e}, v{X + e + 1}, v{X + e}, 16')
            wr(1, O0)
            wr(5, O0 + 2)
            for e in range(6):
                A.I(f'v_alignbit_b32 v{O1 + e}, v{X + e + 2}, v{X + e + 1}, 16')
            wr(3, O1)
            wr(7, O1 + 2)
        A.I('v_lshlrev_b32 v10, 2, v1')
        A.I(f's_mov_b32 {s(sT2)}, {KTBL:#x}')
        A.I(f'v_bfe_u32 v10, {s(sT2)}, v10, 4')
        A.I(f'v_mul_u32_u24 v10, {TPITCH}, v10')
        A.I('v_cmp_eq_u32 vcc, 0, v1')
        A.I('v_cndmask_b32_e64 v11, 0, 16, vcc')
        A.I(f'v_add3_u32 v10, v10, v11, {s(sT3)}')
        A.I(f'v_add_u32 v11, {TL_ALL}, v10')
        for e in range(4):
            A.I(f'v_mov_b32 v{28 + e}, 0')
        A.I('s_mov_b64 exec, 0xff')
        A.I('ds_write_b128 v10, v[28:31]')
        A.I('ds_read_b128 v[24:27], v10 offset:2048')
        A.I('ds_write_b128 v11, v[24:27]')
        A.I('s_mov_b64 exec, -1')
        A.I('v_lshrrev_b32 v12, 4, v1')
        A.I('v_and_b32 v13, 15, v1')
        A.I('v_lshl_add_u32 v14, v12, 3, v13')
        A.I('v_add_u32 v14, 1, v14')
        A.I('v_and_b32 v15, 7, v14')
        A.I('v_lshlrev_b32 v15, 2, v15')
        A.I(f'v_bfe_u32 v15, {s(sT2)}, v15, 4')
        A.I(f'v_mul_u32_u24 v15, {TPITCH}, v15')
        A.I('v_lshrrev_b32 v14, 3, v14')
        A.I('v_lshlrev_b32 v14, 4, v14')
        A.I(f'v_add3_u32 v8, v14, v15, {s(sT3)}')
        A.I(f'v_add_u32 v9, {TL_ALL}, v8')
        for p in range(32):
            A.I(f'ds_read_b128 {R(self.ALO + 4 * p, 4)}, v8 offset:{64 * p}')
        A.I(f's_mul_i32 {s(sT3)}, {s(sWAVE)}, {2 * RP}')
        A.I('v_lshlrev_b32 v10, 1, v13')
        A.I('v_sub_u32 v10, v10, v12')
        A.I('v_add_u32 v10, 5, v10')
        A.I('v_lshlrev_b32 v10, 4, v10')
        A.I(f'v_add_u32 v10, {s(sT3)}, v10')
        A.I('v_lshlrev_b32 v11, 5, v13')
        A.I('v_lshl_add_u32 v11, v12, 3, v11')
        A.I(f's_add_u32 {s(sT2)}, {s(sT3)}, {RP + 512}')
        A.I(f'v_add_u32 v11, {s(sT2)}, v11')
        A.I('v_lshrrev_b32 v14, 1, v12')
        A.I('v_lshl_add_u32 v14, v13, 1, v14')
        A.I('v_lshlrev_b32 v14, 6, v14')
        A.I('v_and_b32 v15, 1, v12')
        A.I('v_lshlrev_b32 v16, 4, v15')
        A.I(f'v_add_u32 v14, {STL}, v14')
        A.I('v_add_u32 v14, v14, v16')
        A.I('v_lshrrev_b32 v16, 2, v13')
        A.I('v_lshl_add_u32 v15, v15, 2, v16')
        A.I(f'v_mul_u32_u24 v15, {HS}, v15')
        A.I(f's_bfe_u32 {s(sT2)}, {s(sD)}, 0x20001')
        A.I('v_and_b32 v16, 3, v13')
        A.I(f'v_xor_b32 v16, {s(sT2)}, v16')
        A.I('v_lshlrev_b32 v16, 5, v16')
        A.I('v_lshrrev_b32 v17, 1, v12')
        A.I('v_lshlrev_b32 v17, 4, v17')
        A.I('v_add3_u32 v15, v15, v16, v17')
        A.I(f's_and_b32 {s(sT2)}, {s(sD)}, 1')
        A.I(f's_lshl_b32 {s(sT2)}, {s(sT2)}, 4')
        A.I(f's_lshr_b32 {s(sDV)}, {s(sDV)}, {s(sT2)}')
        A.I(f's_and_b32 {s(sDV)}, {s(sDV)}, 0xffff')
        A.I('v_lshl_add_u32 v16, v12, 3, v13')
        A.I('v_sub_u32 v16, 15, v16')
        A.I('v_and_b32 v17, 1, v16')
        A.I('v_lshlrev_b32 v17, 4, v17')
        A.I(f'v_lshlrev_b32_e64 v17, v17, {s(sDV)}')
        A.I('v_lshrrev_b32 v16, 1, v16')
        for e in range(4):
            A.I(f'v_cmp_eq_u32 vcc, {e}, v16')
            A.I(f'v_cndmask_b32 v{28 + e}, 0, v17, vcc')
        A.I('v_lshlrev_b32 v16, 4, v0')
        A.I('v_and_b32 v17, 7, v0')
        A.I(f'v_mul_u32_u24 v17, {RP}, v17')
        A.I('v_lshrrev_b32 v18, 3, v0')
        A.I('v_lshl_add_u32 v17, v18, 4, v17')
        A.I('v_lshlrev_b32 v19, 4, v1')
        for e in range(4):
            A.I(f'v_mov_b32 v{24 + e}, 0')
        A.wait_all()

    def conv(self):
        A = self.A
        ACC, VB, AH, STG, XQ, TMP, PK = 32, 64, 128, 160, 192, 224, 244
        self.only_wave(0, lambda: self.poll_global(SY_A, 32))
        self.barrier()
        self.stamp('A_seen')
        A.I(f's_lshr_b32 {s(sT0)}, {s(sD)}, 2')
        A.I(f's_mul_i32 {s(sT0)}, {s(sT0)}, {TS}')
        A.I(f's_add_u32 {s(sT0)}, {s(sT0)}, {T_OFF}')
        for i in range(4):
            A.I(f'buffer_load_dwordx4 {v(STG + 4 * i, 4)}, v16, {srd(SRD_WS)}, {s(sT0)} offen sc1')
            A.I(f's_add_u32 {s(sT0)}, {s(sT0)}, 4096')
        A.I(f's_lshl_b32 {s(sT1)}, {s(sWAVE)}, 12')
        A.I(f's_add_u32 m0, {s(sT1)}, {STL}')
        A.I(f's_add_u32 {s(sT1)}, {s(sT1)}, {STATS}')
        for i in range(4):
            tst = A.I(f'buffer_load_dwordx4 v19, {srd(SRD_WS)}, {s(sT1)} offen offset:{1024 * i} sc1 lds')
        for i in range(4, 8):
            A.I(f'buffer_load_dwordx4 {v(STG + 4 * i, 4)}, v16, {srd(SRD_WS)}, {s(sT0)} offen sc1')
            A.I(f's_add_u32 {s(sT0)}, {s(sT0)}, 4096')
        A.I('ds_write_b128 v17, v[24:27]')
        for i in range(4):
            A.I(f'ds_write_b128 v17, {v(STG + 4 * i, 4)} offset:{512 + 512 * i}')
        A.wait_vm(tst)
        A.wait_all(vm=False)
        self.barrier()
        self.stamp('T_staged')

        def vread(buf, tau, mu):
            return f'ds_read_b128 {v(VB + 32 * buf + 4 * tau, 4)}, v10 offset:{(32 * tau + 28 - 4 * mu) * 16}'

        def aread(buf, c, mu):
            return f'ds_read_b128 {v(AH + 16 * buf + 4 * (c - 4), 4)}, v9 offset:{64 * (8 * c + mu - 32)}'

        def qprep(t):
            tt = t & 3
            x0 = TMP + 10 * (t & 1)
            q = XQ + 8 * tt
            L = [f'ds_read_b64 {v(x0, 2)}, v11 offset:{512 * t}',
                 f'ds_read_b128 {v(x0 + 2, 4)}, v14 offset:{2048 * t}',
                 f'ds_read_b128 {v(x0 + 6, 4)}, v14 offset:{2048 * t + 32}']
            M = [f'v_lshlrev_b32 v{q}, 16, v{x0}', f'v_and_b32 v{q + 1}, {s(sMASK)}, v{x0}',
                 f'v_lshlrev_b32 v{q + 2}, 16, v{x0 + 1}', f'v_and_b32 v{q + 3}, {s(sMASK)}, v{x0 + 1}']
            M += [f'v_fma_f32 v{q + 4 + i}, v{q + i}, v{x0 + 2 + i}, v{x0 + 6 + i}' for i in range(4)]
            return L, M

        def areg(buf, c, mu):
            return R(self.ALO + 4 * (8 * c + mu), 4) if c < 4 else v(AH + 16 * buf + 4 * (c - 4), 4)

        def half(hf, extra):
            ts = range(4 * hf, 4 * hf + 4)
            ntau = 4 * hf + 4
            for tau in range(ntau):
                A.I(vread(0, tau, 0))
            if hf:
                for c in range(4, 8):
                    A.I(aread(0, c, 0))
            for mu in range(8):
                buf = mu & 1
                main = []
                if mu == 0:
                    for t in ts:
                        main.append(f'v_mfma_f32_16x16x32_bf16 {v(ACC + 4 * t, 4)}, v[28:31], {v(VB + 4 * t, 4)}, 0')
                for c in range(ntau):
                    for t in ts:
                        if c <= t:
                            main.append(f'v_mfma_f32_16x16x32_bf16 {v(ACC + 4 * t, 4)}, {areg(buf, c, mu)}, {v(VB + 32 * buf + 4 * (t - c), 4)}, {v(ACC + 4 * t, 4)}')
                fill = []
                if mu < 7:
                    order = list(range(ntau - 1, -1, -1))
                    fill += [vread(buf ^ 1, tau, mu + 1) for tau in order]
                    if hf:
                        fill += [aread(buf ^ 1, c, mu + 1) for c in range(4, 8)]
                fill += extra.get(mu, [])
                self.interleave(main, fill)

        def epilogue(hf):
            A.I(f's_lshl_b32 {s(sT0)}, {s(sD)}, 7')
            A.I(f's_add_u32 {s(sT0)}, {s(sT0)}, {H_OFF + 16 * hf * HS}')
            for tp in range(2):
                pk = PK + 4 * tp
                for dt in range(2):
                    t = 4 * hf + 2 * tp + dt
                    q = XQ + 8 * (t & 3)
                    for i in range(4):
                        A.I(f'v_fma_f32 v{q + i}, v{q + 4 + i}, v{ACC + 4 * t + i}, v{q + i}')
                    A.I(f'v_cvt_pk_bf16_f32 v{pk + 2 * dt}, v{q}, v{q + 1}')
                    A.I(f'v_cvt_pk_bf16_f32 v{pk + 2 * dt + 1}, v{q + 2}, v{q + 3}')
                A.I(f'v_permlane16_swap_b32 v{pk}, v{pk + 2}')
                A.I(f'v_permlane16_swap_b32 v{pk + 1}, v{pk + 3}')
                A.I(f'buffer_store_dwordx4 {v(pk, 4)}, v15, {srd(SRD_WS)}, {s(sT0)} offen sc1')
                if tp == 0:
                    A.I(f's_add_u32 {s(sT0)}, {s(sT0)}, {8 * HS}')

        def qextra(hf):
            ex = {}
            for j in range(4):
                L, M = qprep(4 * hf + j)
                ex.setdefault(j + 1, []).extend(L)
                ex.setdefault(j + 2, []).extend(M)
            return ex
        ex = qextra(0)
        ex.setdefault(6, []).extend([f'ds_write_b128 v17, {v(STG + 4 * i, 4)} offset:{512 + 512 * i}' for i in range(4, 8)])
        half(0, ex)
        epilogue(0)
        self.stamp('conv_h1')
        A.wait_all()
        self.barrier()
        self.only_wave(0, lambda: self.signal_global(SY_B1))
        half(1, qextra(1))
        epilogue(1)
        self.stamp('conv_h2')
        A.wait_all()
        self.barrier()
        self.only_wave(0, lambda: self.signal_global(SY_B2))

    ACC1, GR, SM, CS, ONE, HF, RES = 32, 80, 84, 88, 100, 104, 136

    def w13(self, kap, q):
        return 256 + 12 * kap + 4 * q

    def g1_setup(self):
        A = self.A
        self.only_wave(0, lambda: self.poll_global(SY_W, 12))
        self.barrier()
        self.stamp('W_seen')
        A.I('v_lshlrev_b32 v2, 4, v1')
        A.I(f's_lshl_b32 {s(sT0)}, {s(sC)}, 2')
        A.I(f's_add_u32 {s(sT0)}, {s(sT0)}, {s(sWAVE)}')
        A.I(f's_mul_i32 {s(sU0)}, {s(sT0)}, {3 * 20480}')
        A.I(f's_add_u32 {s(sU0)}, {s(sU0)}, {WF13}')
        for k4 in range(5):
            for q in range(3):
                A.I(f's_add_u32 {s(sT0 + q)}, {s(sU0)}, {q * 20480 + k4 * 4096}')
            for kk in range(4):
                for q in range(3):
                    A.I(f'buffer_load_dwordx4 {R(self.w13(4 * k4 + kk, q), 4)}, v2, {srd(SRD_WS)}, {s(sT0 + q)} offen offset:{1024 * kk} sc1')
        A.I('v_lshrrev_b32 v12, 2, v1')
        A.I('v_lshlrev_b32 v13, 7, v12')
        A.I('v_and_b32 v14, 3, v1')
        A.I('v_lshl_add_u32 v13, v14, 3, v13')
        A.I('v_bfe_u32 v14, v1, 3, 2')
        A.I(f'v_xor_b32 v15, {s(sWAVE)}, v14')
        for u in range(4):
            A.I(f'v_xor_b32 v16, {u}, v15')
            A.I(f'v_lshl_add_u32 v{8 + u}, v16, 5, v13')
        A.I(f's_and_b32 {s(sT0)}, {s(sWAVE)}, 1')
        A.I(f's_lshl_b32 {s(sT1)}, {s(sCH)}, 1')
        A.I(f's_add_u32 {s(sT0)}, {s(sT0)}, {s(sT1)}')
        A.I(f'v_xor_b32 v16, {s(sT0)}, v14')
        A.I('v_lshl_add_u32 v17, v16, 5, v13')
        A.I(f's_mul_i32 {s(sT0)}, {s(sC2)}, {80 * 128}')
        A.I(f's_lshr_b32 {s(sT1)}, {s(sWAVE)}, 1')
        A.I(f's_lshl_b32 {s(sT1)}, {s(sT1)}, 11')
        A.I(f's_add_u32 {s(sT0)}, {s(sT0)}, {s(sT1)}')
        A.I(f'v_add_u32 v17, {s(sT0)}, v17')
        A.I(f's_cmp_eq_u32 {s(sC2)}, 0')
        A.I(f's_cselect_b32 {s(sU1)}, {96 * 128}, 0')
        A.I('v_and_b32 v16, 15, v1')
        A.I('v_lshlrev_b32 v16, 4, v16')
        A.I(f'v_add_u32 v16, {s(sU1)}, v16')
        for u in range(4):
            A.I(f's_xor_b32 {s(sT0)}, {s(sWAVE)}, {u}')
            A.I(f's_lshl_b32 {s(sT0)}, {s(sT0)}, 8')
            A.I(f'v_add_u32 v{19 + u}, {s(sT0)}, v16')
        A.I('v_lshrrev_b32 v16, 4, v1')
        A.I(f'v_xor_b32 v16, {s(sWAVE)}, v16')
        A.I(f'v_mul_u32_u24 v16, {HHS}, v16')
        A.I('v_and_b32 v23, 15, v1')
        A.I('v_lshl_add_u32 v23, v23, 4, v16')
        A.I('v_and_b32 v16, 3, v1')
        for i in range(1, 4):
            A.I(f'v_cmp_eq_u32 {s(30 + 2 * i, 2)}, {i}, v16')
        for i in range(4):
            A.I(f'v_mov_b32 v{self.ONE + i}, 0x3f803f80')
        for kap in range(20):
            for q in range(3):
                cs = v(self.CS + 4 * q, 4)
                A.I(f'v_mfma_f32_16x16x32_bf16 {cs}, {R(self.w13(kap, q), 4)}, {v(self.ONE, 4)}, {cs if kap else 0}')
        self.stamp('W13_loaded')

    def g1_half(self, hf):
        A = self.A
        ACC, GR, SM, CS, ONE, HF = self.ACC1, self.GR, self.SM, self.CS, self.ONE, self.HF
        self.only_wave(0, lambda: self.poll_global(SY_B1 if hf == 0 else SY_B2, 20))
        self.barrier()
        self.stamp(f'B{hf + 1}_seen')
        A.I(f's_mul_i32 {s(sT0)}, {s(sR)}, {HS}')
        A.I(f's_lshl_b32 {s(sT1)}, {s(sWAVE)}, 12')
        A.I(f's_add_u32 {s(sT0)}, {s(sT0)}, {s(sT1)}')
        A.I(f's_add_u32 {s(sT0)}, {s(sT0)}, {H_OFF + 16 * hf * HS}')
        A.I(f's_add_u32 m0, {s(sT1)}, {HB[hf]}')
        tags = []
        for j in range(5):
            for i in range(4):
                t = A.I(f'buffer_load_dwordx4 v2, {srd(SRD_WS)}, {s(sT0)} offen offset:{1024 * i} sc1 lds')
            tags.append(t)
            if j < 4:
                A.I(f's_add_u32 {s(sT0)}, {s(sT0)}, 16384')
                A.I('s_add_u32 m0, m0, 16384')
        cur = [0]

        def reads(kap):
            buf = kap & 1
            L = []
            for u in range(4):
                for hh in range(2):
                    L.append(f'ds_read_b64_tr_b16 {v(HF + 16 * buf + 4 * u + 2 * hh, 2)}, v{8 + u} offset:{(kap % 10) * 4096 + 2048 * hh}')
            return L

        def chunk_ready(j):
            def f():
                A.wait_vm(tags[j])
                self.barrier()
            return f
        chunk_ready(0)()
        self.stamp(f'h{hf + 1}_first')
        for x in reads(0):
            A.I(x)
        for kap in range(20):
            buf = kap & 1
            fr = lambda u: v(HF + 16 * buf + 4 * u, 4)
            main = [f'v_mfma_f32_16x16x32_bf16 {v(GR, 4)}, {fr(0)}, {fr(0)}, {v(GR, 4) if kap else 0}',
                    f'v_mfma_f32_16x16x32_bf16 {v(SM, 4)}, {v(ONE, 4)}, {fr(0)}, {v(SM, 4) if kap else 0}']
            for u in range(4):
                for q in range(3):
                    ac = v(ACC + 4 * (3 * u + q), 4)
                    main.append(f'v_mfma_f32_16x16x32_bf16 {ac}, {R(self.w13(kap, q), 4)}, {fr(u)}, {ac if kap else 0}')
            fill = []
            if kap < 19:
                if (kap + 1) % 4 == 0:
                    fill.append(chunk_ready((kap + 1) // 4))
                if kap + 1 == 10:
                    fill += [f'v_add_u32 v{8 + u}, 40960, v{8 + u}' for u in range(4)]
                fill += reads(kap + 1)
                if kap == 16:
                    fill += [f'ds_read_b64_tr_b16 {v(self.RES + 6 * hf + 2 * n, 2)}, v17 offset:{4096 * n}' for n in range(3)]
                self.interleave(main, fill)
            else:
                T = 148
                fill = [f'v_add_u32 v{8 + u}, 40960, v{8 + u}' for u in range(4)]
                fill += ['v_add_u32 v17, 81920, v17']
                fill += [f'v_cndmask_b32 v{T}, v{GR}, v{GR + 1}, {s(32, 2)}',
                         f'v_cndmask_b32 v{T}, v{T}, v{GR + 2}, {s(34, 2)}',
                         f'v_cndmask_b32 v{T}, v{T}, v{GR + 3}, {s(36, 2)}',
                         f'v_mul_f32 v{T + 4}, 0xbacccccd, v{SM}',
                         f'v_mul_f32 v{T}, 0x3acccccd, v{T}',
                         f'v_fma_f32 v{T}, -v{T + 4}, v{T + 4}, v{T}',
                         f'v_max_f32 v{T}, 0, v{T}',
                         f'v_add_f32 v{T + 6}, 0x3727c5ac, v{T}',
                         f'v_rsq_f32 v{T + 5}, v{T + 6}',
                         f'v_mov_b32 v{T + 7}, 0',
                         f'v_mul_f32 v{T + 5}, 0xbfb8aa3b, v{T + 5}']
                self.interleave(main, fill, start=2)
                A.I('s_mov_b32 exec_lo, 0x00f0000f')
                A.I('s_mov_b32 exec_hi, 0xf0000f00')
                A.I(f'ds_write_b128 v19, {v(T + 4, 4)}')
                A.I('s_mov_b64 exec, -1')
        A.wait_all(vm=False)
        self.barrier()
        self.stamp(f'g1h{hf + 1}_mfma')
        ST = 156
        for u in range(4):
            A.I(f'ds_read_b128 {v(ST + 4 * u, 4)}, v{19 + u}')
        for u in range(4):
            A.I(f'v_add_u32 v{19 + u}, 81920, v{19 + u}')
        A.I(f's_mul_i32 {s(sT0)}, {s(sR)}, {4 * HHS}')
        A.I(f's_lshl_b32 {s(sT1)}, {s(sC)}, 2')
        A.I(f's_add_u32 {s(sT1)}, {s(sT1)}, {s(sWAVE)}')
        A.I(f's_mul_i32 {s(sT1)}, {s(sT1)}, 768')
        A.I(f's_add_u32 {s(sT0)}, {s(sT0)}, {s(sT1)}')
        A.I(f's_add_u32 {s(sT0)}, {s(sT0)}, {HH + 64 * hf * HHS}')
        E, PK = 172, 188
        for q in range(3):
            cg, cu = v(CS + 4 * q, 2), v(CS + 4 * q + 2, 2)
            for u in range(4):
                ac = ACC + 4 * (3 * u + q)
                st = ST + 4 * u
                A.I(f'v_pk_fma_f32 {v(ac, 2)}, {cg}, {v(st, 2)}, {v(ac, 2)} op_sel_hi:[1,0,1]')
                A.I(f'v_pk_mul_f32 {v(E + 2 * u, 2)}, {v(ac, 2)}, {v(st, 2)} op_sel:[0,1] op_sel_hi:[1,1]')
                A.I(f'v_pk_fma_f32 {v(ac + 2, 2)}, {cu}, {v(st, 2)}, {v(ac + 2, 2)} op_sel_hi:[1,0,1]')
            for u in range(4):
                A.I(f'v_exp_f32 v{E + 2 * u}, v{E + 2 * u}')
                A.I(f'v_exp_f32 v{E + 2 * u + 1}, v{E + 2 * u + 1}')
            for u in range(4):
                ac = ACC + 4 * (3 * u + q)
                st = ST + 4 * u
                A.I(f'v_pk_mul_f32 {v(ac, 2)}, {v(ac, 2)}, {v(ac + 2, 2)}')
                A.I(f'v_pk_fma_f32 {v(E + 2 * u, 2)}, {v(E + 2 * u, 2)}, {v(st + 2, 2)}, {v(st + 2, 2)} op_sel_hi:[1,0,0]')
            for u in range(4):
                A.I(f'v_rcp_f32 v{E + 2 * u}, v{E + 2 * u}')
                A.I(f'v_rcp_f32 v{E + 2 * u + 1}, v{E + 2 * u + 1}')
            pk = PK + 4 * q
            for u in range(4):
                ac = ACC + 4 * (3 * u + q)
                A.I(f'v_pk_mul_f32 {v(ac, 2)}, {v(ac, 2)}, {v(E + 2 * u, 2)}')
            for u in range(4):
                ac = ACC + 4 * (3 * u + q)
                A.I(f'v_cvt_pk_bf16_f32 v{pk + u}, v{ac}, v{ac + 1}')
            A.I(f'v_permlane32_swap_b32 v{pk}, v{pk + 2}')
            A.I(f'v_permlane32_swap_b32 v{pk + 1}, v{pk + 3}')
            A.I(f'v_permlane16_swap_b32 v{pk}, v{pk + 1}')
            A.I(f'v_permlane16_swap_b32 v{pk + 2}, v{pk + 3}')
            A.I(f'buffer_store_dwordx4 {v(pk, 4)}, v23, {srd(SRD_WS)}, {s(sT0)} offen offset:{256 * q} sc1')
        self.stamp(f'g1h{hf + 1}_epi')
        A.wait_all()
        self.barrier()
        self.only_wave(0, lambda: self.signal_c(hf))

    def w2(self, kk, t5):
        return 256 + 20 * kk + 4 * t5

    def g2_setup(self):
        A = self.A
        A.I(f's_mul_i32 {s(sU0)}, {s(sC2)}, {5 * 49152}')
        A.I(f's_mul_i32 {s(sT0)}, {s(sWAVE)}, 12288')
        A.I(f's_add_u32 {s(sU0)}, {s(sU0)}, {s(sT0)}')
        A.I(f's_add_u32 {s(sU0)}, {s(sU0)}, {WF2}')
        for k4 in range(3):
            for t5 in range(5):
                A.I(f's_add_u32 {s(38 + t5)}, {s(sU0)}, {t5 * 49152 + k4 * 4096}')
            for kk in range(4):
                for t5 in range(5):
                    A.I(f'buffer_load_dwordx4 {R(self.w2(4 * k4 + kk, t5), 4)}, v2, {srd(SRD_WS)}, {s(38 + t5)} offen offset:{1024 * kk} sc1')
        A.I(f's_mul_i32 {s(sT0)}, {s(sWAVE)}, 10240')
        A.I(f'v_add_u32 v8, {s(sT0)}, v2')
        A.I(f's_lshl_b32 {s(sT0)}, {s(sWAVE)}, 10')
        A.I(f'v_add_u32 v9, {s(sT0)}, v2')
        A.I('v_and_b32 v10, 15, v1')
        A.I('v_mul_u32_u24 v10, 1280, v10')
        A.I('v_lshrrev_b32 v11, 4, v1')
        A.I('v_lshl_add_u32 v10, v11, 3, v10')

    def g2_half(self, hf):
        A = self.A
        ACC, HR = 32, 156
        self.only_wave(0, lambda: self.poll_c(hf))
        self.barrier()
        self.stamp(f'C{hf + 1}_seen')
        A.I(f's_lshl_b32 {s(sT0)}, {s(sR)}, 1')
        A.I(f's_add_u32 {s(sT0)}, {s(sT0)}, {s(sCH)}')
        A.I(f's_mul_i32 {s(sT1)}, {s(sT0)}, {2 * HHS}')
        A.I(f's_mul_i32 {s(sT2)}, {s(sWAVE)}, 12288')
        A.I(f's_add_u32 {s(sT1)}, {s(sT1)}, {s(sT2)}')
        A.I(f's_add_u32 {s(sT1)}, {s(sT1)}, {HH + 64 * hf * HHS}')
        for k4 in range(3):
            A.I(f's_add_u32 {s(sT2)}, {s(sT1)}, {4096 * k4}')
            A.I(f's_add_u32 {s(sT3)}, {s(sT1)}, {4096 * k4 + HHS}')
            for kk in range(4):
                for m2 in range(2):
                    A.I(f'buffer_load_dwordx4 {v(HR + 8 * (4 * k4 + kk) + 4 * m2, 4)}, v2, {srd(SRD_WS)}, {s(sT2 + m2)} offen offset:{1024 * kk} sc1')
        A.I(f's_lshl_b32 {s(sT0)}, {s(sT0)}, 1')
        A.I(f's_and_b32 {s(sT1)}, {s(sWAVE)}, 1')
        A.I(f's_add_u32 {s(sT0)}, {s(sT0)}, {s(sT1)}')
        A.I(f's_mul_i32 {s(sT0)}, {s(sT0)}, {16 * 1280}')
        A.I(f's_mul_i32 {s(sT1)}, {s(sC2)}, 160')
        A.I(f's_add_u32 {s(sT0)}, {s(sT0)}, {s(sT1)}')
        A.I(f's_lshr_b32 {s(sT1)}, {s(sWAVE)}, 1')
        A.I(f's_lshl_b32 {s(sT1)}, {s(sT1)}, 5')
        A.I(f's_add_u32 {s(sT0)}, {s(sT0)}, {s(sT1)}')
        A.I(f's_add_u32 {s(sU1)}, {s(sT0)}, {1024 * hf * 1280}')
        for kk in range(12):
            for m2 in range(2):
                for t5 in range(5):
                    ac = v(ACC + 4 * (2 * t5 + m2), 4)
                    A.I(f'v_mfma_f32_16x16x32_bf16 {ac}, {R(self.w2(kk, t5), 4)}, {v(HR + 8 * kk + 4 * m2, 4)}, {ac if kk else 0}')
        self.stamp(f'g2h{hf + 1}_mfma')
        base = 40960 * hf
        if hf:
            A.I('v_add_u32 v8, 40960, v8')
            A.I('v_add_u32 v9, 40960, v9')
        for e in (0, 2, 4, 6, 8, 1, 3, 5, 7, 9):
            A.I(f'ds_write_b128 v8, {v(ACC + 4 * e, 4)} offset:{1024 * e}')
        A.wait_all(vm=False)
        self.barrier()
        P = 72
        for n in range(3):
            for w in range(4):
                A.I(f'ds_read_b128 {v(P + 16 * n + 4 * w, 4)}, v9 offset:{10240 * w + 4096 * n}')
        Lskip = A.newlabel('L_g2skip')
        for n in range(3):
            if n == 2:
                A.I(f's_cmp_ge_u32 {s(sWAVE)}, 2')
                A.I(f's_cbranch_scc1 {Lskip}')
                st = A.fork()
            p = P + 16 * n
            rs = self.RES + 6 * hf + 2 * n
            T = 120
            A.I(f'v_lshlrev_b32 v{T}, 16, v{rs}')
            A.I(f'v_and_b32 v{T + 1}, {s(sMASK)}, v{rs}')
            A.I(f'v_lshlrev_b32 v{T + 2}, 16, v{rs + 1}')
            A.I(f'v_and_b32 v{T + 3}, {s(sMASK)}, v{rs + 1}')
            for h in range(2):
                A.I(f'v_pk_add_f32 {v(p + 2 * h, 2)}, {v(p + 2 * h, 2)}, {v(p + 4 + 2 * h, 2)}')
                A.I(f'v_pk_add_f32 {v(p + 8 + 2 * h, 2)}, {v(p + 8 + 2 * h, 2)}, {v(p + 12 + 2 * h, 2)}')
            for h in range(2):
                A.I(f'v_pk_add_f32 {v(p + 2 * h, 2)}, {v(p + 2 * h, 2)}, {v(p + 8 + 2 * h, 2)}')
            for h in range(2):
                A.I(f'v_pk_add_f32 {v(p + 2 * h, 2)}, {v(p + 2 * h, 2)}, {v(T + 2 * h, 2)}')
            A.I(f'v_cvt_pk_bf16_f32 v{p + 4}, v{p}, v{p + 1}')
            A.I(f'v_cvt_pk_bf16_f32 v{p + 5}, v{p + 2}, v{p + 3}')
            A.I(f'buffer_store_dwordx2 {v(p + 4, 2)}, v10, {srd(SRD_OUT)}, {s(sU1)} offen offset:{64 * n}')
        st2 = A.fork()
        A.label(Lskip)
        A.join([st, st2])
        self.stamp(f'g2h{hf + 1}_done')

    def build(self):
        A = self.A
        self.prologue()
        self.p0()
        if self.stop == 0:
            self.end()
            return self.finish()
        A.I(f's_cmp_lt_u32 {s(sIDX)}, 20')
        A.I('s_cbranch_scc1 L_conv')
        st = A.fork()
        self.formatter()
        st1 = A.fork()
        A.I('s_branch L_gemm')
        A.label('L_conv')
        A.restore(st)
        self.conv_prep()
        self.stamp('prep_done')
        self.conv()
        st2 = A.fork()
        A.label('L_gemm')
        A.join([st1, st2])
        if self.stop == 1:
            self.end()
            return self.finish()
        self.g1_setup()
        self.g1_half(0)
        self.g1_half(1)
        if self.stop == 2:
            self.end()
            return self.finish()
        self.g2_setup()
        self.g2_half(0)
        self.g2_half(1)
        self.flush_stamps()
        return self.finish()

    def finish(self):
        body = self.A.text()
        hdr = open('cdna_kernels/' + NAME + '.s.ref').read().split('; Override launch')[0]
        out = hdr
        out += '; Single persistent kernel, one workgroup per CU (generated by tools/gen.py)\n'
        out += '; @launch grid=(256,1,1) block=(256,1,1) lds=163840\n'
        out += '.amdgcn_target "amdgcn-amd-amdhsa--gfx950"\n.text\n'
        out += f'.globl {NAME}_kernel\n.p2align 8\n.type {NAME}_kernel,@function\n{NAME}_kernel:\n'
        out += body
        out += 'L_end:\n    s_endpgm\nL_code_end:\n'
        out += '.set CODE_PF_MAX, (L_code_end - ' + NAME + '_kernel - 4) & 0xffffff80\n'
        out += f'''.section .rodata,"a"
.p2align 6
.amdhsa_kernel {NAME}_kernel
  .amdhsa_next_free_vgpr 512
  .amdhsa_next_free_sgpr 96
  .amdhsa_accum_offset 256
  .amdhsa_group_segment_fixed_size 0
  .amdhsa_kernarg_size 104
  .amdhsa_user_sgpr_count 2
  .amdhsa_user_sgpr_kernarg_segment_ptr 1
  .amdhsa_system_sgpr_workgroup_id_x 1
  .amdhsa_float_denorm_mode_32 3
.end_amdhsa_kernel
'''
        return out


if __name__ == '__main__':
    import argparse
    ap = argparse.ArgumentParser()
    ap.add_argument('-o', default='cdna_kernels/' + NAME + '.s')
    ap.add_argument('--stop', type=int, default=99)
    ap.add_argument('--prof', action='store_true')
    ap.add_argument('--mapr', type=int, default=2)
    ap.add_argument('--probe', default=None)
    args = ap.parse_args()
    g = Gen(stop=args.stop, prof=args.prof, mapr=args.mapr, probe=args.probe.split(',') if args.probe else None)
    txt = g.build()
    open(args.o, 'w').write(txt)
    print('instructions', g.A.nins, g.A.stats, 'stamps', g.stamp_names)
```

```python
import sys
sys.path.insert(0, 'tools')
from asmlib import *

NAME = 'sequential_preLN__ssm_conv_h3__glu_gated_swiglu__prompt'

CNT = 0
SY_A, SY_W, SY_B1, SY_B2 = 0, 16384, 32768, 49152
SY_C = 65536
STATS = 81920
PROF = 98304
T_OFF, TS = 262144, 32896
H_OFF, HS = 5767168, 82048
WF13 = 8650752
WF2 = 12582912
HH, HHS = 14680064, 49408
WS_SIZE = HH + 128 * HHS

TPITCH = 131 * 16
THALF = 8 * TPITCH
TL_ALL = 4 * THALF
KTBL = 0x64175302
RP = 4624
STL = 40960
HB = [0, 81920]

sWAVE, sX, sIDX, sB = 3, 4, 5, 6
sSELLO, sSELHI, sMASK = 8, 9, 10
sT0, sT1, sT2, sT3 = 12, 13, 14, 15
sCNT = 11
sD = 16
sR, sC, sC2, sCH = 17, 18, 19, 20
sDV = 21
sU0, sU1, sU2, sU3 = 22, 23, 24, 25
sPROF = 26
sTM = 28
sEX = 30
SRD_X, SRD_K, SRD_V, SRD_SH, SRD_SK, SRD_W1, SRD_W3, SRD_W2, SRD_OUT, SRD_WS, SRD_DBG = 44, 48, 52, 56, 60, 64, 68, 72, 76, 80, 84
sDP = 88
sPC = 90
sPL = 27
sSG = 43
sW13, sW2, sHH = 38, 39, 40
sL0, sL1 = 41, 42
STX = 2 * TL_ALL
FW13, FW3D = TL_ALL, 20608
FW2 = TL_ALL + 41216


def srd(b):
    return s(b, 4)


class Gen:
    def __init__(self, stop=99, prof=False, mapr=2, probe=None, early_dma=1, b1mu=1, wmu=2, wpace=6, b2k=10, c1k=11, c1sig=3, c2sig=5, w2a=12, clk=0, wsoff=0):
        self.wsoff = wsoff
        self.clk = clk
        self.probe = probe
        self.early_dma, self.b1mu, self.wmu, self.wpace = early_dma, b1mu, wmu, wpace
        self.b2k, self.c1k, self.c1sig, self.c2sig, self.w2a = b2k, c1k, c1sig, c2sig, w2a
        self.A = Asm()
        self.stop = stop
        self.prof = prof
        self.mapr = mapr
        self.nstamp = 0
        self.stamp_names = []

    def stamp(self, name, idx=None):
        if self.probe and name in self.probe:
            k = 92 if name == self.probe[0] else 94
            self.A.I(f's_memrealtime {s(k, 2)}')
            self.A.hard_wait('lgkmcnt(0)')
        if not self.prof:
            return
        A = self.A
        if idx is None:
            if name in self.stamp_names:
                idx = self.stamp_names.index(name)
            else:
                idx = len(self.stamp_names)
                self.stamp_names.append(name)
        assert idx < 32
        A.I(f'{"s_memtime" if self.clk else "s_memrealtime"} {s(sTM, 2)}')
        A.hard_wait('lgkmcnt(0)')
        A.I(f'v_writelane_b32 v255, {s(sTM)}, {idx}')

    def flush_stamps(self):
        if self.probe:
            A = self.A
            A.I('s_cmp_lg_u32 s2, 9')
            A.I('s_cbranch_scc1 L_end')
            A.I('s_sub_u32 s94, s94, s92')
            A.I('s_mul_i32 s94, s94, 10')
            A.I('s_memrealtime s[92:93]')
            A.hard_wait('lgkmcnt(0)')
            A.label('L_probe')
            A.I(f's_memrealtime {s(sTM, 2)}')
            A.hard_wait('lgkmcnt(0)')
            A.I(f's_sub_u32 {s(sTM)}, {s(sTM)}, s92')
            A.I(f's_cmp_lt_u32 {s(sTM)}, s94')
            A.I('s_cbranch_scc1 L_probe')
        if not self.prof:
            return
        A = self.A
        A.I(f's_lshl_b32 {s(sT0)}, s2, 2')
        A.I(f's_add_u32 {s(sT0)}, {s(sT0)}, {s(sWAVE)}')
        A.I(f's_lshl_b32 {s(sT0)}, {s(sT0)}, 7')
        A.I(f's_add_u32 {s(sT0)}, {s(sT0)}, {PROF}')
        A.I('v_lshlrev_b32 v254, 2, v1')
        A.I('s_mov_b64 exec, 0xffffffff')
        A.I(f'buffer_store_dword v255, v254, {srd(SRD_WS)}, {s(sT0)} offen')
        A.I('s_mov_b64 exec, -1')

    def interleave(self, main, fill, per=2, start=0):
        A = self.A
        n = len(main) - start
        k = 0
        for i, m in enumerate(main):
            self.emit(m)
            if i < start:
                continue
            upto = min(len(fill), k + per, -(-len(fill) * (i - start + 1) // n) if n else len(fill))
            while k < upto:
                self.emit(fill[k])
                k += 1
        while k < len(fill):
            self.emit(fill[k])
            k += 1

    def emit(self, x):
        if callable(x):
            x()
        else:
            self.A.I(x)

    def only_wave(self, w, body):
        A = self.A
        L = A.newlabel('L_skip')
        A.I(f's_cmp_lg_u32 {s(sWAVE)}, {w}')
        A.I(f's_cbranch_scc1 {L}')
        st = A.fork()
        body()
        st2 = A.fork()
        A.label(L)
        A.join([st, st2])

    def poll_loop(self, voff, soff, target, srdb=SRD_WS, vtmp=7):
        A = self.A
        Ll, Ld = A.newlabel('L_poll'), A.newlabel('L_polld')
        A.I(f's_mov_b32 {s(sCNT)}, 0x20000')
        A.label(Ll)
        A.I(f'buffer_load_dword v{vtmp}, v{voff}, {srd(srdb)}, {soff} offen sc1')
        A.hard_wait('vmcnt(0)')
        A.I(f'v_cmp_le_u32 vcc, {target}, v{vtmp}')
        A.I('s_cmp_eq_u64 vcc, -1')
        A.I(f's_cbranch_scc1 {Ld}')
        A.I(f's_sub_u32 {s(sCNT)}, {s(sCNT)}, 1')
        A.I(f's_cbranch_scc0 {Ll}')
        A.label(Ld)

    def signal_global(self, sy, mask=3, reg=4):
        A = self.A
        A.I(f's_mov_b32 {s(sSG)}, {CNT + sy}')
        A.I(f's_mov_b64 exec, {mask:#x}')
        A.I(f'buffer_atomic_add v6, v{reg}, {srd(SRD_WS)}, {s(sSG)} offen sc1')
        A.I('s_mov_b64 exec, -1')

    def poll_global(self, sy, target):
        A = self.A
        A.I(f's_mov_b32 {s(sPL)}, {CNT + sy}')
        self.poll_loop(5, s(sPL), target)

    def signal_c(self, half):
        A = self.A
        A.I(f's_lshl_b32 {s(sSG)}, {s(sR)}, 8')
        A.I(f's_add_u32 {s(sSG)}, {s(sSG)}, {CNT + SY_C + half * 4096}')
        A.I('s_mov_b64 exec, 1')
        A.I(f'buffer_atomic_add v6, v24, {srd(SRD_WS)}, {s(sSG)} offen sc1')
        A.I('s_mov_b64 exec, -1')

    def poll_c(self, half):
        A = self.A
        A.I(f's_lshl_b32 {s(sPL)}, {s(sR)}, 8')
        A.I(f's_add_u32 {s(sPL)}, {s(sPL)}, {CNT + SY_C + half * 4096}')
        self.poll_loop(3, s(sPL), 16)

    def apoll_issue(self, voff, off, vtmp=7, add=None, srdb=SRD_WS):
        A = self.A
        if add is None:
            A.I(f's_mov_b32 {s(sPL)}, {off}')
        else:
            A.I(f's_lshl_b32 {s(sPL)}, {s(add)}, 8')
            A.I(f's_add_u32 {s(sPL)}, {s(sPL)}, {off}')
        A.I(f'buffer_load_dword v{vtmp}, v{voff}, {srd(srdb)}, {s(sPL)} offen sc1')

    def apoll_check(self, voff, target, vtmp=7, srdb=SRD_WS):
        A = self.A
        L = A.newlabel('L_ok')
        A.I(f'v_cmp_le_u32 vcc, {target}, v{vtmp}')
        A.I('s_cmp_eq_u64 vcc, -1')
        A.I(f's_cbranch_scc1 {L}')
        st = A.fork()
        self.poll_loop(voff, s(sPL), target, srdb=srdb, vtmp=vtmp)
        A.label(L)
        A.restore(st)

    def barrier(self):
        self.A.I('s_barrier')

    def end(self):
        self.flush_stamps()
        self.A.I('s_branch L_end')

    def prologue(self):
        A = self.A
        A.I('s_cmp_ge_u32 s2, 256')
        A.I('s_cbranch_scc1 L_end')
        for b, off in ((SRD_K, 8), (SRD_V, 16), (SRD_X, 0), (SRD_SH, 24), (SRD_SK, 32), (SRD_WS, 96), (SRD_DBG, 88),
                       (SRD_W1, 56), (SRD_W3, 64), (SRD_W2, 72), (SRD_OUT, 80), (sDP, 40)):
            A.I(f's_load_dwordx2 {s(b, 2)}, s[0:1], {off}')
        A.I('v_lshrrev_b32 v2, 6, v0')
        A.I('v_and_b32 v1, 63, v0')
        A.I(f'v_readfirstlane_b32 {s(sWAVE)}, v2')
        A.I(f's_and_b32 {s(sX)}, s2, 7')
        A.I(f's_lshr_b32 {s(sIDX)}, s2, 3')
        A.I(f's_lshl_b32 {s(sB)}, {s(sX)}, 5')
        A.I(f's_add_u32 {s(sB)}, {s(sB)}, {s(sIDX)}')
        for b, size in ((SRD_K, 2621440), (SRD_V, 2621440), (SRD_X, 2621440), (SRD_SH, 5120), (SRD_WS, WS_SIZE), (SRD_DBG, 256),
                        (SRD_W1, 1966080), (SRD_W3, 1966080), (SRD_W2, 1966080), (SRD_OUT, 2621440)):
            A.I(f's_mov_b32 {s(b + 2)}, {size}')
            A.I(f's_mov_b32 {s(b + 3)}, 0x20000')
        A.I(f's_mov_b32 {s(SRD_SK + 3)}, 0x20000')
        A.I(f's_mul_i32 {s(sD)}, {s(sX)}, 20')
        A.I(f's_add_u32 {s(sD)}, {s(sD)}, {s(sIDX)}')
        A.I(f's_lshl_b32 {s(sD)}, {s(sD)}, 2')
        A.I(f's_add_u32 {s(sD)}, {s(sD)}, {s(sWAVE)}')
        A.I(f's_cmp_lt_u32 {s(sIDX)}, 20')
        A.I(f's_cselect_b32 {s(SRD_SK + 2)}, 4096, 0')
        A.I(f's_cselect_b32 {s(sD)}, {s(sD)}, 0')
        A.I(f's_mul_i32 {s(sT1)}, {s(sB)}, 10240')
        A.I(f's_mov_b32 {s(sSELLO)}, 0x05040100')
        A.I(f's_mov_b32 {s(sSELHI)}, 0x07060302')
        A.I(f's_mov_b32 {s(sMASK)}, 0xffff0000')
        A.I(f's_lshl_b32 {s(sT0)}, {s(sD)}, 12')
        A.wait_all()
        A.I(f's_add_u32 {s(SRD_SK)}, {s(SRD_SK)}, {s(sT0)}')
        A.I(f's_addc_u32 {s(SRD_SK + 1)}, {s(SRD_SK + 1)}, 0')
        if self.wsoff:
            A.I(f's_add_u32 {s(SRD_WS)}, {s(SRD_WS)}, {self.wsoff << 20}')
            A.I(f's_addc_u32 {s(SRD_WS + 1)}, {s(SRD_WS + 1)}, 0')
        if self.prof:
            A.I('v_mov_b32 v255, 0')
        self.stamp('start')

    def common_consts(self):
        A = self.A
        A.I('v_mov_b32 v3, 0')
        A.I('v_mov_b32 v6, 1')
        A.I('v_lshlrev_b32 v4, 3, v1')
        A.I(f'v_add_u32 v4, {s(sX)}, v4')
        A.I('v_lshlrev_b32 v4, 8, v4')
        A.I('v_and_b32 v5, 7, v1')
        A.I(f's_lshl_b32 {s(sT2)}, {s(sX)}, 3')
        A.I(f'v_add_u32 v5, {s(sT2)}, v5')
        A.I('v_lshlrev_b32 v5, 8, v5')
        if self.mapr == 2:
            A.I(f's_lshr_b32 {s(sR)}, {s(sIDX)}, 4')
            A.I(f's_lshl_b32 {s(sT2)}, {s(sX)}, 1')
            A.I(f's_add_u32 {s(sR)}, {s(sR)}, {s(sT2)}')
            A.I(f's_and_b32 {s(sC)}, {s(sIDX)}, 15')
        elif self.mapr == 8:
            A.I(f's_lshr_b32 {s(sR)}, {s(sIDX)}, 2')
            A.I(f's_lshr_b32 {s(sT2)}, {s(sX)}, 2')
            A.I(f's_lshl_b32 {s(sT2)}, {s(sT2)}, 3')
            A.I(f's_add_u32 {s(sR)}, {s(sR)}, {s(sT2)}')
            A.I(f's_and_b32 {s(sC)}, {s(sIDX)}, 3')
            A.I(f's_and_b32 {s(sT2)}, {s(sX)}, 3')
            A.I(f's_lshl_b32 {s(sT2)}, {s(sT2)}, 2')
            A.I(f's_add_u32 {s(sC)}, {s(sC)}, {s(sT2)}')
        else:
            A.I(f's_lshr_b32 {s(sR)}, {s(sIDX)}, 3')
            A.I(f's_lshr_b32 {s(sT2)}, {s(sX)}, 1')
            A.I(f's_lshl_b32 {s(sT2)}, {s(sT2)}, 2')
            A.I(f's_add_u32 {s(sR)}, {s(sR)}, {s(sT2)}')
            A.I(f's_and_b32 {s(sC)}, {s(sIDX)}, 7')
            A.I(f's_and_b32 {s(sT2)}, {s(sX)}, 1')
            A.I(f's_lshl_b32 {s(sT2)}, {s(sT2)}, 3')
            A.I(f's_add_u32 {s(sC)}, {s(sC)}, {s(sT2)}')
        A.I(f's_and_b32 {s(sC2)}, {s(sC)}, 7')
        A.I(f's_lshr_b32 {s(sCH)}, {s(sC)}, 3')
        A.I(f's_lshl_b32 {s(sT2)}, {s(sC)}, 2')
        A.I(f's_add_u32 {s(sT2)}, {s(sT2)}, {s(sWAVE)}')
        A.I(f's_mul_i32 {s(sW13)}, {s(sT2)}, 61440')
        A.I(f's_add_u32 {s(sW13)}, {s(sW13)}, {WF13}')
        A.I(f's_lshl_b32 {s(sT2)}, {s(sC2)}, 2')
        A.I(f's_add_u32 {s(sT2)}, {s(sT2)}, {s(sWAVE)}')
        A.I(f's_mul_i32 {s(sW2)}, {s(sT2)}, 61440')
        A.I(f's_add_u32 {s(sW2)}, {s(sW2)}, {WF2}')
        A.I(f's_lshl_b32 {s(sT2)}, {s(sR)}, 1')
        A.I(f's_add_u32 {s(sT2)}, {s(sT2)}, {s(sCH)}')
        A.I(f's_mul_i32 {s(sHH)}, {s(sT2)}, {2 * HHS}')
        A.I(f's_mul_i32 {s(sT2)}, {s(sWAVE)}, 12288')
        A.I(f's_add_u32 {s(sHH)}, {s(sHH)}, {s(sT2)}')
        A.I(f's_add_u32 {s(sHH)}, {s(sHH)}, {HH}')

    XS = 220

    def ssmk_loads(self):
        A = self.A
        A.I('v_lshlrev_b32 v2, 4, v1')
        A.I('v_subrev_u32 v7, 16, v2')
        for i in range(4):
            if i == 0:
                A.I(f'buffer_load_dwordx4 {v(self.XS, 4)}, v7, {srd(SRD_SK)}, 0 offen nt')
            else:
                A.I(f'buffer_load_dwordx4 {v(self.XS + 8 * i, 4)}, v2, {srd(SRD_SK)}, 0 offen offset:{1024 * i - 16} nt')
            self.tag_sk = A.I(f'buffer_load_dwordx4 {v(self.XS + 8 * i + 4, 4)}, v2, {srd(SRD_SK)}, 0 offen offset:{1024 * i} nt')
        A.I(f's_lshl_b32 {s(sT2)}, {s(sD)}, 1')
        A.I(f's_and_b32 {s(sT2)}, {s(sT2)}, -4')
        A.I(f's_load_dword {s(sDV)}, {s(sDP, 2)}, {s(sT2)}')

    def p0_kv(self):
        A = self.A
        SH, KR, VR, XR, S, KF, KV, O = 8, 16, 38, 54, 70, 86, 130, 86
        A.I('v_lshlrev_b32 v2, 3, v0')
        A.I(f'v_add_u32 v166, {s(sT1)}, v2')
        A.I('v_subrev_u32 v167, 3840, v166')
        A.I('v_lshlrev_b32 v168, 5, v0')
        A.I('v_cmp_gt_u32 vcc, 160, v0')
        A.I(f's_mov_b32 {s(sT2)}, 5120')
        A.I('s_and_b64 exec, exec, vcc')
        A.I(f'buffer_load_dwordx4 {v(SH, 4)}, v168, {srd(SRD_SH)}, 0 offen')
        A.I(f'buffer_load_dwordx4 {v(SH + 4, 4)}, v168, {srd(SRD_SH)}, 0 offen offset:16')
        for j in range(3):
            A.I(f'buffer_load_dwordx2 {v(KR + 2 * j, 2)}, v167, {srd(SRD_K)}, 0 offen offset:{1280 * j} nt')

        def rows(dst, sr):
            for j in range(8):
                so = '0' if j < 4 else s(sT2)
                A.I(f'buffer_load_dwordx2 {v(dst + 2 * j, 2)}, v166, {srd(sr)}, {so} offen offset:{1280 * (j & 3)} nt')
        rows(KR + 6, SRD_K)
        rows(VR, SRD_V)
        rows(XR, SRD_X)
        A.I('s_mov_b64 exec, -1')
        self.ssmk_loads()
        self.common_consts()
        A.I(f's_mul_i32 {s(sT3)}, {s(sWAVE)}, {THALF}')
        A.I('v_mul_u32_u24 v169, 144, v1')
        A.I(f'v_add_u32 v169, {s(sT3)}, v169')
        A.I('v_lshrrev_b32 v170, 3, v1')
        A.I('v_and_b32 v171, 7, v1')
        A.I('v_lshlrev_b32 v171, 4, v171')
        A.I('v_mul_u32_u24 v172, 144, v170')
        A.I(f'v_add3_u32 v172, v172, v171, {s(sT3)}')
        A.I(f'v_mul_u32_u24 v173, {TS}, v170')
        A.I('v_add_u32 v173, v173, v171')
        for c in range(4):
            A.I(f'v_lshlrev_b32 v{S + 0 + c}, 16, v{SH + 2 * c}')
            A.I(f'v_and_b32 v{S + 4 + c}, {s(sMASK)}, v{SH + 2 * c}')
            A.I(f'v_lshlrev_b32 v{S + 8 + c}, 16, v{SH + 2 * c + 1}')
            A.I(f'v_and_b32 v{S + 12 + c}, {s(sMASK)}, v{SH + 2 * c + 1}')
        for j in range(11):
            for e in range(2):
                A.I(f'v_lshlrev_b32 v{KF + 4 * j + 2 * e}, 16, v{KR + 2 * j + e}')
                A.I(f'v_and_b32 v{KF + 4 * j + 2 * e + 1}, {s(sMASK)}, v{KR + 2 * j + e}')
        for tap in range(4):
            for t in range(8):
                for e in range(2):
                    d = v(KV + 4 * t + 2 * e, 2)
                    kk = v(KF + 4 * (t + 3 - tap) + 2 * e, 2)
                    ss = v(S + 4 * tap + 2 * e, 2)
                    if tap == 0:
                        A.I(f'v_pk_mul_f32 {d}, {kk}, {ss}')
                    else:
                        A.I(f'v_pk_fma_f32 {d}, {kk}, {ss}, {d}')
        VF = 16
        VF = 174
        for t in range(8):
            for e in range(2):
                A.I(f'v_lshlrev_b32 v{VF + 4 * t + 2 * e}, 16, v{VR + 2 * t + e}')
                A.I(f'v_and_b32 v{VF + 4 * t + 2 * e + 1}, {s(sMASK)}, v{VR + 2 * t + e}')
        for t in range(8):
            for e in range(2):
                d = v(KV + 4 * t + 2 * e, 2)
                A.I(f'v_pk_mul_f32 {d}, {d}, {v(VF + 4 * t + 2 * e, 2)}')
        for c in range(4):
            for e in range(4):
                A.I(f'v_cvt_pk_bf16_f32 v{O + 8 * c + e}, v{KV + 4 * (7 - 2 * e) + c}, v{KV + 4 * (6 - 2 * e) + c}')
            A.I(f'ds_write_b128 v169, {v(O + 8 * c, 4)} offset:{32 * c}')
        for c in range(4):
            for e in range(4):
                sel = sSELHI if c & 1 else sSELLO
                A.I(f'v_perm_b32 v{O + 8 * c + 4 + e}, v{XR + 2 * (2 * e + 1) + (c >> 1)}, v{XR + 2 * (2 * e) + (c >> 1)}, {s(sel)}')
            A.I(f'ds_write_b128 v169, {v(O + 8 * c + 4, 4)} offset:{32 * c + 16}')
        A.wait_all(vm=False)
        RB = 130
        for i in range(8):
            A.I(f'ds_read_b128 {v(RB + 4 * i, 4)}, v172 offset:{1152 * i}')
        A.I(f's_mul_i32 {s(sT2)}, {s(sWAVE)}, {64 * TS}')
        A.I(f's_lshl_b32 {s(sT3)}, {s(sB)}, 7')
        A.I(f's_add_u32 {s(sT2)}, {s(sT2)}, {s(sT3)}')
        A.I(f's_add_u32 {s(sT2)}, {s(sT2)}, {T_OFF}')
        A.wait_vm(self.tag_sk)
        for i in range(8):
            if i == 4:
                A.I(f's_cmp_eq_u32 {s(sWAVE)}, 2')
                A.I('s_cbranch_scc1 L_p0_w2')
                st = A.fork()
            A.I(f'buffer_store_dwordx4 {v(RB + 4 * i, 4)}, v173, {srd(SRD_WS)}, {s(sT2)} offen sc1')
            A.I(f's_add_u32 {s(sT2)}, {s(sT2)}, {8 * TS}')
        self.apoll_issue(3, 0, srdb=SRD_DBG)
        self.barrier()
        A.I('s_branch L_p0_join')
        A.label('L_p0_w2')
        A.restore(st)
        A.I('v_lshlrev_b32 v9, 2, v1')
        A.I(f'v_add_u32 v10, {STX}, v9')
        A.I(f's_lshl_b32 {s(sT2)}, {s(sB)}, 6')
        A.I(f's_add_u32 {s(sT2)}, {s(sT2)}, {STATS}')
        self.barrier()
        A.I('ds_read_b32 v13, v10')
        A.I('s_mov_b64 exec, 0xffff')
        A.I(f'buffer_store_dword v13, v9, {srd(SRD_WS)}, {s(sT2)} offen sc1')
        A.I('s_mov_b64 exec, -1')
        A.wait_all(vm=False)

    def fmt_dma(self):
        A = self.A
        self.fmt_ids()
        A.I('v_lshrrev_b32 v70, 3, v1')
        A.I('v_mul_u32_u24 v70, 3072, v70')
        A.I('v_and_b32 v71, 7, v1')
        A.I('v_lshl_add_u32 v70, v71, 4, v70')
        A.I(f's_lshl_b32 {s(sT2)}, {s(sU1)}, 2')
        A.I(f's_add_u32 {s(sT2)}, {s(sT2)}, {s(sWAVE)}')
        A.I(f's_mul_i32 {s(sT2)}, {s(sT2)}, {40 * 3072}')
        A.I(f's_lshl_b32 {s(sT3)}, {s(sU0)}, 7')
        A.I(f's_add_u32 {s(sT2)}, {s(sT2)}, {s(sT3)}')
        A.I(f's_mul_i32 {s(sT0)}, {s(sWAVE)}, 5120')
        A.I(f's_add_u32 {s(sT3)}, {s(sT0)}, {FW13}')
        for i in range(5):
            A.I(f's_mov_b32 m0, {s(sT3)}')
            A.I(f's_add_u32 {s(sT3)}, {s(sT3)}, 1024')
            A.I(f'buffer_load_dwordx4 v70, {srd(SRD_W1)}, {s(sT2)} offen nt lds')
            A.I(f's_add_u32 m0, m0, {FW3D}')
            A.I(f'buffer_load_dwordx4 v70, {srd(SRD_W3)}, {s(sT2)} offen nt lds')
            A.I(f's_add_u32 {s(sT2)}, {s(sT2)}, {8 * 3072}')
        A.I(f's_lshl_b32 {s(sT2)}, {s(sU2)}, 2')
        A.I(f's_add_u32 {s(sT2)}, {s(sT2)}, {s(sWAVE)}')
        A.I(f's_mul_i32 {s(sT2)}, {s(sT2)}, {16 * 1280}')
        A.I(f's_mul_i32 {s(sT3)}, {s(sU3)}, 320')
        A.I(f's_add_u32 {s(sT2)}, {s(sT2)}, {s(sT3)}')
        A.I(f's_add_u32 m0, {s(sT0)}, {FW2}')
        for i in range(5):
            A.I(f'v_add_u32 v71, {64 * i}, v1')
            A.I('v_mul_u32_u24 v72, 3277, v71')
            A.I('v_lshrrev_b32 v72, 16, v72')
            A.I('v_mul_u32_u24 v72, 960, v72')
            A.I('v_lshl_add_u32 v73, v71, 4, v72')
            A.I(f'buffer_load_dwordx4 v73, {srd(SRD_W2)}, {s(sT2)} offen nt lds')
            A.I('s_add_u32 m0, m0, 1024')

    def fmt_ids(self):
        A = self.A
        A.I(f's_mul_i32 {s(sU2)}, {s(sX)}, 12')
        A.I(f's_add_u32 {s(sU2)}, {s(sU2)}, {s(sIDX)}')
        A.I(f's_sub_u32 {s(sU2)}, {s(sU2)}, 20')
        A.I(f's_lshr_b32 {s(sU1)}, {s(sX)}, 1')
        A.I(f's_mul_i32 {s(sU0)}, {s(sU1)}, 24')
        A.I(f's_sub_u32 {s(sU0)}, {s(sU2)}, {s(sU0)}')
        A.I(f's_and_b32 {s(sU3)}, {s(sU2)}, 3')
        A.I(f's_lshr_b32 {s(sU2)}, {s(sU2)}, 2')

    def p0_stats(self):
        A = self.A
        FR, G_, S_, ONE = 16, 56, 60, 64
        A.I(f's_mul_i32 {s(sT2)}, s2, {18 * 256}')
        A.I(f's_cmp_lt_u32 s2, 16')
        A.I(f's_cselect_b32 {s(sT2)}, {s(sT2)}, 0x7ff00000')
        A.I(f's_cselect_b32 {s(sT3)}, 0, 0x7ff00000')
        A.I('v_lshlrev_b32 v9, 8, v1')
        A.I('v_mov_b32 v3, 0')
        A.I('v_mov_b32 v6, 1')
        A.I('s_mov_b64 exec, 0x3ffff')
        tinit = A.I(f'buffer_store_dword v3, v9, {srd(SRD_WS)}, {s(sT2)} offen sc1')
        A.I('s_mov_b64 exec, -1')
        A.I('v_and_b32 v8, 7, v1')
        A.I('v_mul_u32_u24 v8, 1280, v8')
        A.I('v_bfe_u32 v9, v1, 3, 1')
        A.I('v_lshlrev_b32 v9, 6, v9')
        A.I('v_and_b32 v10, 48, v1')
        A.I('v_add3_u32 v8, v8, v9, v10')
        for f in range(10):
            A.I(f'buffer_load_dwordx4 {v(FR + 4 * f, 4)}, v8, {srd(SRD_X)}, {s(sT1)} offen offset:{128 * f} nt')
        self.ssmk_loads()
        A.I(f's_getpc_b64 {s(sPC, 2)}')
        A.label('L_pc')
        A.I(f's_sub_u32 {s(sPC)}, {s(sPC)}, L_pc-{NAME}_kernel')
        A.I(f's_subb_u32 {s(sPC + 1)}, {s(sPC + 1)}, 0')
        A.I(f's_lshl_b32 {s(sT2)}, {s(sIDX)}, 11')
        A.I('v_lshlrev_b32 v9, 7, v1')
        A.I(f'v_add_u32 v9, {s(sT2)}, v9')
        A.I('v_min_u32 v9, CODE_PF_MAX, v9')
        A.I('s_mov_b64 exec, 0xffff')
        tpf = A.I(f'global_load_dword v11, v9, {s(sPC, 2)}')
        A.I('s_mov_b64 exec, -1')
        A.I(f's_mov_b32 {s(sSG)}, {s(sT3)}')
        self.common_consts()
        A.wait_vm(tinit)
        A.I('s_mov_b64 exec, 1')
        A.I(f'buffer_atomic_add v6, v3, {srd(SRD_DBG)}, {s(sSG)} offen sc1')
        A.I('s_mov_b64 exec, -1')

        def stats():
            for i in range(4):
                A.I(f'v_mov_b32 v{ONE + i}, 0x3f803f80')
            for f in range(10):
                fr = v(FR + 4 * f, 4)
                A.I(f'v_mfma_f32_16x16x32_bf16 {v(G_, 4)}, {fr}, {fr}, {v(G_, 4) if f else 0}')
                A.I(f'v_mfma_f32_16x16x32_bf16 {v(S_, 4)}, {v(ONE, 4)}, {fr}, {v(S_, 4) if f else 0}')
            A.I('v_and_b32 v9, 3, v1')
            A.I('v_and_b32 v10, 15, v1')
            A.I('v_lshrrev_b32 v12, 2, v10')
            A.I('v_lshl_add_u32 v12, v12, 4, v10')
            A.I('v_lshlrev_b32 v12, 2, v12')
            for i in range(1, 4):
                A.I(f'v_cmp_eq_u32 vcc, {i}, v9')
                A.I(f'v_cndmask_b32 v{G_}, v{G_}, v{G_ + i}, vcc')
            A.I(f'ds_bpermute_b32 v13, v12, v{G_}')
            A.I(f'v_add_f32_dpp v14, v{S_}, v{S_} row_ror:8 row_mask:0xf bank_mask:0xf')
            A.I('v_add_f32_dpp v13, v13, v13 row_ror:8 row_mask:0xf bank_mask:0xf')
            A.I('v_mul_f32 v14, 0x3acccccd, v14')
            A.I('v_mul_f32 v13, 0x3acccccd, v13')
            A.I('v_fma_f32 v13, -v14, v14, v13')
            A.I('v_max_f32 v13, 0, v13')
            A.I('v_add_f32 v13, 0x3727c5ac, v13')
            A.I('v_rsq_f32 v13, v13')
            A.I('v_cmp_gt_u32 vcc, 8, v10')
            A.I('v_mul_f32_e64 v14, -v14, v13')
            A.I('v_cndmask_b32 v13, v14, v13, vcc')
            A.I('v_lshlrev_b32 v9, 2, v1')
            A.I(f'v_add_u32 v9, {STX}, v9')
            A.I('ds_write_b32 v9, v13')
            A.wait_vm(tpf)
            A.wait_all(vm=False)
            self.barrier()

        stats()

    def p0(self):
        A = self.A
        A.I(f's_cmp_eq_u32 {s(sWAVE)}, 3')
        A.I('s_cbranch_scc1 L_p0_stats')
        st = A.fork()
        self.p0_kv()
        A.I('s_branch L_p0_join')
        A.label('L_p0_stats')
        A.restore(st)
        self.p0_stats()
        A.label('L_p0_join')
        A.st = State()
        A.I('s_nop 1')
        self.stamp('p0_stores')

    def arrive_a(self):
        A = self.A
        self.stamp('p0_drained')
        self.barrier()

        def sig():
            self.apoll_check(3, 16, srdb=SRD_DBG)
            self.signal_global(SY_A, mask=0xff)
        self.only_wave(0, sig)
        A.I(f's_lshl_b32 {s(sT0)}, {s(sWAVE)}, 12')
        A.I(f'v_add_u32 v4, {s(sT0)}, v4')

    def formatter(self):
        A = self.A
        self.fmt_dma()
        A.hard_wait('vmcnt(15)')
        self.arrive_a()
        A.I('v_lshrrev_b32 v10, 4, v1')
        A.I('v_lshlrev_b32 v8, 9, v10')
        A.I('v_bfe_u32 v11, v1, 2, 2')
        A.I('v_lshl_add_u32 v8, v11, 5, v8')
        A.I('v_and_b32 v11, 1, v1')
        A.I('v_lshl_add_u32 v8, v11, 4, v8')
        A.I('v_bfe_u32 v11, v1, 1, 1')
        A.I(f'v_mul_u32_u24 v11, {FW3D}, v11')
        A.I(f'v_add_u32 v8, {FW13}, v8')
        A.I('v_add_u32 v8, v8, v11')
        A.I(f's_lshl_b32 {s(sT0)}, {s(sWAVE)}, 2')
        A.I(f'v_add_u32 v9, {s(sT0)}, v8')
        A.I(f's_lshl_b32 {s(sT0)}, {s(sWAVE)}, 12')
        A.I(f'v_add_u32 v8, {s(sT0)}, v8')
        A.I('v_bfe_u32 v12, v1, 2, 2')
        A.I('v_lshl_add_u32 v12, v12, 3, v10')
        A.I('v_mul_u32_u24 v12, 320, v12')
        A.I('v_and_b32 v13, 3, v1')
        A.I('v_lshl_add_u32 v12, v13, 3, v12')
        A.I(f's_and_b32 {s(sT0)}, {s(sWAVE)}, 1')
        A.I(f's_mul_i32 {s(sT1)}, {s(sT0)}, 1280')
        A.I(f's_lshr_b32 {s(sT2)}, {s(sWAVE)}, 1')
        A.I(f's_mul_i32 {s(sT3)}, {s(sT2)}, 160')
        A.I(f's_add_u32 {s(sT1)}, {s(sT1)}, {s(sT3)}')
        A.I(f's_add_u32 {s(sT1)}, {s(sT1)}, {FW2}')
        A.I(f'v_add_u32 v12, {s(sT1)}, v12')
        A.I(f's_lshl_b32 {s(sU3)}, {s(sU3)}, 1')
        A.I(f's_add_u32 {s(sU3)}, {s(sU3)}, {s(sT2)}')
        A.I(f's_mul_i32 {s(sU3)}, {s(sU3)}, 48')
        A.I(f's_lshl_b32 {s(sU2)}, {s(sU2)}, 1')
        A.I(f's_add_u32 {s(sU2)}, {s(sU2)}, {s(sT0)}')
        A.I(f's_add_u32 {s(sU2)}, {s(sU2)}, {s(sU3)}')
        A.I(f's_mul_i32 {s(sU2)}, {s(sU2)}, 5120')
        A.I(f's_add_u32 {s(sU2)}, {s(sU2)}, {WF2}')
        A.I(f's_lshl_b32 {s(sU0)}, {s(sU0)}, 3')
        A.I(f's_mul_i32 {s(sU1)}, {s(sU1)}, {5 * 3072}')
        A.I(f's_add_u32 {s(sU1)}, {s(sU1)}, {WF13}')
        A.hard_wait('vmcnt(0)')
        self.barrier()
        self.stamp('fmt_landed')
        RAW, RA5, OUT, OU5, W2R = 16, 48, 56, 88, 96
        for j in range(8):
            A.I(f'ds_read_b128 {v(RAW + 4 * j, 4)}, v8 offset:{((j & 3) + 16 * (j >> 2)) * 128}')
        for j in range(8):
            A.I(f'ds_read_b32 v{RA5 + j}, v9 offset:{4 * 4096 + ((j & 3) + 16 * (j >> 2)) * 128}')
        for t in range(5):
            A.I(f'ds_read_b64_tr_b16 {v(W2R + 4 * t, 2)}, v12 offset:{32 * t}')
            A.I(f'ds_read_b64_tr_b16 {v(W2R + 4 * t + 2, 2)}, v12 offset:{32 * 320 + 32 * t}')

        def st13(reg, tile_add, kl):
            A.I(f's_add_u32 {s(sT0)}, {s(sU0)}, {tile_add}')
            A.I(f's_mul_i32 {s(sT1)}, {s(sT0)}, 21846')
            A.I(f's_lshr_b32 {s(sT1)}, {s(sT1)}, 16')
            A.I(f's_mul_i32 {s(sT1)}, {s(sT1)}, 57')
            A.I(f's_add_u32 {s(sT0)}, {s(sT0)}, {s(sT1)}')
            A.I(f's_lshl_b32 {s(sT0)}, {s(sT0)}, 10')
            A.I(f's_add_u32 {s(sT0)}, {s(sT0)}, {kl}')
            A.I(f'buffer_store_dwordx4 {v(reg, 4)}, v2, {srd(SRD_WS)}, {s(sT0)} offen sc1')
        A.I(f's_mul_i32 {s(sT2)}, {s(sWAVE)}, 3072')
        A.I(f's_add_u32 {s(sT2)}, {s(sT2)}, {s(sU1)}')
        for i in range(8):
            for jj in range(4):
                sel = sSELHI if i & 1 else sSELLO
                A.I(f'v_perm_b32 v{OUT + 4 * i + jj}, v{RAW + 4 * (2 * jj + 1) + (i >> 1)}, v{RAW + 4 * (2 * jj) + (i >> 1)}, {s(sel)}')
            st13(OUT + 4 * i, i, s(sT2))
        A.I(f's_add_u32 {s(sT2)}, {s(sU1)}, {4 * 3072}')
        A.I(f's_lshl_b32 {s(sT3)}, {s(sWAVE)}, 1')
        A.I(f's_add_u32 {s(sU0)}, {s(sU0)}, {s(sT3)}')
        for i in range(2):
            for jj in range(4):
                sel = sSELHI if i & 1 else sSELLO
                A.I(f'v_perm_b32 v{OU5 + 4 * i + jj}, v{RA5 + 2 * jj + 1}, v{RA5 + 2 * jj}, {s(sel)}')
            st13(OU5 + 4 * i, i, s(sT2))
        for t in range(5):
            if t == 4:
                A.I(f's_add_u32 {s(sU2)}, {s(sU2)}, 4096')
            A.I(f'buffer_store_dwordx4 {v(W2R + 4 * t, 4)}, v2, {srd(SRD_WS)}, {s(sU2)} offen offset:{1024 * (t & 3)} sc1')
        self.stamp('fmt_stores')
        A.wait_all()
        self.barrier()
        self.signal_global(SY_W)
        self.stamp('fmt_done')
        self.only_wave(0, lambda: self.poll_global(SY_W, 12))
        self.barrier()
        self.stamp('W_seen')
        nearly = self.wpace * (8 - self.wmu)
        for x in self.w13_loads(0, nearly):
            A.I(x)
        for n in range(nearly, 60):
            if n == nearly or n % 4 == 0:
                A.I(f's_add_u32 {s(sL0)}, {s(sW13)}, {4096 * (n // 4)}')
            A.I(f'buffer_load_dwordx4 {v(32 + 4 * (n % 48), 4)}, v2, {srd(SRD_WS)}, {s(sL0)} offen offset:{1024 * (n & 3)} sc1')
        A.I('v_mov_b32 v4, 0x7ff00000')
        A.wait_all()
        self.stamp('W13_loaded')
        self.only_wave(0, lambda: self.poll_global(SY_B1, 20))
        self.barrier()

    def w13_loads(self, n0, n1):
        L = []
        for n in range(n0, n1):
            if n == n0 or n % 4 == 0:
                L.append(f's_add_u32 {s(sL0)}, {s(sW13)}, {4096 * (n // 4)}')
            L.append(f'buffer_load_dwordx4 {a(4 * n, 4)}, v2, {srd(SRD_WS)}, {s(sL0)} offen offset:{1024 * (n & 3)} sc1')
        return L

    def w2reg(self, n):
        if n < 26:
            return 148 + 4 * n
        if n < 30:
            return 256 + 240 + 4 * (n - 26)
        return 256 + 4 * (n - 30)

    def w2_loads(self, n0, n1):
        L = []
        for n in range(n0, n1):
            if n == n0 or n % 4 == 0:
                L.append(f's_add_u32 {s(sL0)}, {s(sW2)}, {4096 * (n // 4)}')
            L.append(f'buffer_load_dwordx4 {R(self.w2reg(n), 4)}, v2, {srd(SRD_WS)}, {s(sL0)} offen offset:{1024 * (n & 3)} sc1')
        return L

    def hhreg(self, n):
        return 256 + 120 + 4 * n

    def hh_loads(self, hf, n0, n1):
        L = []
        for n in range(n0, n1):
            kk, m2 = n >> 1, n & 1
            if n == n0 or n % 8 == 0:
                L.append(f's_add_u32 {s(sL0)}, {s(sHH)}, {64 * hf * HHS + 4096 * (kk // 4)}')
                L.append(f's_add_u32 {s(sL1)}, {s(sL0)}, {HHS}')
            L.append(f'buffer_load_dwordx4 {R(self.hhreg(n), 4)}, v2, {srd(SRD_WS)}, {s(sL0 + m2)} offen offset:{1024 * (kk & 3)} sc1')
        return L

    ALO = 256 + 112

    def conv_prep(self):
        A = self.A
        XS = self.XS
        kt = [(KTBL >> (4 * sh)) & 15 for sh in range(8)]
        A.I(f's_mul_i32 {s(sT3)}, {s(sWAVE)}, {THALF}')
        A.I('v_lshlrev_b32 v8, 4, v1')
        A.I(f'v_add_u32 v8, {s(sT3)}, v8')
        A.I(f'v_add_u32 v9, {TL_ALL}, v8')
        for i in range(4):
            if i == 2:
                A.hard_wait('vmcnt(0)')
                self.arrive_a()
            X = XS + 8 * i
            T = 32 + 24 * (i & 1)
            Y, O0, O1 = T, T + 6, T + 12
            base = 'v8' if i < 2 else 'v9'

            def wr(sh, reg):
                off = kt[sh] * TPITCH + (64 * (i & 1) + (1 if sh else 2)) * 16
                A.I(f'ds_write_b128 {base}, {v(reg, 4)} offset:{off}')
            wr(0, X + 4)
            wr(4, X + 2)
            for e in range(6):
                A.I(f'v_mov_b32 v{Y + e}, v{X + 1 + e}')
            wr(2, Y)
            wr(6, Y + 2)
            for e in range(6):
                A.I(f'v_alignbit_b32 v{O0 + e}, v{X + e + 1}, v{X + e}, 16')
            wr(1, O0)
            wr(5, O0 + 2)
            for e in range(6):
                A.I(f'v_alignbit_b32 v{O1 + e}, v{X + e + 2}, v{X + e + 1}, 16')
            wr(3, O1)
            wr(7, O1 + 2)
        A.I('v_lshlrev_b32 v10, 2, v1')
        A.I(f's_mov_b32 {s(sT2)}, {KTBL:#x}')
        A.I(f'v_bfe_u32 v10, {s(sT2)}, v10, 4')
        A.I(f'v_mul_u32_u24 v10, {TPITCH}, v10')
        A.I('v_cmp_eq_u32 vcc, 0, v1')
        A.I('v_cndmask_b32_e64 v11, 0, 16, vcc')
        A.I(f'v_add3_u32 v10, v10, v11, {s(sT3)}')
        A.I(f'v_add_u32 v11, {TL_ALL}, v10')
        for e in range(4):
            A.I(f'v_mov_b32 v{28 + e}, 0')
        A.I('s_mov_b64 exec, 0xff')
        A.I('ds_write_b128 v10, v[28:31]')
        A.I('ds_read_b128 v[24:27], v10 offset:2048')
        A.I('ds_write_b128 v11, v[24:27]')
        A.I('s_mov_b64 exec, -1')
        A.I('v_lshrrev_b32 v12, 4, v1')
        A.I('v_and_b32 v13, 15, v1')
        A.I('v_lshl_add_u32 v14, v12, 3, v13')
        A.I('v_add_u32 v14, 1, v14')
        A.I('v_and_b32 v15, 7, v14')
        A.I('v_lshlrev_b32 v15, 2, v15')
        A.I(f'v_bfe_u32 v15, {s(sT2)}, v15, 4')
        A.I(f'v_mul_u32_u24 v15, {TPITCH}, v15')
        A.I('v_lshrrev_b32 v14, 3, v14')
        A.I('v_lshlrev_b32 v14, 4, v14')
        A.I(f'v_add3_u32 v8, v14, v15, {s(sT3)}')
        A.I(f'v_add_u32 v9, {TL_ALL}, v8')
        for p in range(32):
            A.I(f'ds_read_b128 {R(self.ALO + 16 * (p & 7) + 4 * (p >> 3), 4)}, v8 offset:{64 * p}')
        A.I(f's_mul_i32 {s(sT3)}, {s(sWAVE)}, {2 * RP}')
        A.I('v_lshlrev_b32 v10, 1, v13')
        A.I('v_sub_u32 v10, v10, v12')
        A.I('v_add_u32 v10, 5, v10')
        A.I('v_lshlrev_b32 v10, 4, v10')
        A.I(f'v_add_u32 v10, {s(sT3)}, v10')
        A.I('v_lshlrev_b32 v11, 5, v13')
        A.I('v_lshl_add_u32 v11, v12, 3, v11')
        A.I(f's_add_u32 {s(sT2)}, {s(sT3)}, {RP + 512}')
        A.I(f'v_add_u32 v11, {s(sT2)}, v11')
        A.I('v_lshrrev_b32 v14, 1, v12')
        A.I('v_lshl_add_u32 v14, v13, 1, v14')
        A.I('v_lshlrev_b32 v14, 6, v14')
        A.I('v_and_b32 v15, 1, v12')
        A.I('v_lshlrev_b32 v16, 4, v15')
        A.I(f'v_add_u32 v14, {STL}, v14')
        A.I('v_add_u32 v14, v14, v16')
        A.I('v_lshrrev_b32 v16, 2, v13')
        A.I('v_lshl_add_u32 v15, v15, 2, v16')
        A.I(f'v_mul_u32_u24 v15, {HS}, v15')
        A.I(f's_bfe_u32 {s(sT2)}, {s(sD)}, 0x20001')
        A.I('v_and_b32 v16, 3, v13')
        A.I(f'v_xor_b32 v16, {s(sT2)}, v16')
        A.I('v_lshlrev_b32 v16, 5, v16')
        A.I('v_lshrrev_b32 v17, 1, v12')
        A.I('v_lshlrev_b32 v17, 4, v17')
        A.I('v_add3_u32 v15, v15, v16, v17')
        A.I(f's_and_b32 {s(sT2)}, {s(sD)}, 1')
        A.I(f's_lshl_b32 {s(sT2)}, {s(sT2)}, 4')
        A.I(f's_lshr_b32 {s(sDV)}, {s(sDV)}, {s(sT2)}')
        A.I(f's_and_b32 {s(sDV)}, {s(sDV)}, 0xffff')
        A.I('v_lshl_add_u32 v16, v12, 3, v13')
        A.I('v_sub_u32 v16, 15, v16')
        A.I('v_and_b32 v17, 1, v16')
        A.I('v_lshlrev_b32 v17, 4, v17')
        A.I(f'v_lshlrev_b32_e64 v17, v17, {s(sDV)}')
        A.I('v_lshrrev_b32 v16, 1, v16')
        for e in range(4):
            A.I(f'v_cmp_eq_u32 vcc, {e}, v16')
            A.I(f'v_cndmask_b32 v{28 + e}, 0, v17, vcc')
        A.I('v_lshlrev_b32 v16, 4, v0')
        A.I('v_and_b32 v17, 7, v0')
        A.I(f'v_mul_u32_u24 v17, {RP}, v17')
        A.I('v_lshrrev_b32 v18, 3, v0')
        A.I('v_lshl_add_u32 v17, v18, 4, v17')
        for e in range(4):
            A.I(f'v_mov_b32 v{24 + e}, 0')
        A.wait_all()

    def conv(self):
        A = self.A
        ACC, VB, AH, STG, XQ, TMP, PK = 32, 64, 128, 160, 192, 224, 244
        A.I(f's_lshr_b32 {s(sT0)}, {s(sD)}, 2')
        A.I(f's_mul_i32 {s(sT0)}, {s(sT0)}, {TS}')
        A.I(f's_add_u32 {s(sT0)}, {s(sT0)}, {T_OFF}')
        A.I(f's_lshl_b32 {s(sT1)}, {s(sWAVE)}, 11')
        A.I(f's_add_u32 m0, {s(sT1)}, {STL}')
        A.I(f's_add_u32 {s(sT1)}, {s(sT1)}, {STATS}')
        self.only_wave(0, lambda: self.poll_global(SY_A, 32))
        self.barrier()
        self.stamp('A_seen')
        for hf in range(2):
            for i in range(4 * hf, 4 * hf + 4):
                A.I(f'buffer_load_dwordx4 {v(STG + 4 * i, 4)}, v16, {srd(SRD_WS)}, {s(sT0)} offen sc1')
                A.I(f's_add_u32 {s(sT0)}, {s(sT0)}, 4096')
            for i in range(2):
                t = A.I(f'buffer_load_dwordx4 v2, {srd(SRD_WS)}, {s(sT1)} offen offset:{1024 * i} sc1 lds')
            if hf == 0:
                tst0 = t
                A.I('s_add_u32 m0, m0, 8192')
                A.I(f's_add_u32 {s(sT1)}, {s(sT1)}, 8192')
            else:
                tst1 = t
        A.I('ds_write_b128 v17, v[24:27]')
        for i in range(4):
            A.I(f'ds_write_b128 v17, {v(STG + 4 * i, 4)} offset:{512 + 512 * i}')
        A.wait_vm(tst0)
        A.wait_all(vm=False)
        self.barrier()
        self.stamp('T_staged')

        def vread(buf, tau, mu):
            return f'ds_read_b128 {v(VB + 32 * buf + 4 * tau, 4)}, v10 offset:{(32 * tau + 28 - 4 * mu) * 16}'

        def aread(buf, c, mu):
            return f'ds_read_b128 {v(AH + 16 * buf + 4 * (c - 4), 4)}, v9 offset:{64 * (8 * c + mu - 32)}'

        def qprep(t):
            tt = t & 3
            x0 = TMP + 10 * (t & 1)
            q = XQ + 8 * tt
            L = [f'ds_read_b64 {v(x0, 2)}, v11 offset:{512 * t}',
                 f'ds_read_b128 {v(x0 + 2, 4)}, v14 offset:{2048 * t}',
                 f'ds_read_b128 {v(x0 + 6, 4)}, v14 offset:{2048 * t + 32}']
            M = [f'v_lshlrev_b32 v{q}, 16, v{x0}', f'v_and_b32 v{q + 1}, {s(sMASK)}, v{x0}',
                 f'v_lshlrev_b32 v{q + 2}, 16, v{x0 + 1}', f'v_and_b32 v{q + 3}, {s(sMASK)}, v{x0 + 1}']
            M += [f'v_fma_f32 v{q + 4 + i}, v{q + i}, v{x0 + 2 + i}, v{x0 + 6 + i}' for i in range(4)]
            return L, M

        def areg(buf, c, mu):
            return R(self.ALO + 16 * mu + 4 * c, 4) if c < 4 else v(AH + 16 * buf + 4 * (c - 4), 4)

        def first_reads(hf):
            ntau = 4 * hf + 4
            for tau in range(ntau - 1, -1, -1):
                A.I(vread(0, tau, 0))
            if hf:
                for c in range(4, 8):
                    A.I(aread(0, c, 0))

        def half(hf, extra):
            ts = list(range(4 * hf + 3, 4 * hf - 1, -1))
            ntau = 4 * hf + 4
            for mu in range(8):
                buf = mu & 1
                main = []
                if mu == 0:
                    for t in ts:
                        main.append(f'v_mfma_f32_16x16x32_bf16 {v(ACC + 4 * t, 4)}, v[28:31], {v(VB + 4 * t, 4)}, 0')
                for c in range(ntau):
                    for t in ts:
                        if c <= t:
                            main.append(f'v_mfma_f32_16x16x32_bf16 {v(ACC + 4 * t, 4)}, {areg(buf, c, mu)}, {v(VB + 32 * buf + 4 * (t - c), 4)}, {v(ACC + 4 * t, 4)}')
                fill = []
                if mu < 7:
                    order = list(range(ntau - 1, -1, -1))
                    fill += [vread(buf ^ 1, tau, mu + 1) for tau in order]
                    if hf:
                        fill += [aread(buf ^ 1, c, mu + 1) for c in range(4, 8)]
                fill += extra.get(mu, [])
                self.interleave(main, fill)

        def epilogue(hf):
            A.I(f's_lshl_b32 {s(sT0)}, {s(sD)}, 7')
            A.I(f's_add_u32 {s(sT0)}, {s(sT0)}, {H_OFF + 16 * hf * HS}')
            for tp in range(2):
                pk = PK + 4 * tp
                for dt in range(2):
                    t = 4 * hf + 2 * tp + dt
                    q = XQ + 8 * (t & 3)
                    for i in range(4):
                        A.I(f'v_fma_f32 v{q + i}, v{q + 4 + i}, v{ACC + 4 * t + i}, v{q + i}')
                    A.I(f'v_cvt_pk_bf16_f32 v{pk + 2 * dt}, v{q}, v{q + 1}')
                    A.I(f'v_cvt_pk_bf16_f32 v{pk + 2 * dt + 1}, v{q + 2}, v{q + 3}')
                A.I(f'v_permlane16_swap_b32 v{pk}, v{pk + 2}')
                A.I(f'v_permlane16_swap_b32 v{pk + 1}, v{pk + 3}')
                tg = A.I(f'buffer_store_dwordx4 {v(pk, 4)}, v15, {srd(SRD_WS)}, {s(sT0)} offen sc1')
                if tp == 0:
                    A.I(f's_add_u32 {s(sT0)}, {s(sT0)}, {8 * HS}')
            return tg

        def qextra(hf):
            ex = {}
            for j in range(4):
                L, M = qprep(4 * hf + j)
                ex.setdefault(j + 1, []).extend(L)
                ex.setdefault(j + 2, []).extend(M)
            return ex
        ex = qextra(0)
        ex.setdefault(6, []).extend([f'ds_write_b128 v17, {v(STG + 4 * i, 4)} offset:{512 + 512 * i}' for i in range(4, 8)])

        def second_ready():
            A.wait_vm(tst1)
            A.wait_all(vm=False)
            self.barrier()
        ex.setdefault(7, []).extend([second_ready, lambda: first_reads(1)])
        first_reads(0)
        half(0, ex)
        tg1 = epilogue(0)
        self.stamp('conv_h1')
        ex = qextra(1)

        def arrive_b1():
            A.wait_vm(tg1)
            self.barrier()
            self.signal_global(SY_B1)
        ex.setdefault(self.b1mu, []).append(arrive_b1)
        ex.setdefault(self.wmu - 1, []).append(lambda: self.apoll_issue(5, CNT + SY_W))
        for mu in range(self.wmu, 8):
            n0 = (mu - self.wmu) * self.wpace
            assert n0 + self.wpace <= 28 + 4 * mu
            L = self.w13_loads(n0, n0 + self.wpace)
            if mu == self.wmu:
                L = [lambda: self.apoll_check(5, 12)] + L
            ex.setdefault(mu, []).extend(L)
        ex[7].append(lambda: self.apoll_issue(5, CNT + SY_B1))
        half(1, ex)
        self.tag_h2 = epilogue(1)
        self.stamp('conv_h2')
        self.apoll_check(5, 20)
        self.barrier()

    ACC1, GR, SM, CS, ONE, HF, RES = 32, 80, 84, 88, 100, 104, 136

    def w13(self, kap, q):
        return 256 + 12 * kap + 4 * q

    def h_dma(self, hf):
        A = self.A
        self.htags = getattr(self, 'htags', {})
        groups = []
        for j in range(5):
            g = []
            if j == 0:
                g += [f's_mul_i32 {s(sU2)}, {s(sR)}, {HS}', f's_lshl_b32 {s(sU3)}, {s(sWAVE)}, 12',
                      f's_add_u32 {s(sU2)}, {s(sU2)}, {s(sU3)}', f's_add_u32 {s(sU2)}, {s(sU2)}, {H_OFF + 16 * hf * HS}',
                      f's_add_u32 m0, {s(sU3)}, {HB[hf]}']
            else:
                g += [f's_add_u32 {s(sU2)}, {s(sU2)}, 16384', 's_add_u32 m0, m0, 16384']
            for i in range(4):
                def f(i=i, j=j):
                    t = A.I(f'buffer_load_dwordx4 v2, {srd(SRD_WS)}, {s(sU2)} offen offset:{1024 * i} sc1 lds')
                    self.htags[(hf, j)] = t
                g.append(f)
            groups.append(g)
        return groups

    def colsum(self, kap):
        return [f'v_mfma_f32_16x16x32_bf16 {v(self.CS + 4 * q, 4)}, {R(self.w13(kap, q), 4)}, {v(self.ONE, 4)}, {v(self.CS + 4 * q, 4) if kap else 0}'
                for q in range(3)]

    def g1_setup(self):
        A = self.A
        self.stamp('B1_seen')
        for g in self.h_dma(0):
            for x in g:
                self.emit(x)
        nearly = self.wpace * (8 - self.wmu)
        for x in self.w13_loads(nearly, 60):
            A.I(x)
        A.wait_vm(self.tag_h2)
        self.barrier()
        self.signal_global(SY_B2)
        A.I('v_lshrrev_b32 v12, 2, v1')
        A.I('v_lshlrev_b32 v13, 7, v12')
        A.I('v_and_b32 v14, 3, v1')
        A.I('v_lshl_add_u32 v13, v14, 3, v13')
        A.I('v_bfe_u32 v14, v1, 3, 2')
        A.I(f'v_xor_b32 v15, {s(sWAVE)}, v14')
        for i in range(4):
            A.I(f'v_mov_b32 v{self.ONE + i}, 0x3f803f80')
        F = []
        for u in range(4):
            F.append(f'v_xor_b32 v16, {u}, v15')
            F.append(f'v_lshl_add_u32 v{8 + u}, v16, 5, v13')
        F += [f's_and_b32 {s(sT0)}, {s(sWAVE)}, 1',
              f's_lshl_b32 {s(sT1)}, {s(sCH)}, 1',
              f's_add_u32 {s(sT0)}, {s(sT0)}, {s(sT1)}',
              f'v_xor_b32 v16, {s(sT0)}, v14',
              'v_lshl_add_u32 v17, v16, 5, v13',
              f's_mul_i32 {s(sT0)}, {s(sC2)}, {80 * 128}',
              f's_lshr_b32 {s(sT1)}, {s(sWAVE)}, 1',
              f's_lshl_b32 {s(sT1)}, {s(sT1)}, 11',
              f's_add_u32 {s(sT0)}, {s(sT0)}, {s(sT1)}',
              f'v_add_u32 v17, {s(sT0)}, v17',
              f's_cmp_eq_u32 {s(sC2)}, 0',
              f's_cselect_b32 {s(sU1)}, {96 * 128}, 0',
              'v_and_b32 v16, 15, v1',
              'v_lshlrev_b32 v16, 4, v16',
              f'v_add_u32 v16, {s(sU1)}, v16']
        for u in range(4):
            F += [f's_xor_b32 {s(sT0)}, {s(sWAVE)}, {u}', f's_lshl_b32 {s(sT0)}, {s(sT0)}, 8', f'v_add_u32 v{19 + u}, {s(sT0)}, v16']
        F += ['v_lshrrev_b32 v16, 4, v1', f'v_xor_b32 v16, {s(sWAVE)}, v16', f'v_mul_u32_u24 v16, {HHS}, v16',
              'v_and_b32 v23, 15, v1', 'v_lshl_add_u32 v23, v23, 4, v16', 'v_and_b32 v16, 3, v1']
        for i in range(1, 4):
            F.append(f'v_cmp_eq_u32 {s(30 + 2 * i, 2)}, {i}, v16')
        F += [f's_mul_i32 {s(sU0)}, {s(sR)}, {4 * HHS}', f's_lshl_b32 {s(sT1)}, {s(sC)}, 2', f's_add_u32 {s(sT1)}, {s(sT1)}, {s(sWAVE)}',
              f's_mul_i32 {s(sT1)}, {s(sT1)}, 768', f's_add_u32 {s(sU0)}, {s(sU0)}, {s(sT1)}', f's_add_u32 {s(sU0)}, {s(sU0)}, {HH}']
        F += [f's_cmp_eq_u32 {s(sWAVE)}, 0', f's_cselect_b32 {s(sT0)}, 0, 0x7ff00000', f'v_mov_b32 v24, {s(sT0)}',
              f's_mul_i32 {s(sT0)}, {s(sWAVE)}, 10240', f'v_add_u32 v25, {s(sT0)}, v2',
              f's_lshl_b32 {s(sT0)}, {s(sWAVE)}, 10', f'v_add_u32 v26, {s(sT0)}, v2',
              'v_and_b32 v27, 15, v1', 'v_mul_u32_u24 v27, 1280, v27', 'v_lshrrev_b32 v16, 4, v1', 'v_lshl_add_u32 v27, v16, 3, v27']
        self.ncs = nearly // 3
        M = []
        for kap in range(self.ncs):
            M += self.colsum(kap)
        self.interleave(M, F)

    def g1_half(self, hf):
        A = self.A
        ACC, GR, SM, CS, ONE, HF = self.ACC1, self.GR, self.SM, self.CS, self.ONE, self.HF
        extra = {}

        def add(k, items):
            extra.setdefault(k, []).extend(items)
        pre_bar, post_bar = {}, {}
        if hf == 0:
            k0 = 4
            per = 2
            n = 0
            k = k0
            while n < self.w2a:
                add(k, self.w2_loads(n, min(n + per, self.w2a)))
                n += per
                k += 1
            add(self.b2k, [lambda: self.apoll_issue(5, CNT + SY_B2)])
            add(self.b2k + 2, [lambda: self.apoll_check(5, 20)])
            for j, g in enumerate(self.h_dma(1)):
                add(self.b2k + 2 + j, g)
        else:
            pre_bar[self.c1sig] = lambda: A.wait_vm(self.tag_hh)
            post_bar[self.c1sig] = lambda: self.signal_c(0)
            n = self.w2a
            kend = self.c1k + 2
            for k in range(0, kend):
                lim = min(60, 30 + 3 * k)
                left = kend - k
                want = -(-(60 - n) // left)
                m = min(lim, n + want)
                if m > n:
                    add(k, self.w2_loads(n, m))
                    n = m
            assert n == 60, n
            add(self.c1k, [lambda: self.apoll_issue(3, CNT + SY_C, add=sR)])
            add(self.c1k + 2, [lambda: self.apoll_check(3, 16)])
            n = 0
            for k in range(self.c1k + 2, 20):
                lim = min(24, 3 * (k - 10))
                want = -(-(24 - n) // (20 - k))
                m = min(lim, n + max(want, 4))
                if m > n:
                    add(k, self.hh_loads(0, n, m))
                    n = m
            assert n == 24

        def reads(kap):
            buf = kap & 1
            L = []
            for u in range(4):
                for hh in range(2):
                    L.append(f'ds_read_b64_tr_b16 {v(HF + 16 * buf + 4 * u + 2 * hh, 2)}, v{8 + u} offset:{(kap % 10) * 4096 + 2048 * hh}')
            return L

        def chunk_ready(j, kap):
            def f():
                if kap in pre_bar:
                    pre_bar[kap]()
                A.wait_vm(self.htags[(hf, j)])
                self.barrier()
                if kap in post_bar:
                    post_bar[kap]()
            return f
        if hf == 0:
            chunk_ready(0, -1)()
            self.stamp(f'h{hf + 1}_first')
            for x in reads(0):
                A.I(x)
        T = 104
        for kap in range(20):
            buf = kap & 1
            fr = lambda u: v(HF + 16 * buf + 4 * u, 4)
            main = [f'v_mfma_f32_16x16x32_bf16 {v(GR, 4)}, {fr(0)}, {fr(0)}, {v(GR, 4) if kap else 0}',
                    f'v_mfma_f32_16x16x32_bf16 {v(SM, 4)}, {v(ONE, 4)}, {fr(0)}, {v(SM, 4) if kap else 0}']
            for u in range(4):
                for q in range(3):
                    ac = v(ACC + 4 * (3 * u + q), 4)
                    main.append(f'v_mfma_f32_16x16x32_bf16 {ac}, {R(self.w13(kap, q), 4)}, {fr(u)}, {ac if kap else 0}')
            if hf == 0 and kap >= self.ncs:
                main += self.colsum(kap)
            fill = []
            if kap < 19:
                if (kap + 1) % 4 == 0:
                    fill.append(chunk_ready((kap + 1) // 4, kap))
                if kap + 1 == 10:
                    fill += [f'v_add_u32 v{8 + u}, 40960, v{8 + u}' for u in range(4)]
                fill += reads(kap + 1)
                if kap == 16:
                    fill += [f'ds_read_b64_tr_b16 {v(self.RES + 6 * hf + 2 * n, 2)}, v17 offset:{4096 * n}' for n in range(3)]
                fill += extra.get(kap, [])
                self.interleave(main, fill)
            else:
                fill = [f'v_add_u32 v{8 + u}, 40960, v{8 + u}' for u in range(4)]
                fill += ['v_add_u32 v17, 81920, v17']
                fill += [f'v_cndmask_b32 v{T}, v{GR}, v{GR + 1}, {s(32, 2)}',
                         f'v_cndmask_b32 v{T}, v{T}, v{GR + 2}, {s(34, 2)}',
                         f'v_cndmask_b32 v{T}, v{T}, v{GR + 3}, {s(36, 2)}',
                         f'v_mul_f32 v{T + 4}, 0xbacccccd, v{SM}',
                         f'v_mul_f32 v{T}, 0x3acccccd, v{T}',
                         f'v_fma_f32 v{T}, -v{T + 4}, v{T + 4}, v{T}',
                         f'v_max_f32 v{T}, 0, v{T}',
                         f'v_add_f32 v{T + 6}, 0x3727c5ac, v{T}',
                         f'v_rsq_f32 v{T + 5}, v{T + 6}',
                         f'v_mov_b32 v{T + 7}, 0',
                         f'v_mul_f32 v{T + 5}, 0xbfb8aa3b, v{T + 5}']
                fill += extra.get(kap, [])
                self.interleave(main, fill, start=2)
                A.I('s_mov_b32 exec_lo, 0x00f0000f')
                A.I('s_mov_b32 exec_hi, 0xf0000f00')
                A.I(f'ds_write_b128 v19, {v(T + 4, 4)}')
                A.I('s_mov_b64 exec, -1')
        if hf == 0:
            A.wait_vm(self.htags[(1, 0)])
        A.wait_all(vm=False)
        self.barrier()
        self.stamp(f'g1h{hf + 1}_mfma')
        ST, E = 120, 112
        for u in range(4):
            A.I(f'ds_read_b128 {v(ST + 4 * u, 4)}, v{19 + u}')
        for u in range(4):
            A.I(f'v_add_u32 v{19 + u}, 81920, v{19 + u}')
        for q in range(3):
            cg, cu = v(CS + 4 * q, 2), v(CS + 4 * q + 2, 2)
            for u in range(4):
                ac = ACC + 4 * (3 * u + q)
                st = ST + 4 * u
                A.I(f'v_pk_fma_f32 {v(ac, 2)}, {cg}, {v(st, 2)}, {v(ac, 2)} op_sel_hi:[1,0,1]')
                A.I(f'v_pk_mul_f32 {v(E + 2 * u, 2)}, {v(ac, 2)}, {v(st, 2)} op_sel:[0,1] op_sel_hi:[1,1]')
                A.I(f'v_pk_fma_f32 {v(ac + 2, 2)}, {cu}, {v(st, 2)}, {v(ac + 2, 2)} op_sel_hi:[1,0,1]')
            for u in range(4):
                A.I(f'v_exp_f32 v{E + 2 * u}, v{E + 2 * u}')
                A.I(f'v_exp_f32 v{E + 2 * u + 1}, v{E + 2 * u + 1}')
            for u in range(4):
                ac = ACC + 4 * (3 * u + q)
                st = ST + 4 * u
                A.I(f'v_pk_mul_f32 {v(ac, 2)}, {v(ac, 2)}, {v(ac + 2, 2)}')
                A.I(f'v_pk_fma_f32 {v(E + 2 * u, 2)}, {v(E + 2 * u, 2)}, {v(st + 2, 2)}, {v(st + 2, 2)} op_sel_hi:[1,0,0]')
            for u in range(4):
                A.I(f'v_rcp_f32 v{E + 2 * u}, v{E + 2 * u}')
                A.I(f'v_rcp_f32 v{E + 2 * u + 1}, v{E + 2 * u + 1}')
            pk = GR + 4 * (q & 1)
            for u in range(4):
                ac = ACC + 4 * (3 * u + q)
                A.I(f'v_pk_mul_f32 {v(ac, 2)}, {v(ac, 2)}, {v(E + 2 * u, 2)}')
            if q == 2 and hf == 0:
                for x in reads(0):
                    A.I(x)
            for u in range(4):
                ac = ACC + 4 * (3 * u + q)
                A.I(f'v_cvt_pk_bf16_f32 v{pk + u}, v{ac}, v{ac + 1}')
            A.I(f'v_permlane32_swap_b32 v{pk}, v{pk + 2}')
            A.I(f'v_permlane32_swap_b32 v{pk + 1}, v{pk + 3}')
            A.I(f'v_permlane16_swap_b32 v{pk}, v{pk + 1}')
            A.I(f'v_permlane16_swap_b32 v{pk + 2}, v{pk + 3}')
            self.tag_hh = A.I(f'buffer_store_dwordx4 {v(pk, 4)}, v23, {srd(SRD_WS)}, {s(sU0)} offen offset:{256 * q} sc1')
        A.I(f's_add_u32 {s(sU0)}, {s(sU0)}, {64 * HHS}')
        A.I('s_nop 1')
        self.stamp(f'g1h{hf + 1}_epi')

    def g2_half(self, hf):
        A = self.A
        ACC = 32
        if hf == 1:
            self.only_wave(0, lambda: self.poll_c(1))
            self.barrier()
            self.stamp(f'C{hf + 1}_seen')
            for x in self.hh_loads(1, 0, 24):
                A.I(x)
        F = []
        if hf == 0:
            F = [f's_lshl_b32 {s(sT0)}, {s(sR)}, 1', f's_add_u32 {s(sT0)}, {s(sT0)}, {s(sCH)}', f's_lshl_b32 {s(sT0)}, {s(sT0)}, 1',
                 f's_and_b32 {s(sT1)}, {s(sWAVE)}, 1', f's_add_u32 {s(sT0)}, {s(sT0)}, {s(sT1)}', f's_mul_i32 {s(sT0)}, {s(sT0)}, {16 * 1280}',
                 f's_mul_i32 {s(sT1)}, {s(sC2)}, 160', f's_add_u32 {s(sT0)}, {s(sT0)}, {s(sT1)}', f's_lshr_b32 {s(sT1)}, {s(sWAVE)}, 1',
                 f's_lshl_b32 {s(sT1)}, {s(sT1)}, 5', f's_add_u32 {s(sU1)}, {s(sT0)}, {s(sT1)}']
        else:
            F = [f's_add_u32 {s(sU1)}, {s(sU1)}, {1024 * 1280}', 'v_add_u32 v25, 40960, v25', 'v_add_u32 v26, 40960, v26']
        T = 120
        for n in range(3):
            rs = self.RES + 6 * hf + 2 * n
            F += [f'v_lshlrev_b32 v{T + 4 * n}, 16, v{rs}', f'v_and_b32 v{T + 4 * n + 1}, {s(sMASK)}, v{rs}',
                  f'v_lshlrev_b32 v{T + 4 * n + 2}, 16, v{rs + 1}', f'v_and_b32 v{T + 4 * n + 3}, {s(sMASK)}, v{rs + 1}']

        def arrive_c2():
            A.wait_vm(self.tag_hh)
            self.barrier()
            self.signal_c(1)
        for kk in range(12):
            main = []
            for m2 in range(2):
                for t5 in range(5):
                    ac = v(ACC + 4 * (2 * t5 + m2), 4)
                    main.append(f'v_mfma_f32_16x16x32_bf16 {ac}, {R(self.w2reg(5 * kk + t5), 4)}, {R(self.hhreg(2 * kk + m2), 4)}, {ac if kk else 0}')
            fill = []
            if kk == 0:
                fill += F[:12]
            if kk == 1:
                fill += F[12:]
            if hf == 0 and kk == self.c2sig:
                fill.append(arrive_c2)
            self.interleave(main, fill)
        self.stamp(f'g2h{hf + 1}_mfma')
        for e in (0, 2, 4, 6, 8, 1, 3, 5, 7, 9):
            A.I(f'ds_write_b128 v25, {v(ACC + 4 * e, 4)} offset:{1024 * e}')
        A.wait_all(vm=False)
        self.barrier()
        P = 72
        for n in range(3):
            for w in range(4):
                A.I(f'ds_read_b128 {v(P + 16 * n + 4 * w, 4)}, v26 offset:{10240 * w + 4096 * n}')
        Lskip = A.newlabel('L_g2skip')
        for n in range(3):
            if n == 2:
                A.I(f's_cmp_ge_u32 {s(sWAVE)}, 2')
                A.I(f's_cbranch_scc1 {Lskip}')
                st = A.fork()
            p = P + 16 * n
            for h in range(2):
                A.I(f'v_pk_add_f32 {v(p + 2 * h, 2)}, {v(p + 2 * h, 2)}, {v(T + 4 * n + 2 * h, 2)}')
            for h in range(2):
                A.I(f'v_pk_add_f32 {v(p + 2 * h, 2)}, {v(p + 2 * h, 2)}, {v(p + 4 + 2 * h, 2)}')
            for h in range(2):
                A.I(f'v_pk_add_f32 {v(p + 8 + 2 * h, 2)}, {v(p + 8 + 2 * h, 2)}, {v(p + 12 + 2 * h, 2)}')
            for h in range(2):
                A.I(f'v_pk_add_f32 {v(p + 2 * h, 2)}, {v(p + 2 * h, 2)}, {v(p + 8 + 2 * h, 2)}')
            A.I(f'v_cvt_pk_bf16_f32 v{p + 4}, v{p}, v{p + 1}')
            A.I(f'v_cvt_pk_bf16_f32 v{p + 5}, v{p + 2}, v{p + 3}')
            A.I(f'buffer_store_dwordx2 {v(p + 4, 2)}, v27, {srd(SRD_OUT)}, {s(sU1)} offen offset:{64 * n}')
        st2 = A.fork()
        A.label(Lskip)
        A.join([st, st2])
        self.stamp(f'g2h{hf + 1}_done')

    def build(self):
        A = self.A
        self.prologue()
        self.p0()
        A.I(f's_cmp_lt_u32 {s(sIDX)}, 20')
        A.I('s_cbranch_scc1 L_conv')
        st = A.fork()
        self.formatter()
        st1 = A.fork()
        A.I('s_branch L_gemm')
        A.label('L_conv')
        A.restore(st)
        self.conv_prep()
        self.stamp('prep_done')
        self.conv()
        st2 = A.fork()
        A.label('L_gemm')
        A.join([st1, st2])
        if self.stop == 1:
            self.end()
            return self.finish()
        self.g1_setup()
        self.g1_half(0)
        self.g1_half(1)
        self.g2_half(0)
        self.g2_half(1)
        self.flush_stamps()
        return self.finish()

    def finish(self):
        body = self.A.text()
        hdr = open('cdna_kernels/' + NAME + '.s.ref').read().split('; Override launch')[0]
        out = hdr
        out += '; Single persistent kernel, one workgroup per CU (generated by tools/gen.py)\n'
        out += '; @launch grid=(256,1,1) block=(256,1,1) lds=163840\n'
        out += '.amdgcn_target "amdgcn-amd-amdhsa--gfx950"\n.text\n'
        out += f'.globl {NAME}_kernel\n.p2align 8\n.type {NAME}_kernel,@function\n{NAME}_kernel:\n'
        out += body
        out += 'L_end:\n    s_endpgm\nL_code_end:\n'
        out += '.set CODE_PF_MAX, (L_code_end - ' + NAME + '_kernel - 4) & 0xffffff80\n'
        out += f'''.section .rodata,"a"
.p2align 6
.amdhsa_kernel {NAME}_kernel
  .amdhsa_next_free_vgpr 512
  .amdhsa_next_free_sgpr 96
  .amdhsa_accum_offset 256
  .amdhsa_group_segment_fixed_size 0
  .amdhsa_kernarg_size 104
  .amdhsa_user_sgpr_count 2
  .amdhsa_user_sgpr_kernarg_segment_ptr 1
  .amdhsa_system_sgpr_workgroup_id_x 1
  .amdhsa_float_denorm_mode_32 3
.end_amdhsa_kernel
'''
        return out


if __name__ == '__main__':
    import argparse
    ap = argparse.ArgumentParser()
    ap.add_argument('-o', default='cdna_kernels/' + NAME + '.s')
    ap.add_argument('--stop', type=int, default=99)
    ap.add_argument('--prof', action='store_true')
    ap.add_argument('--mapr', type=int, default=2)
    ap.add_argument('--probe', default=None)
    ap.add_argument('--opts', default='')
    args = ap.parse_args()
    g = Gen(stop=args.stop, prof=args.prof, mapr=args.mapr, probe=args.probe.split(',') if args.probe else None,
            **{k.split('=')[0]: int(k.split('=')[1]) for k in args.opts.split(',') if k})
    txt = g.build()
    open(args.o, 'w').write(txt)
    print('instructions', g.A.nins, g.A.stats, 'stamps', g.stamp_names)
```

```python
import sys
sys.path.insert(0, 'tools')
from asmlib import *

NAME = 'sequential_preLN__ssm_conv_h3__glu_gated_swiglu__prompt'

CNT = 0
SY_A, SY_W, SY_B1, SY_B2 = 0, 16384, 32768, 49152
SY_W2 = SY_W + 128
SY_C = 65536
NONCE = 98304
STATS = 102400
T_OFF, TS = 262144, 32896
H_OFF, HS = 5767168, 82048
CSP = 8396800
WF13 = 8650752
WF2 = 12582912
HH, HHS = 14680064, 49408
PROF = HH + 128 * HHS
WS_SIZE = PROF + 262144

TPITCH = 131 * 16
THALF = 8 * TPITCH
TL_ALL = 4 * THALF
KTBL = 0x64175302
RP = 4624
TLB, THB = TL_ALL, 0
KVX = TL_ALL
STL = TL_ALL + 40960
H1A, H1B, H2B = 131072, 0, 49152
RED = 0

sWAVE, sX, sIDX, sB = 3, 4, 5, 6
sSELLO, sSELHI, sMASK = 8, 9, 10
sT0, sT1, sT2, sT3 = 12, 13, 14, 15
sCNT = 11
sD = 16
sR, sC, sC2, sCH = 17, 18, 19, 20
sDV = 21
sU0, sU1, sU2, sU3 = 22, 23, 24, 25
sPROF = 26
sTM = 28
sEX = 30
SRD_X, SRD_K, SRD_V, SRD_SH, SRD_SK, SRD_W1, SRD_W3, SRD_W2, SRD_OUT, SRD_WS, SRD_DBG = 44, 48, 52, 56, 60, 64, 68, 72, 76, 80, 84
sDP = 88
sPC = 90
sPL = 27
sSG = 43
sW13, sW2, sHH = 38, 39, 40
sL0, sL1 = 41, 42
sH0 = 86
sG13, sGH, sG2, sGHH = 44, 49, 54, 57
sRA, sRB, sCSO, sOUT, sOU4 = 84, 85, 87, 60, 61
STG0 = 0
XI, XIP = 2 * TL_ALL, 1344
FW13, FW3D = TL_ALL, 20608
FW2 = TL_ALL + 41216
sFB = 94
sNC = 92


def srd(b):
    return s(b, 4)


class Gen:
    def __init__(self, stop=99, prof=False, mapr=8, probe=None, early_dma=1, b1mu=1, wmu=1, wpace=6, b2k=10, c1k=12, c1sig=5, c2sig=5, w2a=12, clk=0, wsoff=0, fnt=1, skpos=1, warm=0, pace=3, epace=5, lat=3, hpre=8, w2k=4, w2pos=1, fine=0, rot=1, rot2=1, t2pos=1, b1k=6, sk=13, c2k=10, hh2pre=8, b2sig=3, hh2mid=6):
        self.hh2mid = hh2mid
        self.b2sig = b2sig
        self.rot, self.rot2, self.t2pos, self.b1k, self.sk, self.c2k, self.hh2pre = rot, rot2, t2pos, b1k, sk, c2k, hh2pre
        self.fine = fine
        self.w2pos = w2pos
        self.epace, self.lat, self.hpre, self.w2k = epace, lat, hpre, w2k
        self.skpos, self.warm, self.pace = skpos, warm, pace
        self.nearly = wpace * (7 - wmu)
        self.fnt = 'nt ' if fnt else ''
        self.wsoff = wsoff
        self.clk = clk
        self.probe = probe
        self.early_dma, self.b1mu, self.wmu, self.wpace = early_dma, b1mu, wmu, wpace
        self.b2k, self.c1k, self.c1sig, self.c2sig, self.w2a = b2k, c1k, c1sig, c2sig, w2a
        self.A = Asm()
        self.stop = stop
        self.prof = prof
        self.mapr = mapr
        self.nstamp = 0
        self.stamp_names = []

    def stamp(self, name, fine=0):
        if self.probe and name in self.probe:
            k = 96 if name == self.probe[0] else 98
            self.A.I(f's_memrealtime {s(k, 2)}')
            self.A.hard_wait('lgkmcnt(0)')
        if not self.prof:
            return
        if fine and fine != self.fine:
            return
        A = self.A
        if name in self.stamp_names:
            idx = self.stamp_names.index(name)
        else:
            idx = len(self.stamp_names)
            self.stamp_names.append(name)
        assert idx < 63
        A._push(Ins(f'v_writelane_b32 v18, {s(sTM)}, {s(sPROF)}'.replace(s(sPROF), 'm0') if False else f's_nop 0'))
        A.lines.pop()
        A.lines.append(f'    s_mov_b32 s95, m0')
        A.lines.append(f'    s_mov_b32 m0, {s(sPROF)}')
        A.lines.append(f'    v_writelane_b32 v18, {s(sTM)}, m0')
        A.lines.append(f'    s_mov_b32 m0, s95')
        A.lines.append(f'    s_mov_b32 {s(sPROF)}, {idx}')
        A.lines.append(f'    {"s_memtime" if self.clk else "s_memrealtime"} {s(sTM, 2)}')
        if not fine:
            A.hard_wait('lgkmcnt(0)')

    def flush_stamps(self):
        if self.probe:
            A = self.A
            A.I('s_cmp_lg_u32 s2, 9')
            A.I('s_cbranch_scc1 L_end')
            A.I('s_sub_u32 s98, s98, s96')
            A.I('s_mul_i32 s98, s98, 10')
            A.I('s_memrealtime s[96:97]')
            A.hard_wait('lgkmcnt(0)')
            A.label('L_probe')
            A.I(f's_memrealtime {s(sTM, 2)}')
            A.hard_wait('lgkmcnt(0)')
            A.I(f's_sub_u32 {s(sTM)}, {s(sTM)}, s96')
            A.I(f's_cmp_lt_u32 {s(sTM)}, s98')
            A.I('s_cbranch_scc1 L_probe')
        if not self.prof:
            return
        A = self.A
        A.hard_wait('lgkmcnt(0)')
        A.lines.append(f'    s_mov_b32 m0, {s(sPROF)}')
        A.lines.append(f'    v_writelane_b32 v18, {s(sTM)}, m0')
        A.I(f's_lshl_b32 {s(sT0)}, s2, 2')
        A.I(f's_add_u32 {s(sT0)}, {s(sT0)}, {s(sWAVE)}')
        A.I(f's_lshl_b32 {s(sT0)}, {s(sT0)}, 8')
        A.I(f's_add_u32 {s(sT0)}, {s(sT0)}, {PROF}')
        A.I('v_lshlrev_b32 v252, 2, v1')
        A.I(f'buffer_store_dword v18, v252, {srd(SRD_WS)}, {s(sT0)} offen')
        A.I('s_mov_b64 exec, -1')

    def interleave(self, main, fill, per=2, start=0):
        A = self.A
        n = len(main) - start
        k = 0
        for i, m in enumerate(main):
            self.emit(m)
            if i < start:
                continue
            upto = min(len(fill), k + per, -(-len(fill) * (i - start + 1) // n) if n else len(fill))
            while k < upto:
                self.emit(fill[k])
                k += 1
        while k < len(fill):
            self.emit(fill[k])
            k += 1

    def interleave2(self, main, fill, items, start=0, head=()):
        n = len(main)
        gaps = [[] for _ in range(n)]
        full = [False] * n
        m = len(items)
        for i, it in enumerate(items):
            g = min(n - 1, max(1, int((i + 0.7) * n / m)))
            assert not full[g]
            gaps[g - 1] += it[:-1]
            gaps[g].append(it[-1])
            full[g] = True
        if head:
            full[0] = True
        room = [0 if (full[g] or g < start) else max(0, 2 - len(gaps[g])) for g in range(n)]
        tot = sum(room)
        k = 0
        acc = 0
        for g in range(n):
            self.emit(main[g])
            if g == 0:
                for x in head:
                    self.emit(x)
            acc += room[g]
            upto = min(len(fill), k + room[g], -(-len(fill) * acc // tot) if tot else 0)
            while k < upto:
                self.emit(fill[k])
                k += 1
            for x in gaps[g]:
                self.emit(x)
        while k < len(fill):
            self.emit(fill[k])
            k += 1

    def emit(self, x):
        if callable(x):
            x()
        else:
            self.A.I(x)

    def only_wave(self, w, body):
        A = self.A
        L = A.newlabel('L_skip')
        A.I(f's_cmp_lg_u32 {s(sWAVE)}, {w}')
        A.I(f's_cbranch_scc1 {L}')
        st = A.fork()
        body()
        st2 = A.fork()
        A.label(L)
        A.join([st, st2])

    PV = 252

    def poll_test(self):
        A = self.A
        P = self.PV
        A.I(f'v_cmp_eq_u64 vcc, {s(sNC, 2)}, {v(P, 2)}')
        A.I(f'v_cmp_eq_u64 {s(sEX, 2)}, {s(sNC, 2)}, {v(P + 2, 2)}')
        A.I(f's_and_b64 vcc, vcc, {s(sEX, 2)}')
        A.I('s_cmp_eq_u64 vcc, -1')

    def poll_loop(self, voff):
        A = self.A
        Ll, Ld = A.newlabel('L_poll'), A.newlabel('L_polld')
        A.I(f's_mov_b32 {s(sCNT)}, 0x20000')
        A.label(Ll)
        A.I(f'buffer_load_dwordx4 {v(self.PV, 4)}, v{voff}, {srd(SRD_WS)}, {s(sPL)} offen sc1')
        A.hard_wait('vmcnt(0)')
        self.poll_test()
        A.I(f's_cbranch_scc1 {Ld}')
        A.I(f's_sub_u32 {s(sCNT)}, {s(sCNT)}, 1')
        A.I(f's_cbranch_scc0 {Ll}')
        A.label(Ld)

    def poll_kind(self, kind, reg=5):
        return [x.replace('v5', f'v{reg}') for x in self.poll_kind5(kind)]

    def poll_kind5(self, kind):
        L = ['v_and_b32 v5, 7, v1']
        if kind == 'B':
            L.append('v_min_u32 v5, 4, v5')
        if kind == 'W':
            L.append('v_max_u32 v5, 5, v5')
        L += [f'v_and_b32 v{self.PV}, 56, v1', f'v_lshlrev_b32 v{self.PV}, 5, v{self.PV}', f'v_lshl_add_u32 v5, v5, 4, v{self.PV}',
              f's_lshl_b32 {s(sPL)}, {s(sX)}, 11', f'v_add_u32 v5, {s(sPL)}, v5']
        return L

    def signal_global(self, sy):
        A = self.A
        A.I(f's_mov_b32 {s(sSG)}, {CNT + sy}')
        A.I('s_mov_b64 exec, 3')
        A.I(f'buffer_atomic_swap v6, v4, {srd(SRD_WS)}, {s(sSG)} offen sc1')
        A.I('s_mov_b64 exec, -1')

    def poll_global(self, sy):
        A = self.A
        A.I(f's_mov_b32 {s(sPL)}, {CNT + sy}')
        self.poll_loop(5)

    def signal_c(self, half):
        A = self.A
        A.I(f's_mov_b32 {s(sSG)}, {CNT + SY_C + half * 16384}')
        A.I('s_mov_b64 exec, 1')
        A.I(f'buffer_atomic_swap v6, v3, {srd(SRD_WS)}, {s(sSG)} offen sc1')
        A.I('s_mov_b64 exec, -1')

    def poll_c(self, half):
        A = self.A
        A.I(f's_mov_b32 {s(sPL)}, {CNT + SY_C + half * 16384}')
        self.poll_loop(7)

    def apoll_issue(self, voff, off):
        A = self.A
        A.I(f's_mov_b32 {s(sPL)}, {off}')
        A.I(f'buffer_load_dwordx4 {v(self.PV, 4)}, v{voff}, {srd(SRD_WS)}, {s(sPL)} offen sc1')

    def apoll_check(self, voff):
        A = self.A
        L = A.newlabel('L_ok')
        self.poll_test()
        A.I(f's_cbranch_scc1 {L}')
        st = A.fork()
        self.poll_loop(voff)
        A.label(L)
        A.restore(st)

    def barrier(self):
        self.A.I('s_barrier')

    def end(self):
        self.flush_stamps()
        self.A.I('s_branch L_end')

    def prologue(self):
        A = self.A
        A.I('s_cmp_ge_u32 s2, 256')
        A.I('s_cbranch_scc1 L_end')
        for b, off in ((SRD_K, 8), (SRD_V, 16), (SRD_X, 0), (SRD_SH, 24), (SRD_SK, 32), (SRD_WS, 96),
                       (SRD_W1, 56), (SRD_W3, 64), (SRD_W2, 72), (SRD_OUT, 80), (sDP, 40)):
            A.I(f's_load_dwordx2 {s(b, 2)}, s[0:1], {off}')
        A.I('v_lshrrev_b32 v2, 6, v0')
        A.I('v_and_b32 v1, 63, v0')
        A.I(f'v_readfirstlane_b32 {s(sWAVE)}, v2')
        A.I(f's_and_b32 {s(sX)}, s2, 7')
        A.I(f's_lshr_b32 {s(sIDX)}, s2, 3')
        A.I(f's_lshl_b32 {s(sB)}, {s(sX)}, 5')
        A.I(f's_add_u32 {s(sB)}, {s(sB)}, {s(sIDX)}')
        for b, size in ((SRD_K, 2621440), (SRD_V, 2621440), (SRD_X, 2621440), (SRD_SH, 5120), (SRD_WS, WS_SIZE),
                        (SRD_W1, 1966080), (SRD_W3, 1966080), (SRD_W2, 1966080), (SRD_OUT, 2621440)):
            A.I(f's_mov_b32 {s(b + 2)}, {size}')
            A.I(f's_mov_b32 {s(b + 3)}, 0x20000')
        A.I(f's_mov_b32 {s(SRD_SK + 3)}, 0x20000')
        A.I(f's_mul_i32 {s(sD)}, {s(sX)}, 20')
        A.I(f's_add_u32 {s(sD)}, {s(sD)}, {s(sIDX)}')
        A.I(f's_lshl_b32 {s(sD)}, {s(sD)}, 2')
        A.I(f's_add_u32 {s(sD)}, {s(sD)}, {s(sWAVE)}')
        A.I(f's_cmp_lt_u32 {s(sIDX)}, 20')
        A.I(f's_cselect_b32 {s(SRD_SK + 2)}, 4096, 0')
        A.I(f's_cselect_b32 {s(SRD_W1 + 2)}, 0, {s(SRD_W1 + 2)}')
        A.I(f's_cselect_b32 {s(SRD_W3 + 2)}, 0, {s(SRD_W3 + 2)}')
        A.I(f's_cselect_b32 {s(sFB)}, {163840 - FW13}, 0')
        A.I(f's_cselect_b32 {s(sD)}, {s(sD)}, 0')
        A.I(f's_mul_i32 {s(sT1)}, {s(sB)}, 10240')
        A.I(f's_mov_b32 {s(sSELLO)}, 0x05040100')
        A.I(f's_mov_b32 {s(sSELHI)}, 0x07060302')
        A.I(f's_mov_b32 {s(sMASK)}, 0xffff0000')
        A.I(f's_lshl_b32 {s(sT0)}, {s(sD)}, 12')
        A.wait_all()
        A.I(f's_add_u32 {s(SRD_SK)}, {s(SRD_SK)}, {s(sT0)}')
        A.I(f's_addc_u32 {s(SRD_SK + 1)}, {s(SRD_SK + 1)}, 0')
        if self.wsoff:
            A.I(f's_add_u32 {s(SRD_WS)}, {s(SRD_WS)}, {self.wsoff << 20}')
            A.I(f's_addc_u32 {s(SRD_WS + 1)}, {s(SRD_WS + 1)}, 0')
        if self.prof:
            A.I('v_mov_b32 v18, 0')
            A.I(f's_mov_b32 {s(sPROF)}, 63')
            A.I(f's_mov_b32 {s(sTM)}, 0')
            A.I('s_mov_b32 m0, 0')
        self.stamp('start')
        A.I(f's_load_dword {s(sNC)}, {s(SRD_WS, 2)}, {NONCE}')
        A.I(f's_lshl_b32 {s(sT2)}, {s(sD)}, 1')
        A.I(f's_and_b32 {s(sT2)}, {s(sT2)}, -4')
        A.I(f's_load_dword {s(sDV)}, {s(sDP, 2)}, {s(sT2)}')

    def common_consts(self):
        A = self.A
        A.I('v_lshlrev_b32 v2, 4, v1')
        A.I(f's_lshl_b32 {s(sT2)}, {s(sWAVE)}, 12')
        A.I(f's_lshl_b32 {s(sT3)}, {s(sX)}, 8')
        A.I(f's_add_u32 {s(sT2)}, {s(sT2)}, {s(sT3)}')
        A.I(f's_lshl_b32 {s(sT3)}, {s(sIDX)}, 2')
        A.I(f's_add_u32 {s(sT2)}, {s(sT2)}, {s(sT3)}')
        A.I(f'v_lshl_add_u32 v4, v1, 11, {s(sT2)}')
        if self.mapr == 2:
            A.I(f's_lshr_b32 {s(sR)}, {s(sIDX)}, 4')
            A.I(f's_lshl_b32 {s(sT2)}, {s(sX)}, 1')
            A.I(f's_add_u32 {s(sR)}, {s(sR)}, {s(sT2)}')
            A.I(f's_and_b32 {s(sC)}, {s(sIDX)}, 15')
        elif self.mapr == 8:
            A.I(f's_lshr_b32 {s(sR)}, {s(sIDX)}, 2')
            A.I(f's_lshr_b32 {s(sT2)}, {s(sX)}, 2')
            A.I(f's_lshl_b32 {s(sT2)}, {s(sT2)}, 3')
            A.I(f's_add_u32 {s(sR)}, {s(sR)}, {s(sT2)}')
            A.I(f's_and_b32 {s(sC)}, {s(sIDX)}, 3')
            A.I(f's_and_b32 {s(sT2)}, {s(sX)}, 3')
            A.I(f's_lshl_b32 {s(sT2)}, {s(sT2)}, 2')
            A.I(f's_add_u32 {s(sC)}, {s(sC)}, {s(sT2)}')
        else:
            A.I(f's_lshr_b32 {s(sR)}, {s(sIDX)}, 3')
            A.I(f's_lshr_b32 {s(sT2)}, {s(sX)}, 1')
            A.I(f's_lshl_b32 {s(sT2)}, {s(sT2)}, 2')
            A.I(f's_add_u32 {s(sR)}, {s(sR)}, {s(sT2)}')
            A.I(f's_and_b32 {s(sC)}, {s(sIDX)}, 7')
            A.I(f's_and_b32 {s(sT2)}, {s(sX)}, 1')
            A.I(f's_lshl_b32 {s(sT2)}, {s(sT2)}, 3')
            A.I(f's_add_u32 {s(sC)}, {s(sC)}, {s(sT2)}')
        A.I(f's_and_b32 {s(sC2)}, {s(sC)}, 7')
        A.I(f's_lshr_b32 {s(sCH)}, {s(sC)}, 3')
        nrep = self.mapr // 2
        A.I(f's_lshl_b32 {s(sT2)}, {s(sR)}, 10')
        A.I(f's_lshl_b32 {s(sT3)}, {s(sWAVE)}, 8')
        A.I(f's_add_u32 {s(sT3)}, {s(sT3)}, {s(sT2)}')
        A.I(f's_lshl_b32 {s(sSG)}, {s(sC)}, 2')
        A.I(f's_add_u32 {s(sT3)}, {s(sT3)}, {s(sSG)}')
        A.I(f's_cmp_lt_u32 {s(sWAVE)}, {nrep}')
        A.I(f's_cselect_b32 {s(sT3)}, {s(sT3)}, 0x7ff00000')
        A.I(f'v_mov_b32 v3, {s(sT3)}')
        A.I(f's_lshr_b32 {s(sT3)}, {s(sC)}, {({1: 4, 2: 3, 4: 2})[nrep]}')
        A.I(f's_lshl_b32 {s(sT3)}, {s(sT3)}, 8')
        A.I(f's_add_u32 {s(sT2)}, {s(sT2)}, {s(sT3)}')
        A.I('v_and_b32 v7, 3, v1')
        A.I(f'v_lshl_add_u32 v7, v7, 4, {s(sT2)}')
        A.I(f's_lshl_b32 {s(sT2)}, {s(sC)}, 2')
        A.I(f's_add_u32 {s(sT2)}, {s(sT2)}, {s(sWAVE)}')
        A.I(f's_mul_i32 {s(sW13)}, {s(sT2)}, 61440')
        A.I(f's_add_u32 {s(sW13)}, {s(sW13)}, {WF13}')
        A.I(f's_lshl_b32 {s(sT2)}, {s(sC2)}, 2')
        A.I(f's_add_u32 {s(sT2)}, {s(sT2)}, {s(sWAVE)}')
        A.I(f's_mul_i32 {s(sW2)}, {s(sT2)}, 61440')
        A.I(f's_add_u32 {s(sW2)}, {s(sW2)}, {WF2}')
        A.I(f's_lshl_b32 {s(sT2)}, {s(sR)}, 1')
        A.I(f's_add_u32 {s(sT2)}, {s(sT2)}, {s(sCH)}')
        A.I(f's_mul_i32 {s(sHH)}, {s(sT2)}, {2 * HHS}')
        A.I(f's_mul_i32 {s(sT2)}, {s(sWAVE)}, 12288')
        A.I(f's_add_u32 {s(sHH)}, {s(sHH)}, {s(sT2)}')
        A.I(f's_add_u32 {s(sHH)}, {s(sHH)}, {HH}')

    XS = 220

    def ssmk_loads(self):
        A = self.A
        self.fmt_early()
        A.I('v_subrev_u32 v5, 16, v2')
        for i in range(4):
            if i == 0:
                A.I(f'buffer_load_dwordx4 {v(self.XS, 4)}, v5, {srd(SRD_SK)}, 0 offen nt')
            else:
                A.I(f'buffer_load_dwordx4 {v(self.XS + 8 * i, 4)}, v2, {srd(SRD_SK)}, 0 offen offset:{1024 * i - 16} nt')
            self.tag_sk = A.I(f'buffer_load_dwordx4 {v(self.XS + 8 * i + 4, 4)}, v2, {srd(SRD_SK)}, 0 offen offset:{1024 * i} nt')

    def p0_kv(self):
        A = self.A
        SH, KR, VR, S, KF, KV, O, VF = 8, 20, 42, 70, 86, 130, 86, 174
        A.I('v_lshlrev_b32 v2, 3, v0')
        A.I(f'v_add_u32 v166, {s(sT1)}, v2')
        A.I('v_subrev_u32 v167, 3840, v166')
        A.I('v_lshlrev_b32 v168, 5, v0')
        A.I('v_cmp_gt_u32 vcc, 160, v0')
        A.I(f's_mov_b32 {s(sT2)}, 5120')
        A.I('s_and_b64 exec, exec, vcc')
        for j in range(3):
            A.I(f'buffer_load_dwordx2 {v(KR + 2 * j, 2)}, v167, {srd(SRD_K)}, 0 offen offset:{1280 * j} nt')

        def rows(dst, sr):
            for j in range(8):
                so = '0' if j < 4 else s(sT2)
                A.I(f'buffer_load_dwordx2 {v(dst + 2 * j, 2)}, v166, {srd(sr)}, {so} offen offset:{1280 * (j & 3)} nt')
        rows(KR + 6, SRD_K)
        A.I(f'buffer_load_dwordx4 {v(SH, 4)}, v168, {srd(SRD_SH)}, 0 offen')
        A.I(f'buffer_load_dwordx4 {v(SH + 4, 4)}, v168, {srd(SRD_SH)}, 0 offen offset:16')
        rows(VR, SRD_V)
        A.I(f's_mov_b64 {s(sEX, 2)}, exec')
        A.I('s_mov_b64 exec, -1')
        self.common_consts()
        if self.skpos == 0:
            self.ssmk_loads()
        A.I('v_mul_u32_u24 v169, 144, v0')
        A.I(f'v_add_u32 v169, {STG0}, v169')
        for j in range(11):
            for e in range(2):
                A.I(f'v_lshlrev_b32 v{KF + 4 * j + 2 * e}, 16, v{KR + 2 * j + e}')
                A.I(f'v_and_b32 v{KF + 4 * j + 2 * e + 1}, {s(sMASK)}, v{KR + 2 * j + e}')
            if j == 0 and self.skpos == 1:
                self.ssmk_loads()
        for c in range(4):
            A.I(f'v_lshlrev_b32 v{S + 0 + c}, 16, v{SH + 2 * c}')
            A.I(f'v_and_b32 v{S + 4 + c}, {s(sMASK)}, v{SH + 2 * c}')
            A.I(f'v_lshlrev_b32 v{S + 8 + c}, 16, v{SH + 2 * c + 1}')
            A.I(f'v_and_b32 v{S + 12 + c}, {s(sMASK)}, v{SH + 2 * c + 1}')
        for tap in range(4):
            for t in range(8):
                for e in range(2):
                    d = v(KV + 4 * t + 2 * e, 2)
                    kk = v(KF + 4 * (t + 3 - tap) + 2 * e, 2)
                    ss = v(S + 4 * tap + 2 * e, 2)
                    if tap == 0:
                        A.I(f'v_pk_mul_f32 {d}, {kk}, {ss}')
                    else:
                        A.I(f'v_pk_fma_f32 {d}, {kk}, {ss}, {d}')
        for t in range(8):
            for e in range(2):
                A.I(f'v_lshlrev_b32 v{VF + 4 * t + 2 * e}, 16, v{VR + 2 * t + e}')
                A.I(f'v_and_b32 v{VF + 4 * t + 2 * e + 1}, {s(sMASK)}, v{VR + 2 * t + e}')
        self.stamp('kv_landed')
        for t in range(8):
            for e in range(2):
                d = v(KV + 4 * t + 2 * e, 2)
                A.I(f'v_pk_mul_f32 {d}, {d}, {v(VF + 4 * t + 2 * e, 2)}')
        A.I(f's_mov_b64 exec, {s(sEX, 2)}')
        for c in range(4):
            for e in range(4):
                A.I(f'v_cvt_pk_bf16_f32 v{O + 8 * c + e}, v{KV + 4 * (7 - 2 * e) + c}, v{KV + 4 * (6 - 2 * e) + c}')
            A.I(f'ds_write_b128 v169, {v(O + 8 * c, 4)} offset:{32 * c}')
        A.I('s_mov_b64 exec, -1')

    def fmt_unit_off(self, dst, u):
        A = self.A
        A.I(f's_mul_i32 {s(sT3)}, {u}, 5')
        A.I(f's_add_u32 {s(sT3)}, {s(sT3)}, {s(sU0)}')
        A.I(f's_sub_u32 {s(dst)}, {s(sT3)}, 24')
        A.I(f's_min_u32 {s(sT3)}, {s(sT3)}, {s(dst)}')
        A.I(f's_add_u32 {s(dst)}, {s(sU1)}, {u}')
        A.I(f's_mul_i32 {s(dst)}, {s(dst)}, {32 * 24}')
        A.I(f's_add_u32 {s(dst)}, {s(dst)}, {s(sT3)}')
        A.I(f's_lshl_b32 {s(dst)}, {s(dst)}, 7')

    def w13_dma_pair(self):
        A = self.A
        A.I(f'buffer_load_dwordx4 v219, {srd(SRD_W1)}, {s(sT2)} offen {self.fnt}lds')
        A.I(f's_add_u32 m0, m0, {FW3D}')
        return A.I(f'buffer_load_dwordx4 v219, {srd(SRD_W3)}, {s(sT2)} offen {self.fnt}lds')

    def fmt_early(self):
        A = self.A
        self.fmt_ids()
        A.I('v_lshrrev_b32 v219, 3, v1')
        A.I('v_mul_u32_u24 v219, 3072, v219')
        A.I('v_and_b32 v218, 7, v1')
        A.I('v_lshl_add_u32 v219, v218, 4, v219')
        A.I(f's_lshr_b32 {s(sT0)}, {s(sWAVE)}, 1')
        self.fmt_unit_off(sT2, s(sT0))
        A.I(f's_and_b32 {s(sT3)}, {s(sWAVE)}, 1')
        A.I(f's_mul_i32 {s(sT3)}, {s(sT3)}, {16 * 3072}')
        A.I(f's_add_u32 {s(sT2)}, {s(sT2)}, {s(sT3)}')
        A.I(f's_lshl_b32 {s(sT0)}, {s(sWAVE)}, 11')
        A.I(f's_add_u32 {s(sT0)}, {s(sT0)}, {s(sFB)}')
        A.I(f's_add_u32 m0, {s(sT0)}, {FW13}')
        self.w13_dma_pair()
        A.I(f's_add_u32 m0, {s(sT0)}, {FW13 + 1024}')
        A.I(f's_add_u32 {s(sT2)}, {s(sT2)}, {8 * 3072}')
        self.w13_dma_pair()

    def fmt_late(self):
        A = self.A
        A.I(f's_mul_i32 {s(sT1)}, {s(sWAVE)}, {8 * 3072}')
        A.I(f's_lshl_b32 {s(sT0)}, {s(sWAVE)}, 10')
        for u in range(2, 5):
            self.fmt_unit_off(sT2, u)
            A.I(f's_add_u32 {s(sT2)}, {s(sT2)}, {s(sT1)}')
            A.I(f's_add_u32 m0, {s(sT0)}, {FW13 + 4096 * u}')
            t13 = self.w13_dma_pair()
        return t13

    def fmt_w2dma(self):
        A = self.A
        A.I(f's_lshl_b32 {s(sT2)}, {s(sU2)}, 2')
        A.I(f's_add_u32 {s(sT2)}, {s(sT2)}, {s(sWAVE)}')
        A.I(f's_mul_i32 {s(sT2)}, {s(sT2)}, {16 * 1280}')
        A.I(f's_mul_i32 {s(sT3)}, {s(sU3)}, 320')
        A.I(f's_add_u32 {s(sT2)}, {s(sT2)}, {s(sT3)}')
        A.I(f's_mul_i32 {s(sT0)}, {s(sWAVE)}, 5120')
        A.I(f's_add_u32 m0, {s(sT0)}, {FW2}')
        for i in range(5):
            A.I(f'v_add_u32 v121, {64 * i}, v1')
            A.I('v_mul_u32_u24 v122, 3277, v121')
            A.I('v_lshrrev_b32 v122, 16, v122')
            A.I('v_mul_u32_u24 v122, 960, v122')
            A.I('v_lshl_add_u32 v123, v121, 4, v122')
            t2 = A.I(f'buffer_load_dwordx4 v123, {srd(SRD_W2)}, {s(sT2)} offen {self.fnt}lds')
            A.I('s_add_u32 m0, m0, 1024')
        return t2

    def fmt_ids(self):
        A = self.A
        A.I(f's_mul_i32 {s(sU2)}, {s(sX)}, 12')
        A.I(f's_add_u32 {s(sU2)}, {s(sU2)}, {s(sIDX)}')
        A.I(f's_sub_u32 {s(sU2)}, {s(sU2)}, 20')
        A.I(f's_lshr_b32 {s(sU1)}, {s(sX)}, 1')
        A.I(f's_mul_i32 {s(sU0)}, {s(sU1)}, 24')
        A.I(f's_sub_u32 {s(sU0)}, {s(sU2)}, {s(sU0)}')
        A.I(f's_mul_i32 {s(sU1)}, {s(sU1)}, 5')
        A.I(f's_and_b32 {s(sU3)}, {s(sU2)}, 3')
        A.I(f's_lshr_b32 {s(sU2)}, {s(sU2)}, 2')

    def p0_stats(self):
        A = self.A
        FR, G_, S_, ONE, XT = 20, 60, 64, 68, 72
        A.I('v_and_b32 v11, 7, v1')
        A.I('v_mul_u32_u24 v8, 1280, v11')
        A.I('v_bfe_u32 v9, v1, 3, 1')
        A.I('v_lshlrev_b32 v9, 6, v9')
        A.I('v_and_or_b32 v9, v1, 48, v9')
        A.I('v_add_u32 v8, v8, v9')
        for f in range(10):
            A.I(f'buffer_load_dwordx4 {v(FR + 4 * f, 4)}, v8, {srd(SRD_X)}, {s(sT1)} offen offset:{128 * f} nt')
        self.stamp('x_issued')
        A.I(f'v_mul_u32_u24 v8, {XIP}, v11')
        A.I(f'v_add_u32 v8, {XI}, v8')
        A.I('v_add_u32 v8, v8, v9')
        A.I(f's_getpc_b64 {s(sPC, 2)}')
        A.label('L_pc')
        A.I(f's_sub_u32 {s(sPC)}, {s(sPC)}, L_pc-{NAME}_kernel')
        A.I(f's_subb_u32 {s(sPC + 1)}, {s(sPC + 1)}, 0')
        A.I(f's_lshl_b32 {s(sT2)}, {s(sIDX)}, 11')
        A.I('v_lshlrev_b32 v9, 7, v1')
        A.I(f'v_add_u32 v9, {s(sT2)}, v9')
        A.I('v_min_u32 v9, CODE_PF_MAX, v9')
        A.I('s_mov_b64 exec, 0xffff')
        A.I(f'global_load_dword v{self.PV}, v9, {s(sPC, 2)}')
        A.I('s_mov_b64 exec, -1')
        self.common_consts()
        if self.skpos == 0:
            self.ssmk_loads()
        A.I('v_bfe_u32 v9, v1, 2, 2')
        A.I(f'v_mul_u32_u24 v9, {XIP}, v9')
        A.I('v_lshrrev_b32 v10, 4, v1')
        A.I('v_lshl_add_u32 v9, v10, 5, v9')
        A.I('v_and_b32 v11, 3, v1')
        A.I('v_lshl_add_u32 v9, v11, 3, v9')
        A.I(f'v_add_u32 v9, {XI}, v9')
        A.I('v_lshrrev_b32 v15, 2, v1')
        A.I('v_mul_u32_u24 v15, 144, v15')
        A.I('v_lshl_add_u32 v15, v11, 5, v15')
        A.I(f'v_add_u32 v15, {STG0 + 16}, v15')
        A.I('v_and_b32 v10, 15, v1')
        A.I('v_lshrrev_b32 v12, 2, v10')
        A.I('v_lshl_add_u32 v12, v12, 4, v10')
        A.I('v_lshlrev_b32 v12, 2, v12')
        for i in range(4):
            A.I(f'v_mov_b32 v{ONE + i}, 0x3f803f80')
        for f in range(10):
            fr = v(FR + 4 * f, 4)
            A.I(f'ds_write_b128 v8, {fr} offset:{128 * f}')
            if f == 0 and self.skpos == 1:
                self.ssmk_loads()
            A.I(f'v_mfma_f32_16x16x32_bf16 {v(G_, 4)}, {fr}, {fr}, {v(G_, 4) if f else 0}')
            A.I(f'ds_read_b64_tr_b16 {v(XT + 4 * f, 2)}, v9 offset:{128 * f}')
            A.I(f'v_mfma_f32_16x16x32_bf16 {v(S_, 4)}, {v(ONE, 4)}, {fr}, {v(S_, 4) if f else 0}')
            A.I(f'ds_read_b64_tr_b16 {v(XT + 4 * f + 2, 2)}, v9 offset:{128 * f + 4 * XIP}')
        self.stamp('kv_landed')
        for f in range(10):
            A.I(f'ds_write_b128 v15, {v(XT + 4 * f, 4)} offset:{2304 * f}')
        for i in range(1, 4):
            A.I(f'v_cmp_eq_u32 vcc, {i}, v11')
            A.I(f'v_cndmask_b32 v{G_}, v{G_}, v{G_ + i}, vcc')
        A.I(f'ds_bpermute_b32 v13, v12, v{G_}')
        A.I(f'v_add_f32_dpp v14, v{S_}, v{S_} row_ror:8 row_mask:0xf bank_mask:0xf')
        A.I('v_add_f32_dpp v13, v13, v13 row_ror:8 row_mask:0xf bank_mask:0xf')
        A.I('v_mul_f32 v14, 0x3acccccd, v14')
        A.I('v_mul_f32 v13, 0x3acccccd, v13')
        A.I('v_fma_f32 v13, -v14, v14, v13')
        A.I('v_max_f32 v13, 0, v13')
        A.I('v_add_f32 v13, 0x3727c5ac, v13')
        A.I('v_rsq_f32 v13, v13')
        A.I('v_cmp_gt_u32 vcc, 8, v10')
        A.I('v_mul_f32_e64 v14, -v14, v13')
        A.I('v_cndmask_b32 v13, v14, v13, vcc')
        A.I('v_lshlrev_b32 v9, 2, v1')
        A.I(f's_lshl_b32 {s(sT2)}, {s(sB)}, 6')
        A.I(f's_add_u32 {s(sT2)}, {s(sT2)}, {STATS}')
        A.I('s_mov_b64 exec, 0xffff')
        A.I(f'buffer_store_dword v13, v9, {srd(SRD_WS)}, {s(sT2)} offen sc1')
        A.I('s_mov_b64 exec, -1')

    def p0(self):
        A = self.A
        A.I(f's_cmp_lg_u32 {s(sWAVE)}, 3')
        A.I('s_cbranch_scc1 L_p0_kv')
        st = A.fork()
        self.p0_stats()
        st1 = A.fork()
        A.I('s_branch L_p0_join')
        A.label('L_p0_kv')
        A.restore(st)
        self.p0_kv()
        st2 = A.fork()
        A.label('L_p0_join')
        A.join([st1, st2])
        RB = 130
        A.I('v_lshrrev_b32 v170, 3, v1')
        A.I('v_and_b32 v171, 7, v1')
        A.I('v_lshlrev_b32 v171, 4, v171')
        A.I('v_mul_u32_u24 v172, 144, v170')
        A.I(f's_mul_i32 {s(sT3)}, {s(sWAVE)}, {40 * 144}')
        A.I(f's_add_u32 {s(sT3)}, {s(sT3)}, {STG0}')
        A.I(f'v_add3_u32 v172, v172, v171, {s(sT3)}')
        A.I(f'v_mul_u32_u24 v173, {TS}, v170')
        A.I('v_add_u32 v173, v173, v171')
        A.I(f's_mul_i32 {s(sT2)}, {s(sWAVE)}, {40 * TS}')
        A.I(f's_lshl_b32 {s(sT3)}, {s(sB)}, 7')
        A.I(f's_add_u32 {s(sT2)}, {s(sT2)}, {s(sT3)}')
        A.I(f's_add_u32 {s(sT2)}, {s(sT2)}, {T_OFF}')
        A.hard_wait('lgkmcnt(0)')
        self.barrier()
        for i in range(5):
            A.I(f'ds_read_b128 {v(RB + 4 * i, 4)}, v172 offset:{1152 * i}')
        A.I(f's_mul_i32 {s(sNC)}, {s(sNC)}, 1664525')
        A.I(f's_add_u32 {s(sNC)}, {s(sNC)}, 1013904223')
        A.I(f's_mov_b32 {s(sNC + 1)}, {s(sNC)}')
        A.I(f'v_mov_b32 v6, {s(sNC)}')
        for i in range(5):
            self.tag_t = A.I(f'buffer_store_dwordx4 {v(RB + 4 * i, 4)}, v173, {srd(SRD_WS)}, {s(sT2)} offen sc1')
            A.I(f's_add_u32 {s(sT2)}, {s(sT2)}, {8 * TS}')
        self.stamp('p0_stores')

    def arrive_a(self):
        A = self.A
        A.wait_vm(self.tag_t)
        self.stamp('p0_drained')
        self.barrier()
        self.signal_global(SY_A)

    def formatter(self):
        A = self.A
        t13 = self.fmt_late()
        A.I('v_lshrrev_b32 v10, 4, v1')
        A.I('v_lshlrev_b32 v8, 9, v10')
        A.I('v_bfe_u32 v11, v1, 2, 2')
        A.I('v_lshl_add_u32 v8, v11, 5, v8')
        A.I('v_and_b32 v11, 1, v1')
        A.I('v_lshl_add_u32 v8, v11, 4, v8')
        A.I('v_bfe_u32 v11, v1, 1, 1')
        A.I(f'v_mul_u32_u24 v11, {FW3D}, v11')
        A.I(f'v_add_u32 v8, {FW13}, v8')
        A.I('v_add_u32 v8, v8, v11')
        A.I(f's_lshl_b32 {s(sT0)}, {s(sWAVE)}, 2')
        A.I(f'v_add_u32 v9, {s(sT0)}, v8')
        A.I(f's_lshr_b32 {s(sT0)}, {s(sWAVE)}, 1')
        A.I(f's_lshl_b32 {s(sT0)}, {s(sT0)}, 12')
        A.I(f's_and_b32 {s(sT1)}, {s(sWAVE)}, 1')
        A.I(f's_lshl_b32 {s(sT1)}, {s(sT1)}, 3')
        A.I(f's_add_u32 {s(sT0)}, {s(sT0)}, {s(sT1)}')
        A.I(f'v_add_u32 v8, {s(sT0)}, v8')
        A.I('v_bfe_u32 v12, v1, 2, 2')
        A.I('v_lshl_add_u32 v12, v12, 3, v10')
        A.I('v_mul_u32_u24 v12, 320, v12')
        A.I('v_and_b32 v13, 3, v1')
        A.I('v_lshl_add_u32 v12, v13, 3, v12')
        A.I(f's_and_b32 {s(sT0)}, {s(sWAVE)}, 1')
        A.I(f's_mul_i32 {s(sT1)}, {s(sT0)}, 1280')
        A.I(f's_lshr_b32 {s(sT2)}, {s(sWAVE)}, 1')
        A.I(f's_mul_i32 {s(sT3)}, {s(sT2)}, 160')
        A.I(f's_add_u32 {s(sT1)}, {s(sT1)}, {s(sT3)}')
        A.I(f's_add_u32 {s(sT1)}, {s(sT1)}, {FW2}')
        A.I(f'v_add_u32 v12, {s(sT1)}, v12')
        SEL, CSD = 128, 144
        A.I('v_and_b32 v13, 15, v1')
        A.I('v_and_b32 v14, 48, v1')
        A.I('v_lshl_add_u32 v14, v13, 6, v14')
        A.I('v_mov_b32 v15, 0x3f803f80')
        for i in range(4):
            A.I(f'v_cmp_eq_u32 vcc, {i}, v13')
            for e in range(4):
                A.I(f'v_cndmask_b32 v{SEL + 4 * i + e}, 0, v15, vcc')
        self.arrive_a()
        RAW, RA5, OUT = 20, 36, 44
        rowoff = lambda j: ((j & 3) + 16 * (j >> 2)) * 128

        def stores(nfr, raw_of, ubase, uadd, tile_mul, reg0):
            A.I(f's_add_u32 {s(sL0)}, {uadd}, {ubase}')
            self.fmt_unit_off(sT2, s(sL0))
            A.I(f's_lshl_b32 {s(sL1)}, {s(sT3)}, 3')
            A.I(f's_add_u32 {s(sL1)}, {s(sL1)}, {tile_mul}')
            A.I(f's_add_u32 {s(sL0)}, {s(sL0)}, {s(sU1)}')
            A.I(f's_mul_i32 {s(sH0)}, {s(sL0)}, 192')
            A.I(f's_add_u32 {s(sH0)}, {s(sH0)}, {s(sL1)}')
            A.I(f's_lshl_b32 {s(sH0)}, {s(sH0)}, 6')
            A.I(f's_add_u32 {s(sH0)}, {s(sH0)}, {CSP}')
            A.I(f's_mul_i32 {s(sL0)}, {s(sL0)}, 3072')
            A.I(f's_add_u32 {s(sL0)}, {s(sL0)}, {WF13}')
            for i in range(nfr):
                for jj in range(4):
                    sel = sSELHI if i & 1 else sSELLO
                    A.I(f'v_perm_b32 v{reg0 + 4 * i + jj}, v{raw_of(2 * jj + 1, i >> 1)}, v{raw_of(2 * jj, i >> 1)}, {s(sel)}')
                A.I(f's_add_u32 {s(sT0)}, {s(sL1)}, {i}')
                A.I(f's_mul_i32 {s(sT1)}, {s(sT0)}, 21846')
                A.I(f's_lshr_b32 {s(sT1)}, {s(sT1)}, 16')
                A.I(f's_mul_i32 {s(sT1)}, {s(sT1)}, 57')
                A.I(f's_add_u32 {s(sT0)}, {s(sT0)}, {s(sT1)}')
                A.I(f's_lshl_b32 {s(sT0)}, {s(sT0)}, 10')
                A.I(f's_add_u32 {s(sT0)}, {s(sT0)}, {s(sL0)}')
                A.I(f'v_mfma_f32_16x16x32_bf16 {v(CSD, 4)}, {v(reg0 + 4 * i, 4)}, {v(SEL + 4 * i, 4)}, {v(CSD, 4) if i else 0}')
                A.I(f'buffer_store_dwordx4 {v(reg0 + 4 * i, 4)}, v2, {srd(SRD_WS)}, {s(sT0)} offen sc1')
            m = ((1 << nfr) - 1) * 0x00010001
            A.I(f's_mov_b32 exec_lo, {m:#x}')
            A.I(f's_mov_b32 exec_hi, {m:#x}')
            tg = A.I(f'buffer_store_dwordx4 {v(CSD, 4)}, v14, {srd(SRD_WS)}, {s(sH0)} offen sc1')
            A.I('s_mov_b64 exec, -1')
            return tg
        sVH, sV4, sV2 = 32, 33, 34
        A.I(f's_lshr_b32 {s(sVH)}, {s(sWAVE)}, 1')
        A.I(f's_and_b32 {s(sV4)}, {s(sWAVE)}, 1')
        A.I(f's_lshl_b32 {s(sV4)}, {s(sV4)}, 2')
        A.I(f's_lshl_b32 {s(sV2)}, {s(sWAVE)}, 1')
        for j in range(8):
            A.I(f'ds_read_b64 {v(RAW + 2 * j, 2)}, v8 offset:{rowoff(j)}')
        stores(4, lambda j, e: RAW + 2 * j + e, 0, s(sVH), s(sV4), OUT)
        if self.w2pos == 0:
            self.fmt_w2dma()
        A.wait_vm(t13)
        self.barrier()
        self.stamp('fmt_landed')
        for j in range(8):
            A.I(f'ds_read_b64 {v(RAW + 2 * j, 2)}, v8 offset:{8192 + rowoff(j)}')
        for j in range(8):
            A.I(f'ds_read_b32 v{RA5 + j}, v9 offset:{16384 + rowoff(j)}')
        stores(4, lambda j, e: RAW + 2 * j + e, 2, s(sVH), s(sV4), OUT + 16)
        tg = stores(2, lambda j, e: RA5 + j, 4, '0', s(sV2), OUT + 32)
        self.stamp('fmt_stores')
        if self.w2pos == 1:
            t2 = self.fmt_w2dma()
        A.I(f's_lshl_b32 {s(sU3)}, {s(sU3)}, 1')
        A.I(f's_add_u32 {s(sU3)}, {s(sU3)}, {s(sVH)}')
        A.I(f's_mul_i32 {s(sU3)}, {s(sU3)}, 48')
        A.I(f's_lshl_b32 {s(sU2)}, {s(sU2)}, 1')
        A.I(f's_and_b32 {s(sT0)}, {s(sWAVE)}, 1')
        A.I(f's_add_u32 {s(sU2)}, {s(sU2)}, {s(sT0)}')
        A.I(f's_add_u32 {s(sU2)}, {s(sU2)}, {s(sU3)}')
        A.I(f's_mul_i32 {s(sU2)}, {s(sU2)}, 5120')
        A.I(f's_add_u32 {s(sU2)}, {s(sU2)}, {WF2}')
        for x in self.poll_kind('W'):
            A.I(x)
        A.wait_vm(tg)
        self.barrier()
        self.signal_global(SY_W)
        self.stamp('fmt_done')
        if self.w2pos == 1:
            A.wait_vm(t2)
            self.barrier()
        W2R = 100
        for t in range(5):
            A.I(f'ds_read_b64_tr_b16 {v(W2R + 4 * t, 2)}, v12 offset:{32 * t}')
            A.I(f'ds_read_b64_tr_b16 {v(W2R + 4 * t + 2, 2)}, v12 offset:{32 * 320 + 32 * t}')
        for t in range(5):
            if t == 4:
                A.I(f's_add_u32 {s(sU2)}, {s(sU2)}, 4096')
            A.I(f'buffer_store_dwordx4 {v(W2R + 4 * t, 4)}, v2, {srd(SRD_WS)}, {s(sU2)} offen offset:{1024 * (t & 3)} sc1')
        for x in self.rot_bases():
            A.I(x)
        A.wait_all()
        self.only_wave(0, lambda: self.poll_global(SY_W))
        self.barrier()
        self.signal_global(SY_W2)
        self.stamp('W_seen')
        A.I('v_mov_b32 v4, 0x7ff00000')
        ad, ld, red = self.cs_parts()
        for x in ad + ld:
            A.I(x)
        for n in range(self.nearly):
            for x in self.w13_item(n):
                A.I(x)
        for x in self.g1_consts() + red:
            A.I(x)
        self.stamp('W13_loaded')
        for x in self.poll_kind('B'):
            A.I(x)
        self.only_wave(0, lambda: self.poll_global(SY_B1))
        self.barrier()
        self.stamp('B1_seen')
        for n in range(8):
            for x in self.h_item(0, n):
                self.emit(x)
        for i in range(2):
            A.I(f'buffer_store_dword v6, v4, {srd(SRD_WS)}, 0 offen', tag=('h2st', i))

    CST = 168

    def cs_parts(self):
        C = self.CST
        ad = ['v_and_b32 v166, 15, v1', 'v_mul_u32_u24 v167, 12288, v166', 'v_cmp_gt_u32 vcc, 16, v166'][:2]
        ad += ['v_and_or_b32 v167, v1, 48, v167',
               'v_lshrrev_b32 v166, 2, v166', 'v_lshlrev_b32 v166, 28, v166',
               f'v_add_u32 v166, {16 * 12288}, v166', 'v_add_u32 v166, v166, v167']
        ld = [f'buffer_load_dwordx4 {v(C + 12 * h + 4 * q, 4)}, v{167 - h}, {srd(SRD_WS)}, {s(sCSO)} offen offset:{64 * q} sc1'
              for h in range(2) for q in range(3)]
        red = [f'v_add_f32 v{C + i}, v{C + i}, v{C + 12 + i}' for i in range(12)]
        for ror in (8, 4, 2, 1):
            red += [f'v_add_f32_dpp v{C + i}, v{C + i}, v{C + i} row_ror:{ror} row_mask:0xf bank_mask:0xf' for i in range(12)]
        return ad, ld, red

    def rot_bases(self):
        R_ = self.mapr
        L = [f's_and_b32 {s(sT0)}, {s(sR)}, {R_ - 1}',
             f's_and_b32 {s(sT1)}, {s(sC)}, {32 // R_ - 1}',
             f's_add_u32 {s(sT1)}, {s(sT1)}, {s(sT0)}',
             f's_mul_i32 {s(sT2)}, {s(sT1)}, 21846', f's_lshr_b32 {s(sT2)}, {s(sT2)}, 16', f's_mul_i32 {s(sT2)}, {s(sT2)}, 3',
             f's_sub_u32 {s(sT1)}, {s(sT1)}, {s(sT2)}',
             f's_sub_u32 {s(sT2)}, {s(sT0)}, 5', f's_min_u32 {s(sT0)}, {s(sT0)}, {s(sT2)}']
        if not self.rot:
            L.append(f's_mov_b32 {s(sT0)}, 0')
        if not self.rot2:
            L.append(f's_mov_b32 {s(sT1)}, 0')
        L += [f's_mul_i32 {s(sRB)}, {s(sC2)}, {80 * 128}', f's_add_u32 {s(sRB)}, {s(sRB)}, 81920', f's_lshl_b32 {s(sT2)}, {s(sT0)}, 14',
              f's_sub_u32 {s(sRB)}, {s(sRB)}, {s(sT2)}',
              f's_sub_u32 {s(sT2)}, {s(sRB)}, 81920', f's_min_u32 {s(sU1)}, {s(sRB)}, {s(sT2)}',
              f's_lshl_b32 {s(sRA)}, {s(sWAVE)}, 11', f's_add_u32 {s(sRA)}, {s(sRA)}, {s(sU1)}',
              f's_sub_u32 {s(sT2)}, {s(sRA)}, 81920', f's_min_u32 {s(sRA)}, {s(sRA)}, {s(sT2)}',
              f's_add_u32 {s(sRB)}, {s(sU1)}, 8192',
              f's_sub_u32 {s(sT2)}, {s(sRB)}, 81920', f's_min_u32 {s(sRB)}, {s(sRB)}, {s(sT2)}',
              f's_sub_u32 {s(sU1)}, {s(sU1)}, 1024', f's_cmp_gt_u32 {s(sU1)}, {81920 - 10240 - 1024}',
              f's_cselect_b32 {s(sU1)}, 16384, 0']
        L += [f's_mul_i32 {s(sU2)}, {s(sR)}, {HS}', f's_lshl_b32 {s(sU3)}, {s(sWAVE)}, 12',
              f's_add_u32 {s(sU2)}, {s(sU2)}, {s(sU3)}', f's_add_u32 {s(sU2)}, {s(sU2)}, {H_OFF}']
        for g in range(5):
            L += [f's_mul_i32 {s(sG13 + g)}, {s(sT0)}, 12288', f's_add_u32 {s(sG13 + g)}, {s(sG13 + g)}, {s(sW13)}',
                  f's_lshl_b32 {s(sGH + g)}, {s(sT0)}, 14', f's_add_u32 {s(sGH + g)}, {s(sGH + g)}, {s(sU2)}']
            if g < 4:
                L += [f's_add_u32 {s(sT0)}, {s(sT0)}, 1', f's_sub_u32 {s(sT2)}, {s(sT0)}, 5', f's_min_u32 {s(sT0)}, {s(sT0)}, {s(sT2)}']
        for g in range(3):
            L += [f's_mul_i32 {s(sG2 + g)}, {s(sT1)}, 20480', f's_add_u32 {s(sG2 + g)}, {s(sG2 + g)}, {s(sW2)}',
                  f's_lshl_b32 {s(sGHH + g)}, {s(sT1)}, 12', f's_add_u32 {s(sGHH + g)}, {s(sGHH + g)}, {s(sHH)}']
            if g < 2:
                L += [f's_add_u32 {s(sT1)}, {s(sT1)}, 1', f's_sub_u32 {s(sT2)}, {s(sT1)}, 3', f's_min_u32 {s(sT1)}, {s(sT1)}, {s(sT2)}']
        L += [f's_lshl_b32 {s(sCSO)}, {s(sC)}, 2', f's_add_u32 {s(sCSO)}, {s(sCSO)}, {s(sWAVE)}', f's_mul_i32 {s(sCSO)}, {s(sCSO)}, 192',
              f's_add_u32 {s(sCSO)}, {s(sCSO)}, {CSP}']
        return L

    def w13_item(self, n):
        L = []
        if n % 4 == 0:
            L.append(f's_add_u32 {s(sL0)}, {s(sG13 + n // 12)}, {4096 * ((n % 12) // 4)}')
        L.append(f'buffer_load_dwordx4 {a(4 * n, 4)}, v2, {srd(SRD_WS)}, {s(sL0)} offen offset:{1024 * (n & 3)} sc1')
        return L

    def w2reg(self, n):
        if n < 26:
            return 148 + 4 * n
        if n < 30:
            return 256 + 240 + 4 * (n - 26)
        return 256 + 4 * (n - 30)

    def w2_item(self, n):
        L = []
        if n % 4 == 0:
            L.append(f's_add_u32 {s(sL1)}, {s(sG2 + n // 20)}, {4096 * ((n % 20) // 4)}')
        L.append(f'buffer_load_dwordx4 {R(self.w2reg(n), 4)}, v2, {srd(SRD_WS)}, {s(sL1)} offen offset:{1024 * (n & 3)} sc1')
        return L

    def hhreg(self, n):
        return 256 + 120 + 4 * n

    def hh_item(self, hf, n):
        L = []
        m2, kk = n // 12, n % 12
        if n % 4 == 0:
            L.append(f's_add_u32 {s(sH0)}, {s(sGHH + kk // 4)}, {(64 * hf + m2) * HHS}')
        L.append(f'buffer_load_dwordx4 {R(self.hhreg(n), 4)}, v2, {srd(SRD_WS)}, {s(sH0)} offen offset:{1024 * (kk & 3)} sc1')
        return L

    def h_item(self, hf, n):
        A = self.A
        j, i = n >> 2, n & 3
        g = []
        if i == 0:
            lds = (H2B + 16384 * j) if hf else (H1A + 16384 * j if j < 2 else H1B + 16384 * (j - 2))
            g += [f's_add_u32 {s(sU2)}, {s(sGH + j)}, {16 * hf * HS}', f's_add_u32 m0, {s(sU3)}, {lds}']
        g.append(lambda: A.I(f'buffer_load_dwordx4 v2, {srd(SRD_WS)}, {s(sU2)} offen offset:{1024 * i} sc1 lds', tag=('h', hf, n)))
        return g

    def plan_loads(self):
        slots = [('h1', k) for k in range(20)] + [('e1', q) for q in range(3)] + [('h2', k) for k in range(20)] + \
                [('e2', q) for q in range(3)] + [('g2', k) for k in range(12)]
        pos = {x: i for i, x in enumerate(slots)}
        cap = {'h1': self.pace, 'h2': self.pace, 'e1': self.epace, 'e2': self.epace, 'g2': 2}
        lat = self.lat
        streams = []
        pre = 8
        streams.append([(0, pos[('h1', 4 * (n >> 2) - 1)] - lat, self.h_item(0, n)) for n in range(pre, 20)])
        streams.append([(0, pos[('h1', n // 3)] - lat, self.w13_item(n)) for n in range(self.nearly, 60)])
        r2 = pos[('h1', self.b2k + 2)]
        streams[0] += [(r2, (pos[('h1', 19)] if n < 4 else pos[('h2', 4 * (n >> 2) - 1)]) - lat, self.h_item(1, n)) for n in range(20)]
        rw = pos[('h1', self.w2k + 2)]
        streams.append([(rw if n < 30 else pos[('h2', (4 * (n - 30) + 3) // 12 + 1)], pos[('g2', n // 10)] - lat, self.w2_item(n)) for n in range(60)])
        rc = pos[('h2', self.c1k + 2)]
        streams.append([(max(rc, pos[('h2', 10 + n // 3 + 1)]), pos[('g2', n // 2)] - lat - 1, self.hh_item(0, n)) for n in range(24)])
        plan = {x: [] for x in slots}
        ptr = [0] * len(streams)
        late = 0
        for i, x in enumerate(slots):
            k = 0
            while True:
                cand = [(st[ptr[j]][1], j) for j, st in enumerate(streams) if ptr[j] < len(st) and st[ptr[j]][0] <= i]
                if not cand:
                    break
                d, j = min(cand)
                if k >= cap[x[0]] and d + lat - 1 > i:
                    break
                if d < i:
                    late += 1
                plan[x].append(streams[j][ptr[j]][2])
                ptr[j] += 1
                k += 1
        assert all(ptr[j] == len(st) for j, st in enumerate(streams))
        self.plan = plan
        self.late = late

    ALO = 256 + 112

    def conv_prep(self):
        A = self.A
        XS = self.XS
        kt = [(KTBL >> (4 * sh)) & 15 for sh in range(8)]
        A.I(f's_mul_i32 {s(sT3)}, {s(sWAVE)}, {THALF}')
        A.I(f'v_add_u32 v9, {s(sT3)}, v2')
        A.I(f'v_add_u32 v8, {TLB}, v9')
        for i in range(4):
            if i == (2 if self.skpos < 2 else 0):
                if self.skpos == 2:
                    self.ssmk_loads()
                self.arrive_a()
            X = XS + 8 * i
            T = 32 + 24 * (i & 1)
            Y, O0, O1 = T, T + 6, T + 12
            base = 'v8' if i < 2 else 'v9'

            def wr(sh, reg):
                off = kt[sh] * TPITCH + (64 * (i & 1) + (1 if sh else 2)) * 16
                A.I(f'ds_write_b128 {base}, {v(reg, 4)} offset:{off}')
            wr(0, X + 4)
            wr(4, X + 2)
            for e in range(6):
                A.I(f'v_mov_b32 v{Y + e}, v{X + 1 + e}')
            wr(2, Y)
            wr(6, Y + 2)
            for e in range(6):
                A.I(f'v_alignbit_b32 v{O0 + e}, v{X + e + 1}, v{X + e}, 16')
            wr(1, O0)
            wr(5, O0 + 2)
            for e in range(6):
                A.I(f'v_alignbit_b32 v{O1 + e}, v{X + e + 2}, v{X + e + 1}, 16')
            wr(3, O1)
            wr(7, O1 + 2)
        A.I('v_lshlrev_b32 v10, 2, v1')
        A.I(f's_mov_b32 {s(sT2)}, {KTBL:#x}')
        A.I(f'v_bfe_u32 v10, {s(sT2)}, v10, 4')
        A.I(f'v_mul_u32_u24 v10, {TPITCH}, v10')
        A.I('v_cmp_eq_u32 vcc, 0, v1')
        A.I('v_cndmask_b32_e64 v11, 0, 16, vcc')
        A.I(f'v_add3_u32 v11, v10, v11, {s(sT3)}')
        A.I(f'v_add_u32 v10, {TLB}, v11')
        for e in range(4):
            A.I(f'v_mov_b32 v{28 + e}, 0')
        A.I('s_mov_b64 exec, 0xff')
        A.I('ds_write_b128 v10, v[28:31]')
        A.I('ds_read_b128 v[24:27], v10 offset:2048')
        A.I('ds_write_b128 v11, v[24:27]')
        A.I('s_mov_b64 exec, -1')
        A.I('v_lshrrev_b32 v12, 4, v1')
        A.I('v_and_b32 v13, 15, v1')
        A.I('v_lshl_add_u32 v14, v12, 3, v13')
        A.I('v_add_u32 v14, 1, v14')
        A.I('v_and_b32 v15, 7, v14')
        A.I('v_lshlrev_b32 v15, 2, v15')
        A.I(f'v_bfe_u32 v15, {s(sT2)}, v15, 4')
        A.I(f'v_mul_u32_u24 v15, {TPITCH}, v15')
        A.I('v_lshrrev_b32 v14, 3, v14')
        A.I('v_lshlrev_b32 v14, 4, v14')
        A.I(f'v_add3_u32 v9, v14, v15, {s(sT3)}')
        A.I(f'v_add_u32 v8, {TLB}, v9')
        for p in range(32):
            A.I(f'ds_read_b128 {R(self.ALO + 16 * (p & 7) + 4 * (p >> 3), 4)}, v8 offset:{64 * p}')
        A.I(f's_mul_i32 {s(sT3)}, {s(sWAVE)}, {2 * RP}')
        A.I(f's_add_u32 {s(sT3)}, {s(sT3)}, {KVX}')
        A.I('v_lshlrev_b32 v10, 1, v13')
        A.I('v_sub_u32 v10, v10, v12')
        A.I('v_add_u32 v10, 5, v10')
        A.I('v_lshlrev_b32 v10, 4, v10')
        A.I(f'v_add_u32 v10, {s(sT3)}, v10')
        A.I('v_lshlrev_b32 v11, 5, v13')
        A.I('v_lshl_add_u32 v11, v12, 3, v11')
        A.I(f's_add_u32 {s(sT2)}, {s(sT3)}, {RP + 512}')
        A.I(f'v_add_u32 v11, {s(sT2)}, v11')
        A.I('v_lshrrev_b32 v14, 1, v12')
        A.I('v_lshl_add_u32 v14, v13, 1, v14')
        A.I('v_lshlrev_b32 v14, 6, v14')
        A.I('v_and_b32 v15, 1, v12')
        A.I('v_lshlrev_b32 v16, 4, v15')
        A.I(f'v_add_u32 v14, {STL}, v14')
        A.I('v_add_u32 v14, v14, v16')
        A.I('v_lshrrev_b32 v16, 2, v13')
        A.I('v_lshl_add_u32 v15, v15, 2, v16')
        A.I(f'v_mul_u32_u24 v15, {HS}, v15')
        A.I(f's_bfe_u32 {s(sT2)}, {s(sD)}, 0x20001')
        A.I('v_and_b32 v16, 3, v13')
        A.I(f'v_xor_b32 v16, {s(sT2)}, v16')
        A.I('v_lshlrev_b32 v16, 5, v16')
        A.I('v_lshrrev_b32 v17, 1, v12')
        A.I('v_lshlrev_b32 v17, 4, v17')
        A.I('v_add3_u32 v15, v15, v16, v17')
        A.I(f's_and_b32 {s(sT2)}, {s(sD)}, 1')
        A.I(f's_lshl_b32 {s(sT2)}, {s(sT2)}, 4')
        A.I(f's_lshr_b32 {s(sDV)}, {s(sDV)}, {s(sT2)}')
        A.I(f's_and_b32 {s(sDV)}, {s(sDV)}, 0xffff')
        A.I('v_lshl_add_u32 v16, v12, 3, v13')
        A.I('v_sub_u32 v16, 15, v16')
        A.I('v_and_b32 v17, 1, v16')
        A.I('v_lshlrev_b32 v17, 4, v17')
        A.I(f'v_lshlrev_b32_e64 v17, v17, {s(sDV)}')
        A.I('v_lshrrev_b32 v16, 1, v16')
        for e in range(4):
            A.I(f'v_cmp_eq_u32 vcc, {e}, v16')
            A.I(f'v_cndmask_b32 v{28 + e}, 0, v17, vcc')
        A.I('v_lshlrev_b32 v16, 4, v0')
        A.I('v_and_b32 v17, 7, v0')
        A.I(f'v_mul_u32_u24 v17, {RP}, v17')
        A.I('v_lshrrev_b32 v19, 3, v0')
        A.I(f'v_add_u32 v17, {KVX}, v17')
        for x in self.rot_bases():
            A.I(x)
        A.I('v_lshl_add_u32 v17, v19, 4, v17')
        for e in range(4):
            A.I(f'v_mov_b32 v{24 + e}, 0')
        A.wait_all()

    def conv(self):
        A = self.A
        ACC, VB, AH, STG, XQ, TMP, PK = 32, 64, 128, 160, 192, 224, 244
        A.I(f's_lshr_b32 {s(sT0)}, {s(sD)}, 2')
        A.I(f's_mul_i32 {s(sT0)}, {s(sT0)}, {TS}')
        A.I(f's_add_u32 {s(sT0)}, {s(sT0)}, {T_OFF}')
        A.I(f's_lshl_b32 {s(sT1)}, {s(sWAVE)}, 11')
        A.I(f's_add_u32 m0, {s(sT1)}, {STL}')
        A.I(f's_add_u32 {s(sT1)}, {s(sT1)}, {STATS}')
        for x in self.poll_kind('A'):
            A.I(x)
        self.only_wave(0, lambda: self.poll_global(SY_A))
        self.barrier()
        self.stamp('A_seen')

        def tloads(hf):
            for i in range(4 * hf, 4 * hf + 4):
                A.I(f'buffer_load_dwordx4 {v(STG + 4 * i, 4)}, v16, {srd(SRD_WS)}, {s(sT0)} offen sc1')
                A.I(f's_add_u32 {s(sT0)}, {s(sT0)}, 4096')
            for i in range(2):
                A.I(f'buffer_load_dwordx4 v2, {srd(SRD_WS)}, {s(sT1)} offen offset:{1024 * i} sc1 lds', tag=('st', hf, i))
            if hf == 0:
                A.I('s_add_u32 m0, m0, 8192')
                A.I(f's_add_u32 {s(sT1)}, {s(sT1)}, 8192')
        tloads(0)
        if self.t2pos == 0:
            tloads(1)
        for x in self.poll_kind('W'):
            A.I(x)
        A.I('ds_write_b128 v17, v[24:27]')
        for i in range(4):
            A.I(f'ds_write_b128 v17, {v(STG + 4 * i, 4)} offset:{512 + 512 * i}')
            self.stamp(f'T{i}', fine=5)
            if i == 0 and self.t2pos == 1:
                tloads(1)
        A.wait_vm(('st', 0, 1))
        self.stamp(f'Tst', fine=5)
        A.wait_all(vm=False)
        self.barrier()
        self.stamp('T_staged')
        AD = {'th': 9, 'kv': 10, 'x': 11, 'st': 14, 'ho': 15}

        def vread(buf, tau, mu):
            return f'ds_read_b128 {v(VB + 32 * buf + 4 * tau, 4)}, v{AD["kv"]} offset:{(32 * tau + 28 - 4 * mu) * 16}'

        def aread(buf, c, mu):
            return f'ds_read_b128 {v(AH + 16 * buf + 4 * (c - 4), 4)}, v{AD["th"]} offset:{64 * (8 * c + mu - 32)}'

        def qprep(t):
            tt = t & 3
            x0 = TMP + 10 * (t & 1)
            q = XQ + 8 * tt
            L = [f'ds_read_b64 {v(x0, 2)}, v{AD["x"]} offset:{512 * t}',
                 f'ds_read_b128 {v(x0 + 2, 4)}, v{AD["st"]} offset:{2048 * t}',
                 f'ds_read_b128 {v(x0 + 6, 4)}, v{AD["st"]} offset:{2048 * t + 32}']
            M = [f'v_lshlrev_b32 v{q}, 16, v{x0}', f'v_and_b32 v{q + 1}, {s(sMASK)}, v{x0}',
                 f'v_lshlrev_b32 v{q + 2}, 16, v{x0 + 1}', f'v_and_b32 v{q + 3}, {s(sMASK)}, v{x0 + 1}']
            M += [f'v_fma_f32 v{q + 4 + i}, v{q + i}, v{x0 + 2 + i}, v{x0 + 6 + i}' for i in range(4)]
            return L, M

        def areg(buf, c, mu):
            return R(self.ALO + 16 * mu + 4 * c, 4) if c < 4 else v(AH + 16 * buf + 4 * (c - 4), 4)

        def half(hf, extra, pre, items):
            ts = list(range(4 * hf + 3, 4 * hf - 1, -1))
            ntau = 4 * hf + 4
            for mu in range(8):
                self.stamp(f'c{hf}m{mu}', fine=1)
                buf = mu & 1
                main = []
                if mu == 0:
                    for t in ts:
                        main.append(f'v_mfma_f32_16x16x32_bf16 {v(ACC + 4 * t, 4)}, v[28:31], {v(VB + 4 * t, 4)}, 0')
                for c in range(ntau):
                    for t in ts:
                        if c <= t:
                            main.append(f'v_mfma_f32_16x16x32_bf16 {v(ACC + 4 * t, 4)}, {areg(buf, c, mu)}, {v(VB + 32 * buf + 4 * (t - c), 4)}, {v(ACC + 4 * t, 4)}')
                fill = []
                if mu < 7:
                    order = list(range(ntau - 1, -1, -1))
                    fill += [vread(buf ^ 1, tau, mu + 1) for tau in order]
                    if hf:
                        fill += [aread(buf ^ 1, c, mu + 1) for c in range(4, 8)]
                fill += extra.get(mu, [])
                self.interleave2(main, fill, items.get(mu, []), head=pre.get(mu, []))

        def epilogue(hf):
            self.stamp(f'c{hf}epi', fine=1)
            A.I(f's_lshl_b32 {s(sT0)}, {s(sD)}, 7')
            A.I(f's_add_u32 {s(sT0)}, {s(sT0)}, {H_OFF + 16 * hf * HS}')
            for tp in range(2):
                pk = PK + 4 * tp
                for dt in range(2):
                    t = 4 * hf + 2 * tp + dt
                    q = XQ + 8 * (t & 3)
                    for i in range(2):
                        A.I(f'v_pk_fma_f32 {v(q + 2 * i, 2)}, {v(q + 4 + 2 * i, 2)}, {v(ACC + 4 * t + 2 * i, 2)}, {v(q + 2 * i, 2)}')
                    A.I(f'v_cvt_pk_bf16_f32 v{pk + 2 * dt}, v{q}, v{q + 1}')
                    A.I(f'v_cvt_pk_bf16_f32 v{pk + 2 * dt + 1}, v{q + 2}, v{q + 3}')
                A.I(f'v_permlane16_swap_b32 v{pk}, v{pk + 2}')
                A.I(f'v_permlane16_swap_b32 v{pk + 1}, v{pk + 3}')
                A.I(f'buffer_store_dwordx4 {v(pk, 4)}, v{AD["ho"]}, {srd(SRD_WS)}, {s(sT0)} offen sc1', tag=(f'h{hf + 1}st', tp))
                if tp == 0:
                    A.I(f's_add_u32 {s(sT0)}, {s(sT0)}, {8 * HS}')

        def qextra(hf):
            ex = {}
            for j in range(4):
                L, M = qprep(4 * hf + j)
                ex.setdefault(j + 1, []).extend(L)
                ex.setdefault(j + 2, []).extend(M)
            return ex
        for tau in range(3, -1, -1):
            A.I(vread(0, tau, 0))
        if self.t2pos == 2:
            tloads(1)
        ex = qextra(0)
        wr = [f'ds_write_b128 v17, {v(STG + 4 * i, 4)} offset:{512 + 512 * i}' for i in range(4, 8)]
        mv = []
        for k, (name, r) in enumerate(list(AD.items())):
            mv.append(f'v_mov_b32 v{STG + k}, v{r}')
        ex.setdefault(0, []).extend(mv)
        ex.setdefault(6, []).extend(wr[:2])
        ex.setdefault(7, []).extend(wr[2:] + [vread(0, tau, 0) for tau in range(3, -1, -1)] + [aread(0, c, 0) for c in range(4, 8)])
        half(0, ex, {}, {})
        A.wait_vm(('st', 1, 1))
        A.wait_all(vm=False)
        self.barrier()
        for tau in range(7, 3, -1):
            A.I(vread(0, tau, 0))
        epilogue(0)
        self.stamp('conv_h1')
        for k, name in enumerate(list(AD.keys())):
            AD[name] = STG + k
        ex = qextra(1)
        pre, items = {}, {}

        def arrive_b1():
            A.wait_vm(('h1st', 1))
            self.barrier()
            self.signal_global(SY_B1)

        def nonce_update():
            A.I(f's_cmp_eq_u32 {s(sD)}, 0')
            A.I(f's_cselect_b32 {s(sT1)}, 0, 0x7ff00000')
            A.I(f's_add_u32 {s(sT1)}, {s(sT1)}, {NONCE}')
            A.I('s_mov_b64 exec, 1')
            A.I(f'buffer_store_dword v6, v2, {srd(SRD_WS)}, {s(sT1)} offen sc1')
            A.I('s_mov_b64 exec, -1')
        pre.setdefault(self.b1mu + 1, []).append(arrive_b1)
        pre.setdefault(self.wmu - 1, []).append(lambda: self.apoll_issue(5, CNT + SY_W))
        pre.setdefault(self.wmu, []).append(lambda: self.apoll_check(5))
        ex.setdefault(self.wmu, []).extend(self.poll_kind('B'))
        for mu in range(self.wmu, 7):
            n0 = (mu - self.wmu) * self.wpace
            assert n0 + self.wpace <= 28 + 4 * mu
            items[mu] = [self.w13_item(n) for n in range(n0, n0 + self.wpace)]
        ad, ld, red = self.cs_parts()
        ex.setdefault(0, []).extend(ad)
        items[self.wmu] = [[x] for x in ld[:3]] + items[self.wmu]
        items[self.wmu + 1] = [[x] for x in ld[3:]] + items[self.wmu + 1]
        G = self.g1_consts() + red
        quota = {1: 20, 2: 14, 3: 16, 4: 16, 5: 20, 6: 28, 7: 40}
        k = 0
        for mu in range(1, 8):
            ex.setdefault(mu, []).extend(G[k:k + quota[mu]])
            k += quota[mu]
        assert k >= len(G), (k, len(G))
        ex.setdefault(0, []).append(nonce_update)
        pre.setdefault(self.b1k, []).append(lambda: self.apoll_issue(5, CNT + SY_B1))
        pre.setdefault(7, []).append(lambda: self.apoll_check(5))
        items[7] = [self.h_item(0, n) for n in range(8)]
        half(1, ex, pre, items)
        epilogue(1)
        self.stamp('conv_h2')

    ACC1, GR, SM, CS, ONE, HF, RES = 32, 80, 84, 88, 28, 104, 136

    def w13(self, kap, q):
        return 256 + 12 * kap + 4 * q

    def g1_consts(self):
        F = ['v_lshrrev_b32 v12, 2, v1', 'v_lshlrev_b32 v13, 7, v12', 'v_and_b32 v14, 3, v1',
             'v_lshl_add_u32 v13, v14, 3, v13', 'v_bfe_u32 v14, v1, 3, 2', f'v_xor_b32 v15, {s(sWAVE)}, v14']
        F += [f's_lshl_b32 {s(sT1)}, {s(sCH)}, 1', f'v_xor_b32 v16, {s(sT1)}, v14', 'v_lshl_add_u32 v17, v16, 5, v13',
              f'v_add_u32 v13, {H1A}, v13']
        for u in range(4):
            F.append(f'v_xor_b32 v16, {u}, v15')
            F.append(f'v_lshl_add_u32 v{8 + u}, v16, 5, v13')
        F += ['v_and_b32 v16, 15, v1', 'v_lshlrev_b32 v16, 4, v16', f'v_add_u32 v16, {s(sU1)}, v16', f'v_add_u32 v16, {H1A}, v16']
        for u in range(4):
            F += [f's_xor_b32 {s(sT0)}, {s(sWAVE)}, {u}', f's_lshl_b32 {s(sT0)}, {s(sT0)}, 8', f'v_add_u32 v{19 + u}, {s(sT0)}, v16']
        F += ['v_lshrrev_b32 v16, 4, v1', f'v_xor_b32 v16, {s(sWAVE)}, v16', f'v_mul_u32_u24 v16, {HHS}, v16',
              'v_and_b32 v23, 15, v1', 'v_lshl_add_u32 v23, v23, 4, v16', 'v_and_b32 v16, 3, v1']
        for i in range(1, 4):
            F.append(f'v_cmp_eq_u32 {s(30 + 2 * i, 2)}, {i}, v16')
        F += [f's_mul_i32 {s(sU0)}, {s(sR)}, {4 * HHS}', f's_lshl_b32 {s(sT1)}, {s(sC)}, 2', f's_add_u32 {s(sT1)}, {s(sT1)}, {s(sWAVE)}',
              f's_mul_i32 {s(sT1)}, {s(sT1)}, 768', f's_add_u32 {s(sU0)}, {s(sU0)}, {s(sT1)}', f's_add_u32 {s(sU0)}, {s(sU0)}, {HH}']
        F += [f's_mul_i32 {s(sT0)}, {s(sWAVE)}, 5120', f'v_add_u32 v25, {s(sT0)}, v2',
              f's_lshl_b32 {s(sT0)}, {s(sWAVE)}, 10', f'v_add_u32 v26, {s(sT0)}, v2',
              'v_and_b32 v27, 15, v1', 'v_mul_u32_u24 v27, 1280, v27', 'v_lshrrev_b32 v16, 4, v1', 'v_lshl_add_u32 v27, v16, 3, v27']
        F += [f's_lshl_b32 {s(sT0)}, {s(sR)}, 1', f's_add_u32 {s(sT0)}, {s(sT0)}, {s(sCH)}', f's_mul_i32 {s(sT0)}, {s(sT0)}, {32 * 1280}',
              f's_mul_i32 {s(sT1)}, {s(sC2)}, 160', f's_add_u32 {s(sOU4)}, {s(sT0)}, {s(sT1)}',
              f's_lshl_b32 {s(sT1)}, {s(sWAVE)}, 5', f's_add_u32 {s(sOUT)}, {s(sOU4)}, {s(sT1)}']
        F += ['v_and_b32 v24, 7, v1', 'v_max_u32 v24, 5, v24', 'v_and_b32 v16, 56, v1', 'v_lshlrev_b32 v16, 5, v16',
              'v_lshl_add_u32 v24, v24, 4, v16', f's_lshl_b32 {s(sT0)}, {s(sX)}, 11', f'v_add_u32 v24, {s(sT0)}, v24']
        F += [f'v_mov_b32 v{self.ONE + i}, 0x3f803f80' for i in range(4)]
        return F

    def g1_half(self, hf):
        A = self.A
        ACC, GR, SM, CS, ONE, HF = self.ACC1, self.GR, self.SM, self.CS, self.ONE, self.HF
        pre = {}

        def add(k, items):
            pre.setdefault(k, []).extend(items)

        def arrive(tag, sig):
            def f():
                A.wait_vm(tag)
                self.barrier()
                sig()
            return f
        if hf == 0:
            add(self.b2sig, [arrive(('h2st', 1), lambda: self.signal_global(SY_B2))])
            add(self.w2k, [lambda: self.apoll_issue(24, CNT + SY_W2)])
            add(self.w2k + 2, [lambda: self.apoll_check(24)])
            add(self.b2k, [lambda: self.apoll_issue(5, CNT + SY_B2)])
            add(self.b2k + 2, [lambda: self.apoll_check(5)])
        else:
            add(self.c1sig, [arrive(('hhst', 0), lambda: self.signal_c(0))])
            add(self.c1k, [lambda: self.apoll_issue(7, CNT + SY_C)])
            add(self.c1k + 2, [lambda: self.apoll_check(7)])
        seg = {0: H1A, 8: H1B, 20: H2B} if hf == 0 else {0: H2B, 10: H2B + 40960}

        def segbase(kap):
            return max(k for k in seg if k <= kap)

        def reads(kap):
            buf = kap & 1
            L = []
            for u in range(4):
                for hh in range(2):
                    L.append(f'ds_read_b64_tr_b16 {v(HF + 16 * buf + 4 * u + 2 * hh, 2)}, v{8 + u} offset:{(kap - segbase(kap)) * 4096 + 2048 * hh}')
            return L

        def rebase(kap):
            d = seg[kap] - seg[segbase(kap - 1)]
            return [f'v_add_u32 v{8 + u}, {d}, v{8 + u}' for u in range(4)]

        def chunk_ready(j):
            def f():
                A.wait_vm(('h', hf, 4 * j + 3))
                self.barrier()
            return f
        if hf == 0:
            A.wait_all(vm=False)
            chunk_ready(0)()
            self.stamp(f'h{hf + 1}_first')
            for x in reads(0):
                A.I(x)
        T = 104

        def resid():
            L = []
            for k, sr in enumerate((sRA, sRB)):
                if hf == 0:
                    L += [f's_add_u32 {s(sT0 + k)}, {s(sr)}, {H1A}', f's_sub_u32 {s(sT2)}, {s(sT0 + k)}, 163840', f's_min_u32 {s(sT0 + k)}, {s(sT0 + k)}, {s(sT2)}']
                else:
                    L += [f's_add_u32 {s(sT0 + k)}, {s(sr)}, {H2B}']
            L += [f'v_add_u32 v14, {s(sT0)}, v17', 'v_xor_b32 v15, 32, v14',
                  f's_and_b32 {s(sT2)}, {s(sWAVE)}, 1', f's_lshl_b32 {s(sT2)}, {s(sT2)}, 5', f'v_xor_b32 v16, {s(sT2)}, v17', f'v_add_u32 v16, {s(sT1)}, v16']
            return L
        for kap in range(20):
            self.stamp(f'h{hf + 1}k{kap}', fine=2 + hf)
            buf = kap & 1
            fr = lambda u: v(HF + 16 * buf + 4 * u, 4)
            main = [f'v_mfma_f32_16x16x32_bf16 {v(GR, 4)}, {fr(0)}, {fr(0)}, {v(GR, 4) if kap else 0}',
                    f'v_mfma_f32_16x16x32_bf16 {v(SM, 4)}, {v(ONE, 4)}, {fr(0)}, {v(SM, 4) if kap else 0}']
            for u in range(4):
                for q in range(3):
                    ac = v(ACC + 4 * (3 * u + q), 4)
                    main.append(f'v_mfma_f32_16x16x32_bf16 {ac}, {R(self.w13(kap, q), 4)}, {fr(u)}, {ac if kap else 0}')
            items = self.plan[(f'h{hf + 1}', kap)]
            fill = []
            if kap < 19:
                if (kap + 1) % 4 == 0:
                    fill.append(chunk_ready((kap + 1) // 4))
                if kap + 1 in seg:
                    fill += rebase(kap + 1)
                fill += reads(kap + 1)
                if hf == 0 and kap < 2:
                    fill += [f'v_mov_b32 v{CS + i}, v{self.CST + i}' for i in range(6 * kap, 6 * kap + 6)]
                if kap == 16:
                    fill += resid()
                if kap == 17:
                    fill += [f'ds_read_b64_tr_b16 {v(self.RES + 6 * hf + 2 * n, 2)}, v{14 + n}' for n in range(3)]
                self.interleave2(main, fill, items, head=pre.get(kap, []))
            else:
                assert kap not in pre
                fill += (rebase(20) if hf == 0 else [])
                st0 = 2 if hf == 0 else 4
                fill += [f'v_cndmask_b32 v{T}, v{GR}, v{GR + 1}, {s(32, 2)}',
                         f'v_cndmask_b32 v{T}, v{T}, v{GR + 2}, {s(34, 2)}',
                         f'v_cndmask_b32 v{T}, v{T}, v{GR + 3}, {s(36, 2)}',
                         f'v_mul_f32 v{T + 4}, 0xbacccccd, v{SM}',
                         f'v_mul_f32 v{T}, 0x3acccccd, v{T}',
                         f'v_fma_f32 v{T}, -v{T + 4}, v{T + 4}, v{T}',
                         f'v_max_f32 v{T}, 0, v{T}',
                         f'v_add_f32 v{T + 6}, 0x3727c5ac, v{T}',
                         f'v_rsq_f32 v{T + 5}, v{T + 6}',
                         f'v_mov_b32 v{T + 7}, 0',
                         f'v_mul_f32 v{T + 5}, 0xbfb8aa3b, v{T + 5}']

                def stw():
                    A.I('s_mov_b32 exec_lo, 0x00f0000f')
                    A.I('s_mov_b32 exec_hi, 0xf0000f00')
                    A.I(f'ds_write_b128 v19, {v(T + 4, 4)}')
                    A.I('s_mov_b64 exec, -1')
                fill.append(stw)
                self.interleave(main[:-2], fill, start=st0)
                self.emit(main[-2])
                self.emit(main[-1])
                for it in items:
                    for x in it:
                        self.emit(x)
        if hf == 0:
            A.wait_vm(('h', 1, 3))
        A.wait_all(vm=False)
        self.barrier()
        self.stamp(f'g1h{hf + 1}_mfma')
        ST, E = 120, 112
        for u in range(4):
            A.I(f'ds_read_b128 {v(ST + 4 * u, 4)}, v{19 + u}')
        if hf == 0:
            for u in range(4):
                A.I(f'v_add_u32 v{19 + u}, {H2B - H1A}, v{19 + u}')
        for q in range(3):
            cg, cu = v(CS + 4 * q, 2), v(CS + 4 * q + 2, 2)
            self.stamp(f'e{hf + 1}q{q}', fine=2 + hf)
            M = []
            for u in range(4):
                ac = ACC + 4 * (3 * u + q)
                st = ST + 4 * u
                M.append(f'v_pk_fma_f32 {v(ac, 2)}, {cg}, {v(st, 2)}, {v(ac, 2)} op_sel_hi:[1,0,1]')
                M.append(f'v_pk_mul_f32 {v(E + 2 * u, 2)}, {v(ac, 2)}, {v(st, 2)} op_sel:[0,1] op_sel_hi:[1,1]')
            for u in range(4):
                ac = ACC + 4 * (3 * u + q)
                st = ST + 4 * u
                M.append(f'v_exp_f32 v{E + 2 * u}, v{E + 2 * u}')
                M.append(f'v_pk_fma_f32 {v(ac + 2, 2)}, {cu}, {v(st, 2)}, {v(ac + 2, 2)} op_sel_hi:[1,0,1]')
                M.append(f'v_exp_f32 v{E + 2 * u + 1}, v{E + 2 * u + 1}')
                M.append(f'v_pk_mul_f32 {v(ac, 2)}, {v(ac, 2)}, {v(ac + 2, 2)}')
            for u in range(4):
                st = ST + 4 * u
                M.append(f'v_pk_fma_f32 {v(E + 2 * u, 2)}, {v(E + 2 * u, 2)}, {v(st + 2, 2)}, {v(st + 2, 2)} op_sel_hi:[1,0,0]')
            pk = GR + 4 * (q & 1)
            for u in range(4):
                M.append(f'v_rcp_f32 v{E + 2 * u}, v{E + 2 * u}')
                if u:
                    ac = ACC + 4 * (3 * (u - 1) + q)
                    M.append(f'v_pk_mul_f32 {v(ac, 2)}, {v(ac, 2)}, {v(E + 2 * (u - 1), 2)}')
                M.append(f'v_rcp_f32 v{E + 2 * u + 1}, v{E + 2 * u + 1}')
                if u:
                    M.append(f'v_cvt_pk_bf16_f32 v{pk + u - 1}, v{ac}, v{ac + 1}')
            ac = ACC + 4 * (9 + q)
            M.append(f'v_pk_mul_f32 {v(ac, 2)}, {v(ac, 2)}, {v(E + 6, 2)}')
            M.append(f'v_cvt_pk_bf16_f32 v{pk + 3}, v{ac}, v{ac + 1}')
            self.interleave2(M, [], self.plan[(f'e{hf + 1}', q)])
            A.I(f'v_permlane32_swap_b32 v{pk}, v{pk + 2}')
            if q == 2 and hf == 0:
                for x in reads(20):
                    A.I(x)
            A.I(f'v_permlane32_swap_b32 v{pk + 1}, v{pk + 3}')
            A.I(f'v_permlane16_swap_b32 v{pk}, v{pk + 1}')
            A.I(f'v_permlane16_swap_b32 v{pk + 2}, v{pk + 3}')
            A.I(f'buffer_store_dwordx4 {v(pk, 4)}, v23, {srd(SRD_WS)}, {s(sU0)} offen offset:{256 * q} sc1', tag=('hhst', hf))
        A.I(f's_add_u32 {s(sU0)}, {s(sU0)}, {64 * HHS}')
        A.I('s_nop 1')
        self.stamp(f'g1h{hf + 1}_epi')

    def g2_reduce(self, p, packed):
        A = self.A
        hf, m2 = p >> 1, p & 1
        ACC = 32 + 20 * (p & 1)
        base = RED + 20480 * (p & 1)
        P, T = 72, 104
        wr = [f'ds_write_b128 v25, {v(ACC + 4 * t, 4)} offset:{base + 1024 * t}' for t in range(5)]

        def sync():
            A.wait_all(vm=False)
            self.barrier()
        rd = [f'ds_read_b128 {v(P + 4 * w, 4)}, v26 offset:{base + 5120 * w}' for w in range(4)]
        rd += [f'ds_read_b128 {v(P + 16 + 4 * w, 4)}, v2 offset:{base + 5120 * w + 4096}' for w in range(4)]
        un = []
        for k, rs in enumerate((self.RES + 6 * hf + 2 * m2, self.RES + 6 * hf + 4)):
            un += [f'v_lshlrev_b32 v{T + 4 * k}, 16, v{rs}', f'v_and_b32 v{T + 4 * k + 1}, {s(sMASK)}, v{rs}',
                   f'v_lshlrev_b32 v{T + 4 * k + 2}, 16, v{rs + 1}', f'v_and_b32 v{T + 4 * k + 3}, {s(sMASK)}, v{rs + 1}']
        rowoff = (1024 * hf + 16 * m2) * 1280
        un += [f's_add_u32 {s(sT0)}, {s(sOUT)}, {rowoff}', f's_add_u32 {s(sT1)}, {s(sOU4)}, {rowoff + 128}',
               lambda: [A.I(f's_cmp_eq_u32 {s(sWAVE)}, {p}'), A.I(f's_cselect_b32 {s(sT1)}, {s(sT1)}, 0x7ff00000')]]
        fin = []
        for k in range(2):
            q = P + 16 * k
            t = T + 4 * k
            if packed:
                for (d, x) in ((t, q), (q + 4, q + 8), (t, q + 12), (t, q + 4)):
                    fin += [f'v_pk_add_f32 {v(d + 2 * h, 2)}, {v(d + 2 * h, 2)}, {v(x + 2 * h, 2)}' for h in range(2)]
            else:
                for x in (q, q + 4, q + 8, q + 12):
                    fin += [f'v_add_f32 v{t + i}, v{t + i}, v{x + i}' for i in range(4)]
            fin += [f'v_cvt_pk_bf16_f32 v{q}, v{t}, v{t + 1}', f'v_cvt_pk_bf16_f32 v{q + 1}, v{t + 2}, v{t + 3}',
                    f'buffer_store_dwordx2 {v(q, 2)}, v27, {srd(SRD_OUT)}, {s(sT0 + k)} offen']
        return wr, un, sync, rd, fin

    def g2(self):
        A = self.A

        def arrive_c2():
            A.wait_vm(('hhst', 1))
            self.barrier()
            self.signal_c(1)

        def mf(p, kk):
            ACC = 32 + 20 * (p & 1)
            return [f'v_mfma_f32_16x16x32_bf16 {v(ACC + 4 * t, 4)}, {R(self.w2reg(5 * kk + t), 4)}, {R(self.hhreg(12 * (p & 1) + kk), 4)}, {v(ACC + 4 * t, 4) if kk else 0}'
                    for t in range(5)]

        def standalone(p, items=()):
            wr, un, sync, rd, fin = self.g2_reduce(p, True)
            self.interleave2(wr + un + [sync] + rd + fin, [], list(items))
        for hf in range(2):
            if hf == 1:
                self.apoll_check(7)
                self.stamp('C2_seen')
                for n in range(self.hh2pre):
                    for x in self.hh_item(1, n):
                        A.I(x)
                nxt = self.hh2pre + self.hh2mid
                standalone(1, [self.hh_item(1, n) for n in range(self.hh2pre, nxt)])
                self.stamp('g2h1_done')
            wr, un, sync, rd, fin = self.g2_reduce(2 * hf, False)
            sched = {6: ['s_nop 0', 's_nop 0'] + wr[:3], 7: wr[3:] + un, 8: [sync] + rd, 9: fin[:13], 10: fin[13:26], 11: fin[26:]}
            for k2 in range(12):
                self.stamp(f'g{hf + 1}k{k2}', fine=4)
                p = 2 * hf + k2 // 6
                kk = 2 * (k2 % 6)
                main = mf(p, kk) + mf(p, kk + 1)
                fill = []
                if hf == 0:
                    items = self.plan[('g2', k2)]
                    if k2 == self.c2sig:
                        fill.append(arrive_c2)
                else:
                    items = [self.hh_item(1, n) for n in range(nxt, min(24, nxt + 2))]
                    nxt = min(24, nxt + 2)
                fill += sched.get(k2, [])
                self.interleave2(main, fill, items, start=2 if k2 == 6 else 0)
            self.stamp(f'g2h{hf + 1}_mfma')
            if hf == 0:
                self.apoll_issue(7, CNT + SY_C + 16384)
        standalone(3)
        self.stamp('g2h2_done')

    def build(self):
        A = self.A
        self.prologue()
        self.p0()
        A.I(f's_cmp_lt_u32 {s(sIDX)}, 20')
        A.I('s_cbranch_scc1 L_conv')
        st = A.fork()
        self.formatter()
        st1 = A.fork()
        A.I('s_branch L_gemm')
        A.label('L_conv')
        A.restore(st)
        self.conv_prep()
        self.stamp('prep_done')
        self.conv()
        st2 = A.fork()
        A.label('L_gemm')
        A.join([st1, st2])
        if self.stop == 1:
            self.end()
            return self.finish()
        self.plan_loads()
        self.g1_half(0)
        self.g1_half(1)
        self.g2()
        self.flush_stamps()
        return self.finish()

    def finish(self):
        body = self.A.text()
        hdr = open('cdna_kernels/' + NAME + '.s.ref').read().split('; Override launch')[0]
        out = hdr
        out += '; Single persistent kernel, one workgroup per CU (generated by tools/gen.py)\n'
        out += '; @launch grid=(256,1,1) block=(256,1,1) lds=163840\n'
        out += '.amdgcn_target "amdgcn-amd-amdhsa--gfx950"\n.text\n'
        out += f'.globl {NAME}_kernel\n.p2align 8\n.type {NAME}_kernel,@function\n{NAME}_kernel:\n'
        out += body
        out += 'L_end:\n    s_endpgm\nL_code_end:\n'
        out += '.set CODE_PF_MAX, (L_code_end - ' + NAME + '_kernel - 4) & 0xffffff80\n'
        out += f'''.section .rodata,"a"
.p2align 6
.amdhsa_kernel {NAME}_kernel
  .amdhsa_next_free_vgpr 512
  .amdhsa_next_free_sgpr 100
  .amdhsa_accum_offset 256
  .amdhsa_group_segment_fixed_size 0
  .amdhsa_kernarg_size 104
  .amdhsa_user_sgpr_count 2
  .amdhsa_user_sgpr_kernarg_segment_ptr 1
  .amdhsa_system_sgpr_workgroup_id_x 1
  .amdhsa_float_denorm_mode_32 3
.end_amdhsa_kernel
'''
        return out


if __name__ == '__main__':
    import argparse
    ap = argparse.ArgumentParser()
    ap.add_argument('-o', default='cdna_kernels/' + NAME + '.s')
    ap.add_argument('--stop', type=int, default=99)
    ap.add_argument('--prof', action='store_true')
    ap.add_argument('--mapr', type=int, default=8)
    ap.add_argument('--probe', default=None)
    ap.add_argument('--opts', default='')
    args = ap.parse_args()
    g = Gen(stop=args.stop, prof=args.prof, mapr=args.mapr, probe=args.probe.split(',') if args.probe else None,
            **{k.split('=')[0]: int(k.split('=')[1]) for k in args.opts.split(',') if k})
    txt = g.build()
    open(args.o, 'w').write(txt)
    print('instructions', g.A.nins, g.A.stats, 'late', g.late, [len(x) for x in g.plan.values()])
```

```python
import sys
sys.path.insert(0, 'tools')
from asmlib import *

NAME = 'sequential_preLN__ssm_conv_h3__glu_gated_swiglu__prompt'

CNT = 0
SY_A, SY_W, SY_B1, SY_B2 = 0, 16384, 32768, 49152
SY_W2 = SY_W + 128
SY_C = 65536
NONCE = 98304
STATS = 102400
T_OFF, TS = 262144, 32896
H_OFF, HS = 5767168, 82048
CSP = 8396800
WF13 = 8650752
WF2 = 12582912
HH, HHS = 14680064, 49408
PROF = HH + 128 * HHS
WS_SIZE = PROF + 262144

TPITCH = 131 * 16
THALF = 8 * TPITCH
TL_ALL = 4 * THALF
KTBL = 0x64175302
RP = 4624
TLB, THB = TL_ALL, 0
KVX = TL_ALL
STL = TL_ALL + 40960
H1A, H1B, H2B = 131072, 0, 49152
RED = 0

sWAVE, sX, sIDX, sB = 3, 4, 5, 6
sSELLO, sSELHI, sMASK = 8, 9, 10
sT0, sT1, sT2, sT3 = 12, 13, 14, 15
sCNT = 11
sD = 16
sR, sC, sC2, sCH = 17, 18, 19, 20
sDV = 21
sU0, sU1, sU2, sU3 = 22, 23, 24, 25
sPROF = 26
sTM = 28
sEX = 30
SRD_X, SRD_K, SRD_V, SRD_SH, SRD_SK, SRD_W1, SRD_W3, SRD_W2, SRD_OUT, SRD_WS, SRD_DBG = 44, 48, 52, 56, 60, 64, 68, 72, 76, 80, 84
sDP = 88
sPC = 90
sPL = 27
sSG = 43
sW13, sW2, sHH = 88, 89, 40
sL0, sL1 = 41, 42
sH0 = 86
sG13, sGH, sG2, sGHH = 44, 49, 54, 57
sRA, sRB, sCSO, sOUT, sOU4 = 84, 85, 87, 60, 61
STG0 = 0
XI, XIP = 2 * TL_ALL, 1344
FW13, FW3D = TL_ALL, 20608
FW2 = TL_ALL + 41216
sFB = 94
sNC = 92


def srd(b):
    return s(b, 4)


class Gen:
    def __init__(self, stop=99, prof=False, mapr=8, probe=None, early_dma=1, b1mu=1, wmu=1, wpace=6, b2k=10, c1k=12, c1sig=5, c2sig=5, w2a=12, clk=0, wsoff=0, fnt=1, skpos=1, warm=0, pace=3, epace=5, lat=3, hpre=8, w2k=4, w2pos=1, fine=0, rot=0, rot2=0, t2pos=1, b1k=6, sk=13, c2k=10, hh2pre=8, b2sig=3, hh2mid=6):
        self.hh2mid = hh2mid
        self.b2sig = b2sig
        self.rot, self.rot2, self.t2pos, self.b1k, self.sk, self.c2k, self.hh2pre = rot, rot2, t2pos, b1k, sk, c2k, hh2pre
        self.fine = fine
        self.w2pos = w2pos
        self.epace, self.lat, self.hpre, self.w2k = epace, lat, hpre, w2k
        self.skpos, self.warm, self.pace = skpos, warm, pace
        self.nearly = wpace * (7 - wmu)
        self.fnt = 'nt ' if fnt else ''
        self.wsoff = wsoff
        self.clk = clk
        self.probe = probe
        self.early_dma, self.b1mu, self.wmu, self.wpace = early_dma, b1mu, wmu, wpace
        self.b2k, self.c1k, self.c1sig, self.c2sig, self.w2a = b2k, c1k, c1sig, c2sig, w2a
        self.A = Asm()
        self.stop = stop
        self.prof = prof
        self.mapr = mapr
        self.nstamp = 0
        self.stamp_names = []

    def stamp(self, name, fine=0):
        if self.probe and name in self.probe:
            k = 96 if name == self.probe[0] else 98
            self.A.I(f's_memrealtime {s(k, 2)}')
            self.A.hard_wait('lgkmcnt(0)')
        if not self.prof:
            return
        if fine and fine != self.fine:
            return
        A = self.A
        if name in self.stamp_names:
            idx = self.stamp_names.index(name)
        else:
            idx = len(self.stamp_names)
            self.stamp_names.append(name)
        assert idx < 63
        A._push(Ins(f'v_writelane_b32 v18, {s(sTM)}, {s(sPROF)}'.replace(s(sPROF), 'm0') if False else f's_nop 0'))
        A.lines.pop()
        A.lines.append(f'    s_mov_b32 s95, m0')
        A.lines.append(f'    s_mov_b32 m0, {s(sPROF)}')
        A.lines.append(f'    v_writelane_b32 v18, {s(sTM)}, m0')
        A.lines.append(f'    s_mov_b32 m0, s95')
        A.lines.append(f'    s_mov_b32 {s(sPROF)}, {idx}')
        A.lines.append(f'    {"s_memtime" if self.clk else "s_memrealtime"} {s(sTM, 2)}')
        if not fine:
            A.hard_wait('lgkmcnt(0)')

    def flush_stamps(self):
        if self.probe:
            A = self.A
            A.I('s_cmp_lg_u32 s2, 9')
            A.I('s_cbranch_scc1 L_end')
            A.I('s_sub_u32 s98, s98, s96')
            A.I('s_mul_i32 s98, s98, 10')
            A.I('s_memrealtime s[96:97]')
            A.hard_wait('lgkmcnt(0)')
            A.label('L_probe')
            A.I(f's_memrealtime {s(sTM, 2)}')
            A.hard_wait('lgkmcnt(0)')
            A.I(f's_sub_u32 {s(sTM)}, {s(sTM)}, s96')
            A.I(f's_cmp_lt_u32 {s(sTM)}, s98')
            A.I('s_cbranch_scc1 L_probe')
        if not self.prof:
            return
        A = self.A
        A.hard_wait('lgkmcnt(0)')
        A.lines.append(f'    s_mov_b32 m0, {s(sPROF)}')
        A.lines.append(f'    v_writelane_b32 v18, {s(sTM)}, m0')
        A.I(f's_lshl_b32 {s(sT0)}, s2, 2')
        A.I(f's_add_u32 {s(sT0)}, {s(sT0)}, {s(sWAVE)}')
        A.I(f's_lshl_b32 {s(sT0)}, {s(sT0)}, 8')
        A.I(f's_add_u32 {s(sT0)}, {s(sT0)}, {PROF}')
        A.I('v_lshlrev_b32 v252, 2, v1')
        A.I(f'buffer_store_dword v18, v252, {srd(SRD_WS)}, {s(sT0)} offen')
        A.I('s_mov_b64 exec, -1')

    def interleave(self, main, fill, per=2, start=0):
        A = self.A
        n = len(main) - start
        k = 0
        for i, m in enumerate(main):
            self.emit(m)
            if i < start:
                continue
            upto = min(len(fill), k + per, -(-len(fill) * (i - start + 1) // n) if n else len(fill))
            while k < upto:
                self.emit(fill[k])
                k += 1
        while k < len(fill):
            self.emit(fill[k])
            k += 1

    def interleave2(self, main, fill, items, start=0, head=()):
        n = len(main)
        gaps = [[] for _ in range(n)]
        full = [False] * n
        m = len(items)
        for i, it in enumerate(items):
            g = min(n - 1, max(1, int((i + 0.7) * n / m)))
            assert not full[g]
            gaps[g - 1] += it[:-1]
            gaps[g].append(it[-1])
            full[g] = True
        if head:
            full[0] = True
        room = [0 if (full[g] or g < start) else max(0, 2 - len(gaps[g])) for g in range(n)]
        tot = sum(room)
        k = 0
        acc = 0
        for g in range(n):
            self.emit(main[g])
            if g == 0:
                for x in head:
                    self.emit(x)
            acc += room[g]
            upto = min(len(fill), k + room[g], -(-len(fill) * acc // tot) if tot else 0)
            while k < upto:
                self.emit(fill[k])
                k += 1
            for x in gaps[g]:
                self.emit(x)
        while k < len(fill):
            self.emit(fill[k])
            k += 1

    def emit(self, x):
        if callable(x):
            x()
        else:
            self.A.I(x)

    def only_wave(self, w, body):
        A = self.A
        L = A.newlabel('L_skip')
        A.I(f's_cmp_lg_u32 {s(sWAVE)}, {w}')
        A.I(f's_cbranch_scc1 {L}')
        st = A.fork()
        body()
        st2 = A.fork()
        A.label(L)
        A.join([st, st2])

    PV = 252

    def poll_test(self):
        A = self.A
        P = self.PV
        A.I(f'v_cmp_eq_u64 vcc, {s(sNC, 2)}, {v(P, 2)}')
        A.I(f'v_cmp_eq_u64 {s(sEX, 2)}, {s(sNC, 2)}, {v(P + 2, 2)}')
        A.I(f's_and_b64 vcc, vcc, {s(sEX, 2)}')
        A.I('s_cmp_eq_u64 vcc, -1')

    def poll_loop(self, voff):
        A = self.A
        Ll, Ld = A.newlabel('L_poll'), A.newlabel('L_polld')
        A.I(f's_mov_b32 {s(sCNT)}, 0x20000')
        A.label(Ll)
        A.I(f'buffer_load_dwordx4 {v(self.PV, 4)}, v{voff}, {srd(SRD_WS)}, {s(sPL)} offen sc1')
        A.hard_wait('vmcnt(0)')
        self.poll_test()
        A.I(f's_cbranch_scc1 {Ld}')
        A.I(f's_sub_u32 {s(sCNT)}, {s(sCNT)}, 1')
        A.I(f's_cbranch_scc0 {Ll}')
        A.label(Ld)

    def poll_kind(self, kind, reg=5):
        return [x.replace('v5', f'v{reg}') for x in self.poll_kind5(kind)]

    def poll_kind5(self, kind):
        L = ['v_and_b32 v5, 7, v1']
        if kind == 'B':
            L.append('v_min_u32 v5, 4, v5')
        if kind == 'W':
            L.append('v_max_u32 v5, 5, v5')
        L += [f'v_and_b32 v{self.PV}, 56, v1', f'v_lshlrev_b32 v{self.PV}, 5, v{self.PV}', f'v_lshl_add_u32 v5, v5, 4, v{self.PV}',
              f's_lshl_b32 {s(sPL)}, {s(sX)}, 11', f'v_add_u32 v5, {s(sPL)}, v5']
        return L

    def signal_global(self, sy):
        A = self.A
        A.I(f's_mov_b32 {s(sSG)}, {CNT + sy}')
        A.I('s_mov_b64 exec, 3')
        A.I(f'buffer_atomic_swap v6, v4, {srd(SRD_WS)}, {s(sSG)} offen sc1')
        A.I('s_mov_b64 exec, -1')

    def poll_global(self, sy):
        A = self.A
        A.I(f's_mov_b32 {s(sPL)}, {CNT + sy}')
        self.poll_loop(5)

    def signal_c(self, half):
        A = self.A
        A.I(f's_mov_b32 {s(sSG)}, {CNT + SY_C + half * 16384}')
        A.I('s_mov_b64 exec, 1')
        A.I(f'buffer_atomic_swap v6, v3, {srd(SRD_WS)}, {s(sSG)} offen sc1')
        A.I('s_mov_b64 exec, -1')

    def poll_c(self, half):
        A = self.A
        A.I(f's_mov_b32 {s(sPL)}, {CNT + SY_C + half * 16384}')
        self.poll_loop(7)

    def apoll_issue(self, voff, off):
        A = self.A
        A.I(f's_mov_b32 {s(sPL)}, {off}')
        A.I(f'buffer_load_dwordx4 {v(self.PV, 4)}, v{voff}, {srd(SRD_WS)}, {s(sPL)} offen sc1')

    def apoll_check(self, voff):
        A = self.A
        L = A.newlabel('L_ok')
        self.poll_test()
        A.I(f's_cbranch_scc1 {L}')
        st = A.fork()
        self.poll_loop(voff)
        A.label(L)
        A.restore(st)

    def barrier(self):
        self.A.I('s_barrier')

    def end(self):
        self.flush_stamps()
        self.A.I('s_branch L_end')

    def prologue(self):
        A = self.A
        if self.probe and 'entry' in self.probe:
            A.lines.append('    s_memrealtime s[96:97]')
        A.I('s_load_dwordx16 s[64:79], s[0:1], 0')
        A.I('s_load_dwordx8 s[32:39], s[0:1], 64')
        A.I(f's_load_dwordx2 {s(SRD_WS, 2)}, s[0:1], 96')
        A.I('s_cmp_ge_u32 s2, 256')
        A.I('s_cbranch_scc1 L_end')
        A.I('v_lshrrev_b32 v2, 6, v0')
        A.I('v_and_b32 v1, 63, v0')
        A.I(f'v_readfirstlane_b32 {s(sWAVE)}, v2')
        A.I(f's_and_b32 {s(sX)}, s2, 7')
        A.I(f's_lshr_b32 {s(sIDX)}, s2, 3')
        A.I(f's_lshl_b32 {s(sB)}, {s(sX)}, 5')
        A.I(f's_add_u32 {s(sB)}, {s(sB)}, {s(sIDX)}')
        A.I(f's_mul_i32 {s(sT1)}, {s(sB)}, 10240')
        if self.prof:
            A.I('v_mov_b32 v18, 0')
            A.I(f's_mov_b32 {s(sPROF)}, 63')
            A.I(f's_mov_b32 {s(sTM)}, 0')
            A.I('s_mov_b32 m0, 0')

    def srd_words(self):
        A = self.A
        for b, size in ((SRD_K, 2621440), (SRD_V, 2621440), (SRD_X, 2621440), (SRD_SH, 5120), (SRD_WS, WS_SIZE)):
            A.I(f's_mov_b32 {s(b + 2)}, {size}')
            A.I(f's_mov_b32 {s(b + 3)}, 0x20000')
        A.I(f's_mov_b32 {s(SRD_SK + 3)}, 0x20000')
        A.I(f's_mul_i32 {s(sD)}, {s(sX)}, 20')
        A.I(f's_add_u32 {s(sD)}, {s(sD)}, {s(sIDX)}')
        A.I(f's_lshl_b32 {s(sD)}, {s(sD)}, 2')
        A.I(f's_add_u32 {s(sD)}, {s(sD)}, {s(sWAVE)}')
        A.I(f's_cmp_lt_u32 {s(sIDX)}, 20')
        A.I(f's_cselect_b32 {s(SRD_SK + 2)}, 4096, 0')
        A.I(f's_cselect_b32 {s(sFB)}, {163840 - FW13}, 0')
        A.I(f's_cselect_b32 {s(sD)}, {s(sD)}, 0')
        A.I(f's_mov_b32 {s(sSELLO)}, 0x05040100')
        A.I(f's_mov_b32 {s(sSELHI)}, 0x07060302')
        A.I(f's_mov_b32 {s(sMASK)}, 0xffff0000')

    def srd_rest(self):
        A = self.A
        A.I(f's_load_dword {s(sNC)}, {s(SRD_WS, 2)}, {NONCE}')
        A.I(f's_lshl_b32 {s(sT2)}, {s(sD)}, 1')
        A.I(f's_and_b32 {s(sT2)}, {s(sT2)}, -4')
        A.I(f's_load_dword {s(sDV)}, s[74:75], {s(sT2)}')
        A.I(f's_lshl_b32 {s(sT0)}, {s(sD)}, 12')
        A.I(f's_add_u32 {s(SRD_SK)}, s72, {s(sT0)}')
        A.I(f's_addc_u32 {s(SRD_SK + 1)}, s73, 0')
        A.I(f's_mov_b64 {s(SRD_W1, 2)}, s[78:79]')
        A.I(f's_mov_b64 {s(SRD_W3, 2)}, s[32:33]')
        A.I(f's_mov_b64 {s(SRD_W2, 2)}, s[34:35]')
        A.I(f's_mov_b64 {s(SRD_OUT, 2)}, s[36:37]')
        A.I(f's_cmp_lt_u32 {s(sIDX)}, 20')
        A.I(f's_cselect_b32 {s(SRD_W1 + 2)}, 0, 1966080')
        A.I(f's_cselect_b32 {s(SRD_W3 + 2)}, 0, 1966080')
        A.I(f's_mov_b32 {s(SRD_W2 + 2)}, 1966080')
        A.I(f's_mov_b32 {s(SRD_OUT + 2)}, 2621440')
        for b in (SRD_W1, SRD_W3, SRD_W2, SRD_OUT):
            A.I(f's_mov_b32 {s(b + 3)}, 0x20000')

    def common_consts(self):
        A = self.A
        A.I('v_lshlrev_b32 v2, 4, v1')
        A.I(f's_lshl_b32 {s(sT2)}, {s(sWAVE)}, 12')
        A.I(f's_lshl_b32 {s(sT3)}, {s(sX)}, 8')
        A.I(f's_add_u32 {s(sT2)}, {s(sT2)}, {s(sT3)}')
        A.I(f's_lshl_b32 {s(sT3)}, {s(sIDX)}, 2')
        A.I(f's_add_u32 {s(sT2)}, {s(sT2)}, {s(sT3)}')
        A.I(f'v_lshl_add_u32 v4, v1, 11, {s(sT2)}')
        if self.mapr == 2:
            A.I(f's_lshr_b32 {s(sR)}, {s(sIDX)}, 4')
            A.I(f's_lshl_b32 {s(sT2)}, {s(sX)}, 1')
            A.I(f's_add_u32 {s(sR)}, {s(sR)}, {s(sT2)}')
            A.I(f's_and_b32 {s(sC)}, {s(sIDX)}, 15')
        elif self.mapr == 8:
            A.I(f's_lshr_b32 {s(sR)}, {s(sIDX)}, 2')
            A.I(f's_lshr_b32 {s(sT2)}, {s(sX)}, 2')
            A.I(f's_lshl_b32 {s(sT2)}, {s(sT2)}, 3')
            A.I(f's_add_u32 {s(sR)}, {s(sR)}, {s(sT2)}')
            A.I(f's_and_b32 {s(sC)}, {s(sIDX)}, 3')
            A.I(f's_and_b32 {s(sT2)}, {s(sX)}, 3')
            A.I(f's_lshl_b32 {s(sT2)}, {s(sT2)}, 2')
            A.I(f's_add_u32 {s(sC)}, {s(sC)}, {s(sT2)}')
        else:
            A.I(f's_lshr_b32 {s(sR)}, {s(sIDX)}, 3')
            A.I(f's_lshr_b32 {s(sT2)}, {s(sX)}, 1')
            A.I(f's_lshl_b32 {s(sT2)}, {s(sT2)}, 2')
            A.I(f's_add_u32 {s(sR)}, {s(sR)}, {s(sT2)}')
            A.I(f's_and_b32 {s(sC)}, {s(sIDX)}, 7')
            A.I(f's_and_b32 {s(sT2)}, {s(sX)}, 1')
            A.I(f's_lshl_b32 {s(sT2)}, {s(sT2)}, 3')
            A.I(f's_add_u32 {s(sC)}, {s(sC)}, {s(sT2)}')
        A.I(f's_and_b32 {s(sC2)}, {s(sC)}, 7')
        A.I(f's_lshr_b32 {s(sCH)}, {s(sC)}, 3')
        nrep = self.mapr // 2
        A.I(f's_lshl_b32 {s(sT2)}, {s(sR)}, 10')
        A.I(f's_lshl_b32 {s(sT3)}, {s(sWAVE)}, 8')
        A.I(f's_add_u32 {s(sT3)}, {s(sT3)}, {s(sT2)}')
        A.I(f's_lshl_b32 {s(sSG)}, {s(sC)}, 2')
        A.I(f's_add_u32 {s(sT3)}, {s(sT3)}, {s(sSG)}')
        A.I(f's_cmp_lt_u32 {s(sWAVE)}, {nrep}')
        A.I(f's_cselect_b32 {s(sT3)}, {s(sT3)}, 0x7ff00000')
        A.I(f'v_mov_b32 v3, {s(sT3)}')
        A.I(f's_lshr_b32 {s(sT3)}, {s(sC)}, {({1: 4, 2: 3, 4: 2})[nrep]}')
        A.I(f's_lshl_b32 {s(sT3)}, {s(sT3)}, 8')
        A.I(f's_add_u32 {s(sT2)}, {s(sT2)}, {s(sT3)}')
        A.I('v_and_b32 v7, 3, v1')
        A.I(f'v_lshl_add_u32 v7, v7, 4, {s(sT2)}')
        A.I(f's_lshl_b32 {s(sT2)}, {s(sC)}, 2')
        A.I(f's_add_u32 {s(sT2)}, {s(sT2)}, {s(sWAVE)}')
        A.I(f's_mul_i32 {s(sW13)}, {s(sT2)}, 61440')
        A.I(f's_add_u32 {s(sW13)}, {s(sW13)}, {WF13}')
        A.I(f's_lshl_b32 {s(sT2)}, {s(sC2)}, 2')
        A.I(f's_add_u32 {s(sT2)}, {s(sT2)}, {s(sWAVE)}')
        A.I(f's_mul_i32 {s(sW2)}, {s(sT2)}, 61440')
        A.I(f's_add_u32 {s(sW2)}, {s(sW2)}, {WF2}')
        A.I(f's_lshl_b32 {s(sT2)}, {s(sR)}, 1')
        A.I(f's_add_u32 {s(sT2)}, {s(sT2)}, {s(sCH)}')
        A.I(f's_mul_i32 {s(sHH)}, {s(sT2)}, {2 * HHS}')
        A.I(f's_mul_i32 {s(sT2)}, {s(sWAVE)}, 12288')
        A.I(f's_add_u32 {s(sHH)}, {s(sHH)}, {s(sT2)}')
        A.I(f's_add_u32 {s(sHH)}, {s(sHH)}, {HH}')

    XS = 220

    def ssmk_loads(self):
        A = self.A
        self.fmt_early()
        A.I('v_subrev_u32 v5, 16, v2')
        for i in range(4):
            if i == 0:
                A.I(f'buffer_load_dwordx4 {v(self.XS, 4)}, v5, {srd(SRD_SK)}, 0 offen nt')
            else:
                A.I(f'buffer_load_dwordx4 {v(self.XS + 8 * i, 4)}, v2, {srd(SRD_SK)}, 0 offen offset:{1024 * i - 16} nt')
            self.tag_sk = A.I(f'buffer_load_dwordx4 {v(self.XS + 8 * i + 4, 4)}, v2, {srd(SRD_SK)}, 0 offen offset:{1024 * i} nt')

    def p0_kv(self):
        A = self.A
        SH, KR, VR, S, KF, KV, O, VF = 8, 20, 42, 70, 86, 130, 86, 174
        A.I('v_lshlrev_b32 v2, 3, v0')
        A.I(f'v_add_u32 v166, {s(sT1)}, v2')
        A.I('v_subrev_u32 v167, 3840, v166')
        A.I('v_lshlrev_b32 v168, 5, v0')
        self.srd_words()
        self.common_consts()
        A.I('v_mul_u32_u24 v169, 144, v0')
        A.I(f'v_add_u32 v169, {STG0}, v169')
        A.I('v_cmp_gt_u32 vcc, 160, v0')
        A.I(f's_mov_b32 {s(sT2)}, 5120')
        A.I('s_and_b64 exec, exec, vcc')
        A.wait_all()
        self.stamp('start')
        A.I(f's_mov_b64 {s(SRD_K, 2)}, s[66:67]')
        A.I(f's_mov_b64 {s(SRD_SH, 2)}, s[70:71]')
        A.I(f's_mov_b64 {s(SRD_V, 2)}, s[68:69]')
        for j in range(3):
            A.I(f'buffer_load_dwordx2 {v(KR + 2 * j, 2)}, v167, {srd(SRD_K)}, 0 offen offset:{1280 * j} nt')

        def rows(dst, sr):
            for j in range(8):
                so = '0' if j < 4 else s(sT2)
                A.I(f'buffer_load_dwordx2 {v(dst + 2 * j, 2)}, v166, {srd(sr)}, {so} offen offset:{1280 * (j & 3)} nt')
        rows(KR + 6, SRD_K)
        A.I(f'buffer_load_dwordx4 {v(SH, 4)}, v168, {srd(SRD_SH)}, 0 offen')
        A.I(f'buffer_load_dwordx4 {v(SH + 4, 4)}, v168, {srd(SRD_SH)}, 0 offen offset:16')
        rows(VR, SRD_V)
        A.I(f's_mov_b64 {s(sEX, 2)}, exec')
        A.I('s_mov_b64 exec, -1')
        self.srd_rest()
        if self.skpos == 0:
            self.ssmk_loads()
        for j in range(11):
            for e in range(2):
                A.I(f'v_lshlrev_b32 v{KF + 4 * j + 2 * e}, 16, v{KR + 2 * j + e}')
                A.I(f'v_and_b32 v{KF + 4 * j + 2 * e + 1}, {s(sMASK)}, v{KR + 2 * j + e}')
            if j == 0 and self.skpos == 1:
                self.ssmk_loads()
        for c in range(4):
            A.I(f'v_lshlrev_b32 v{S + 0 + c}, 16, v{SH + 2 * c}')
            A.I(f'v_and_b32 v{S + 4 + c}, {s(sMASK)}, v{SH + 2 * c}')
            A.I(f'v_lshlrev_b32 v{S + 8 + c}, 16, v{SH + 2 * c + 1}')
            A.I(f'v_and_b32 v{S + 12 + c}, {s(sMASK)}, v{SH + 2 * c + 1}')
        for tap in range(4):
            for t in range(8):
                for e in range(2):
                    d = v(KV + 4 * t + 2 * e, 2)
                    kk = v(KF + 4 * (t + 3 - tap) + 2 * e, 2)
                    ss = v(S + 4 * tap + 2 * e, 2)
                    if tap == 0:
                        A.I(f'v_pk_mul_f32 {d}, {kk}, {ss}')
                    else:
                        A.I(f'v_pk_fma_f32 {d}, {kk}, {ss}, {d}')
        for t in range(8):
            for e in range(2):
                A.I(f'v_lshlrev_b32 v{VF + 4 * t + 2 * e}, 16, v{VR + 2 * t + e}')
                A.I(f'v_and_b32 v{VF + 4 * t + 2 * e + 1}, {s(sMASK)}, v{VR + 2 * t + e}')
        self.stamp('kv_landed')
        for t in range(8):
            for e in range(2):
                d = v(KV + 4 * t + 2 * e, 2)
                A.I(f'v_pk_mul_f32 {d}, {d}, {v(VF + 4 * t + 2 * e, 2)}')
        A.I(f's_mov_b64 exec, {s(sEX, 2)}')
        for c in range(4):
            for e in range(4):
                A.I(f'v_cvt_pk_bf16_f32 v{O + 8 * c + e}, v{KV + 4 * (7 - 2 * e) + c}, v{KV + 4 * (6 - 2 * e) + c}')
            A.I(f'ds_write_b128 v169, {v(O + 8 * c, 4)} offset:{32 * c}')
        A.I('s_mov_b64 exec, -1')

    def fmt_unit_off(self, dst, u):
        A = self.A
        A.I(f's_mul_i32 {s(sT3)}, {u}, 5')
        A.I(f's_add_u32 {s(sT3)}, {s(sT3)}, {s(sU0)}')
        A.I(f's_sub_u32 {s(dst)}, {s(sT3)}, 24')
        A.I(f's_min_u32 {s(sT3)}, {s(sT3)}, {s(dst)}')
        A.I(f's_add_u32 {s(dst)}, {s(sU1)}, {u}')
        A.I(f's_mul_i32 {s(dst)}, {s(dst)}, {32 * 24}')
        A.I(f's_add_u32 {s(dst)}, {s(dst)}, {s(sT3)}')
        A.I(f's_lshl_b32 {s(dst)}, {s(dst)}, 7')

    def w13_dma_pair(self):
        A = self.A
        A.I(f'buffer_load_dwordx4 v219, {srd(SRD_W1)}, {s(sT2)} offen {self.fnt}lds')
        A.I(f's_add_u32 m0, m0, {FW3D}')
        return A.I(f'buffer_load_dwordx4 v219, {srd(SRD_W3)}, {s(sT2)} offen {self.fnt}lds')

    def fmt_early(self):
        A = self.A
        self.fmt_ids()
        A.I('v_lshrrev_b32 v219, 3, v1')
        A.I('v_mul_u32_u24 v219, 3072, v219')
        A.I('v_and_b32 v218, 7, v1')
        A.I('v_lshl_add_u32 v219, v218, 4, v219')
        A.I(f's_lshr_b32 {s(sT0)}, {s(sWAVE)}, 1')
        self.fmt_unit_off(sT2, s(sT0))
        A.I(f's_and_b32 {s(sT3)}, {s(sWAVE)}, 1')
        A.I(f's_mul_i32 {s(sT3)}, {s(sT3)}, {16 * 3072}')
        A.I(f's_add_u32 {s(sT2)}, {s(sT2)}, {s(sT3)}')
        A.I(f's_lshl_b32 {s(sT0)}, {s(sWAVE)}, 11')
        A.I(f's_add_u32 {s(sT0)}, {s(sT0)}, {s(sFB)}')
        A.I(f's_add_u32 m0, {s(sT0)}, {FW13}')
        self.w13_dma_pair()
        A.I(f's_add_u32 m0, {s(sT0)}, {FW13 + 1024}')
        A.I(f's_add_u32 {s(sT2)}, {s(sT2)}, {8 * 3072}')
        self.w13_dma_pair()

    def fmt_late(self):
        A = self.A
        A.I(f's_mul_i32 {s(sT1)}, {s(sWAVE)}, {8 * 3072}')
        A.I(f's_lshl_b32 {s(sT0)}, {s(sWAVE)}, 10')
        for u in range(2, 5):
            self.fmt_unit_off(sT2, u)
            A.I(f's_add_u32 {s(sT2)}, {s(sT2)}, {s(sT1)}')
            A.I(f's_add_u32 m0, {s(sT0)}, {FW13 + 4096 * u}')
            t13 = self.w13_dma_pair()
        return t13

    def fmt_w2dma(self):
        A = self.A
        A.I(f's_lshl_b32 {s(sT2)}, {s(sU2)}, 2')
        A.I(f's_add_u32 {s(sT2)}, {s(sT2)}, {s(sWAVE)}')
        A.I(f's_mul_i32 {s(sT2)}, {s(sT2)}, {16 * 1280}')
        A.I(f's_mul_i32 {s(sT3)}, {s(sU3)}, 320')
        A.I(f's_add_u32 {s(sT2)}, {s(sT2)}, {s(sT3)}')
        A.I(f's_mul_i32 {s(sT0)}, {s(sWAVE)}, 5120')
        A.I(f's_add_u32 m0, {s(sT0)}, {FW2}')
        for i in range(5):
            A.I(f'v_add_u32 v121, {64 * i}, v1')
            A.I('v_mul_u32_u24 v122, 3277, v121')
            A.I('v_lshrrev_b32 v122, 16, v122')
            A.I('v_mul_u32_u24 v122, 960, v122')
            A.I('v_lshl_add_u32 v123, v121, 4, v122')
            t2 = A.I(f'buffer_load_dwordx4 v123, {srd(SRD_W2)}, {s(sT2)} offen {self.fnt}lds')
            A.I('s_add_u32 m0, m0, 1024')
        return t2

    def fmt_ids(self):
        A = self.A
        A.I(f's_mul_i32 {s(sU2)}, {s(sX)}, 12')
        A.I(f's_add_u32 {s(sU2)}, {s(sU2)}, {s(sIDX)}')
        A.I(f's_sub_u32 {s(sU2)}, {s(sU2)}, 20')
        A.I(f's_lshr_b32 {s(sU1)}, {s(sX)}, 1')
        A.I(f's_mul_i32 {s(sU0)}, {s(sU1)}, 24')
        A.I(f's_sub_u32 {s(sU0)}, {s(sU2)}, {s(sU0)}')
        A.I(f's_mul_i32 {s(sU1)}, {s(sU1)}, 5')
        A.I(f's_and_b32 {s(sU3)}, {s(sU2)}, 3')
        A.I(f's_lshr_b32 {s(sU2)}, {s(sU2)}, 2')

    def p0_stats(self):
        A = self.A
        FR, G_, S_, ONE, XT = 20, 60, 64, 68, 72
        A.I(f's_getpc_b64 {s(sPC, 2)}')
        A.label('L_pc')
        A.I(f's_sub_u32 {s(sPC)}, {s(sPC)}, L_pc-{NAME}_kernel')
        A.I(f's_subb_u32 {s(sPC + 1)}, {s(sPC + 1)}, 0')
        A.I(f's_lshl_b32 {s(sT2)}, {s(sIDX)}, 11')
        A.I('v_lshlrev_b32 v9, 7, v1')
        A.I(f'v_add_u32 v9, {s(sT2)}, v9')
        A.I('v_min_u32 v9, CODE_PF_MAX, v9')
        A.I('s_mov_b64 exec, 0xffff')
        A.I(f'global_load_dword v{self.PV}, v9, {s(sPC, 2)}')
        A.I('s_mov_b64 exec, -1')
        A.I('v_and_b32 v11, 7, v1')
        A.I('v_mul_u32_u24 v16, 1280, v11')
        A.I('v_bfe_u32 v9, v1, 3, 1')
        A.I('v_lshlrev_b32 v9, 6, v9')
        A.I('v_and_or_b32 v9, v1, 48, v9')
        A.I('v_add_u32 v16, v16, v9')
        A.I(f'v_mul_u32_u24 v8, {XIP}, v11')
        A.I(f'v_add_u32 v8, {XI}, v8')
        A.I('v_add_u32 v8, v8, v9')
        self.srd_words()
        self.common_consts()
        A.I('v_bfe_u32 v9, v1, 2, 2')
        A.I(f'v_mul_u32_u24 v9, {XIP}, v9')
        A.I('v_lshrrev_b32 v10, 4, v1')
        A.I('v_lshl_add_u32 v9, v10, 5, v9')
        A.I('v_and_b32 v11, 3, v1')
        A.I('v_lshl_add_u32 v9, v11, 3, v9')
        A.I(f'v_add_u32 v9, {XI}, v9')
        A.I('v_lshrrev_b32 v15, 2, v1')
        A.I('v_mul_u32_u24 v15, 144, v15')
        A.I('v_lshl_add_u32 v15, v11, 5, v15')
        A.I(f'v_add_u32 v15, {STG0 + 16}, v15')
        A.I('v_and_b32 v10, 15, v1')
        A.I('v_lshrrev_b32 v12, 2, v10')
        A.I('v_lshl_add_u32 v12, v12, 4, v10')
        A.I('v_lshlrev_b32 v12, 2, v12')
        A.wait_all(vm=False)
        self.stamp('start')
        A.I(f's_mov_b64 {s(SRD_X, 2)}, s[64:65]')
        for f in range(10):
            A.I(f'buffer_load_dwordx4 {v(FR + 4 * f, 4)}, v16, {srd(SRD_X)}, {s(sT1)} offen offset:{128 * f} nt')
        self.srd_rest()
        if self.skpos == 0:
            self.ssmk_loads()
        for i in range(4):
            A.I(f'v_mov_b32 v{ONE + i}, 0x3f803f80')
        for f in range(10):
            fr = v(FR + 4 * f, 4)
            A.I(f'ds_write_b128 v8, {fr} offset:{128 * f}')
            if f == 0 and self.skpos == 1:
                self.ssmk_loads()
            A.I(f'v_mfma_f32_16x16x32_bf16 {v(G_, 4)}, {fr}, {fr}, {v(G_, 4) if f else 0}')
            A.I(f'ds_read_b64_tr_b16 {v(XT + 4 * f, 2)}, v9 offset:{128 * f}')
            A.I(f'v_mfma_f32_16x16x32_bf16 {v(S_, 4)}, {v(ONE, 4)}, {fr}, {v(S_, 4) if f else 0}')
            A.I(f'ds_read_b64_tr_b16 {v(XT + 4 * f + 2, 2)}, v9 offset:{128 * f + 4 * XIP}')
        self.stamp('kv_landed')
        for f in range(10):
            A.I(f'ds_write_b128 v15, {v(XT + 4 * f, 4)} offset:{2304 * f}')
        for i in range(1, 4):
            A.I(f'v_cmp_eq_u32 vcc, {i}, v11')
            A.I(f'v_cndmask_b32 v{G_}, v{G_}, v{G_ + i}, vcc')
        A.I(f'ds_bpermute_b32 v13, v12, v{G_}')
        A.I(f'v_add_f32_dpp v14, v{S_}, v{S_} row_ror:8 row_mask:0xf bank_mask:0xf')
        A.I('v_add_f32_dpp v13, v13, v13 row_ror:8 row_mask:0xf bank_mask:0xf')
        A.I('v_mul_f32 v14, 0x3acccccd, v14')
        A.I('v_mul_f32 v13, 0x3acccccd, v13')
        A.I('v_fma_f32 v13, -v14, v14, v13')
        A.I('v_max_f32 v13, 0, v13')
        A.I('v_add_f32 v13, 0x3727c5ac, v13')
        A.I('v_rsq_f32 v13, v13')
        A.I('v_cmp_gt_u32 vcc, 8, v10')
        A.I('v_mul_f32_e64 v14, -v14, v13')
        A.I('v_cndmask_b32 v13, v14, v13, vcc')
        A.I('v_lshlrev_b32 v9, 2, v1')
        A.I(f's_lshl_b32 {s(sT2)}, {s(sB)}, 6')
        A.I(f's_add_u32 {s(sT2)}, {s(sT2)}, {STATS}')
        A.I('s_mov_b64 exec, 0xffff')
        A.I(f'buffer_store_dword v13, v9, {srd(SRD_WS)}, {s(sT2)} offen sc1')
        A.I('s_mov_b64 exec, -1')

    def p0(self):
        A = self.A
        A.I(f's_cmp_lg_u32 {s(sWAVE)}, 3')
        A.I('s_cbranch_scc1 L_p0_kv')
        st = A.fork()
        self.p0_stats()
        st1 = A.fork()
        A.I('s_branch L_p0_join')
        A.label('L_p0_kv')
        A.restore(st)
        self.p0_kv()
        st2 = A.fork()
        A.label('L_p0_join')
        A.join([st1, st2])
        RB = 130
        A.I('v_lshrrev_b32 v170, 3, v1')
        A.I('v_and_b32 v171, 7, v1')
        A.I('v_lshlrev_b32 v171, 4, v171')
        A.I('v_mul_u32_u24 v172, 144, v170')
        A.I(f's_mul_i32 {s(sT3)}, {s(sWAVE)}, {40 * 144}')
        A.I(f's_add_u32 {s(sT3)}, {s(sT3)}, {STG0}')
        A.I(f'v_add3_u32 v172, v172, v171, {s(sT3)}')
        A.I(f'v_mul_u32_u24 v173, {TS}, v170')
        A.I('v_add_u32 v173, v173, v171')
        A.I(f's_mul_i32 {s(sT2)}, {s(sWAVE)}, {40 * TS}')
        A.I(f's_lshl_b32 {s(sT3)}, {s(sB)}, 7')
        A.I(f's_add_u32 {s(sT2)}, {s(sT2)}, {s(sT3)}')
        A.I(f's_add_u32 {s(sT2)}, {s(sT2)}, {T_OFF}')
        A.hard_wait('lgkmcnt(0)')
        self.barrier()
        for i in range(5):
            A.I(f'ds_read_b128 {v(RB + 4 * i, 4)}, v172 offset:{1152 * i}')
        A.I(f's_mul_i32 {s(sNC)}, {s(sNC)}, 1664525')
        A.I(f's_add_u32 {s(sNC)}, {s(sNC)}, 1013904223')
        A.I(f's_mov_b32 {s(sNC + 1)}, {s(sNC)}')
        A.I(f'v_mov_b32 v6, {s(sNC)}')
        for i in range(5):
            self.tag_t = A.I(f'buffer_store_dwordx4 {v(RB + 4 * i, 4)}, v173, {srd(SRD_WS)}, {s(sT2)} offen sc1')
            A.I(f's_add_u32 {s(sT2)}, {s(sT2)}, {8 * TS}')
        self.stamp('p0_stores')

    def arrive_a(self):
        A = self.A
        A.wait_vm(self.tag_t)
        self.stamp('p0_drained')
        self.barrier()
        self.signal_global(SY_A)

    def formatter(self):
        A = self.A
        t13 = self.fmt_late()
        A.I('v_lshrrev_b32 v10, 4, v1')
        A.I('v_lshlrev_b32 v8, 9, v10')
        A.I('v_bfe_u32 v11, v1, 2, 2')
        A.I('v_lshl_add_u32 v8, v11, 5, v8')
        A.I('v_and_b32 v11, 1, v1')
        A.I('v_lshl_add_u32 v8, v11, 4, v8')
        A.I('v_bfe_u32 v11, v1, 1, 1')
        A.I(f'v_mul_u32_u24 v11, {FW3D}, v11')
        A.I(f'v_add_u32 v8, {FW13}, v8')
        A.I('v_add_u32 v8, v8, v11')
        A.I(f's_lshl_b32 {s(sT0)}, {s(sWAVE)}, 2')
        A.I(f'v_add_u32 v9, {s(sT0)}, v8')
        A.I(f's_lshr_b32 {s(sT0)}, {s(sWAVE)}, 1')
        A.I(f's_lshl_b32 {s(sT0)}, {s(sT0)}, 12')
        A.I(f's_and_b32 {s(sT1)}, {s(sWAVE)}, 1')
        A.I(f's_lshl_b32 {s(sT1)}, {s(sT1)}, 3')
        A.I(f's_add_u32 {s(sT0)}, {s(sT0)}, {s(sT1)}')
        A.I(f'v_add_u32 v8, {s(sT0)}, v8')
        A.I('v_bfe_u32 v12, v1, 2, 2')
        A.I('v_lshl_add_u32 v12, v12, 3, v10')
        A.I('v_mul_u32_u24 v12, 320, v12')
        A.I('v_and_b32 v13, 3, v1')
        A.I('v_lshl_add_u32 v12, v13, 3, v12')
        A.I(f's_and_b32 {s(sT0)}, {s(sWAVE)}, 1')
        A.I(f's_mul_i32 {s(sT1)}, {s(sT0)}, 1280')
        A.I(f's_lshr_b32 {s(sT2)}, {s(sWAVE)}, 1')
        A.I(f's_mul_i32 {s(sT3)}, {s(sT2)}, 160')
        A.I(f's_add_u32 {s(sT1)}, {s(sT1)}, {s(sT3)}')
        A.I(f's_add_u32 {s(sT1)}, {s(sT1)}, {FW2}')
        A.I(f'v_add_u32 v12, {s(sT1)}, v12')
        SEL, CSD = 128, 144
        A.I('v_and_b32 v13, 15, v1')
        A.I('v_and_b32 v14, 48, v1')
        A.I('v_lshl_add_u32 v14, v13, 6, v14')
        A.I('v_mov_b32 v15, 0x3f803f80')
        for i in range(4):
            A.I(f'v_cmp_eq_u32 vcc, {i}, v13')
            for e in range(4):
                A.I(f'v_cndmask_b32 v{SEL + 4 * i + e}, 0, v15, vcc')
        self.arrive_a()
        RAW, RA5, OUT = 20, 36, 44
        rowoff = lambda j: ((j & 3) + 16 * (j >> 2)) * 128

        def stores(nfr, raw_of, ubase, uadd, tile_mul, reg0):
            A.I(f's_add_u32 {s(sL0)}, {uadd}, {ubase}')
            self.fmt_unit_off(sT2, s(sL0))
            A.I(f's_lshl_b32 {s(sL1)}, {s(sT3)}, 3')
            A.I(f's_add_u32 {s(sL1)}, {s(sL1)}, {tile_mul}')
            A.I(f's_add_u32 {s(sL0)}, {s(sL0)}, {s(sU1)}')
            A.I(f's_mul_i32 {s(sH0)}, {s(sL0)}, 192')
            A.I(f's_add_u32 {s(sH0)}, {s(sH0)}, {s(sL1)}')
            A.I(f's_lshl_b32 {s(sH0)}, {s(sH0)}, 6')
            A.I(f's_add_u32 {s(sH0)}, {s(sH0)}, {CSP}')
            A.I(f's_mul_i32 {s(sL0)}, {s(sL0)}, 3072')
            A.I(f's_add_u32 {s(sL0)}, {s(sL0)}, {WF13}')
            for i in range(nfr):
                for jj in range(4):
                    sel = sSELHI if i & 1 else sSELLO
                    A.I(f'v_perm_b32 v{reg0 + 4 * i + jj}, v{raw_of(2 * jj + 1, i >> 1)}, v{raw_of(2 * jj, i >> 1)}, {s(sel)}')
                A.I(f's_add_u32 {s(sT0)}, {s(sL1)}, {i}')
                A.I(f's_mul_i32 {s(sT1)}, {s(sT0)}, 21846')
                A.I(f's_lshr_b32 {s(sT1)}, {s(sT1)}, 16')
                A.I(f's_mul_i32 {s(sT1)}, {s(sT1)}, 57')
                A.I(f's_add_u32 {s(sT0)}, {s(sT0)}, {s(sT1)}')
                A.I(f's_lshl_b32 {s(sT0)}, {s(sT0)}, 10')
                A.I(f's_add_u32 {s(sT0)}, {s(sT0)}, {s(sL0)}')
                A.I(f'v_mfma_f32_16x16x32_bf16 {v(CSD, 4)}, {v(reg0 + 4 * i, 4)}, {v(SEL + 4 * i, 4)}, {v(CSD, 4) if i else 0}')
                A.I(f'buffer_store_dwordx4 {v(reg0 + 4 * i, 4)}, v2, {srd(SRD_WS)}, {s(sT0)} offen sc1')
            m = ((1 << nfr) - 1) * 0x00010001
            A.I(f's_mov_b32 exec_lo, {m:#x}')
            A.I(f's_mov_b32 exec_hi, {m:#x}')
            tg = A.I(f'buffer_store_dwordx4 {v(CSD, 4)}, v14, {srd(SRD_WS)}, {s(sH0)} offen sc1')
            A.I('s_mov_b64 exec, -1')
            return tg
        sVH, sV4, sV2 = 32, 33, 34
        A.I(f's_lshr_b32 {s(sVH)}, {s(sWAVE)}, 1')
        A.I(f's_and_b32 {s(sV4)}, {s(sWAVE)}, 1')
        A.I(f's_lshl_b32 {s(sV4)}, {s(sV4)}, 2')
        A.I(f's_lshl_b32 {s(sV2)}, {s(sWAVE)}, 1')
        for j in range(8):
            A.I(f'ds_read_b64 {v(RAW + 2 * j, 2)}, v8 offset:{rowoff(j)}')
        stores(4, lambda j, e: RAW + 2 * j + e, 0, s(sVH), s(sV4), OUT)
        if self.w2pos == 0:
            self.fmt_w2dma()
        A.wait_vm(t13)
        self.barrier()
        self.stamp('fmt_landed')
        for j in range(8):
            A.I(f'ds_read_b64 {v(RAW + 2 * j, 2)}, v8 offset:{8192 + rowoff(j)}')
        for j in range(8):
            A.I(f'ds_read_b32 v{RA5 + j}, v9 offset:{16384 + rowoff(j)}')
        stores(4, lambda j, e: RAW + 2 * j + e, 2, s(sVH), s(sV4), OUT + 16)
        tg = stores(2, lambda j, e: RA5 + j, 4, '0', s(sV2), OUT + 32)
        self.stamp('fmt_stores')
        if self.w2pos == 1:
            t2 = self.fmt_w2dma()
        A.I(f's_lshl_b32 {s(sU3)}, {s(sU3)}, 1')
        A.I(f's_add_u32 {s(sU3)}, {s(sU3)}, {s(sVH)}')
        A.I(f's_mul_i32 {s(sU3)}, {s(sU3)}, 48')
        A.I(f's_lshl_b32 {s(sU2)}, {s(sU2)}, 1')
        A.I(f's_and_b32 {s(sT0)}, {s(sWAVE)}, 1')
        A.I(f's_add_u32 {s(sU2)}, {s(sU2)}, {s(sT0)}')
        A.I(f's_add_u32 {s(sU2)}, {s(sU2)}, {s(sU3)}')
        A.I(f's_mul_i32 {s(sU2)}, {s(sU2)}, 5120')
        A.I(f's_add_u32 {s(sU2)}, {s(sU2)}, {WF2}')
        for x in self.poll_kind('W'):
            A.I(x)
        A.wait_vm(tg)
        self.barrier()
        self.signal_global(SY_W)
        self.stamp('fmt_done')
        if self.w2pos == 1:
            A.wait_vm(t2)
            self.barrier()
        W2R = 100
        for t in range(5):
            A.I(f'ds_read_b64_tr_b16 {v(W2R + 4 * t, 2)}, v12 offset:{32 * t}')
            A.I(f'ds_read_b64_tr_b16 {v(W2R + 4 * t + 2, 2)}, v12 offset:{32 * 320 + 32 * t}')
        for t in range(5):
            if t == 4:
                A.I(f's_add_u32 {s(sU2)}, {s(sU2)}, 4096')
            A.I(f'buffer_store_dwordx4 {v(W2R + 4 * t, 4)}, v2, {srd(SRD_WS)}, {s(sU2)} offen offset:{1024 * (t & 3)} sc1')
        for x in self.rot_bases():
            A.I(x)
        A.wait_all()
        self.only_wave(0, lambda: self.poll_global(SY_W))
        self.barrier()
        self.signal_global(SY_W2)
        self.stamp('W_seen')
        A.I('v_mov_b32 v4, 0x7ff00000')
        ad, ld, red = self.cs_parts()
        for x in ad + ld:
            A.I(x)
        for n in range(self.nearly):
            for x in self.w13_item(n):
                A.I(x)
        for x in self.g1_consts() + red:
            A.I(x)
        self.stamp('W13_loaded')
        for x in self.poll_kind('B'):
            A.I(x)
        self.only_wave(0, lambda: self.poll_global(SY_B1))
        self.barrier()
        self.stamp('B1_seen')
        for n in range(8):
            for x in self.h_item(0, n):
                self.emit(x)
        for i in range(2):
            A.I(f'buffer_store_dword v6, v4, {srd(SRD_WS)}, 0 offen', tag=('h2st', i))

    CST = 168

    def cs_parts(self):
        C = self.CST
        ad = ['v_and_b32 v166, 15, v1', 'v_mul_u32_u24 v167, 12288, v166', 'v_cmp_gt_u32 vcc, 16, v166'][:2]
        ad += ['v_and_or_b32 v167, v1, 48, v167',
               'v_lshrrev_b32 v166, 2, v166', 'v_lshlrev_b32 v166, 28, v166',
               f'v_add_u32 v166, {16 * 12288}, v166', 'v_add_u32 v166, v166, v167']
        ld = [f'buffer_load_dwordx4 {v(C + 12 * h + 4 * q, 4)}, v{167 - h}, {srd(SRD_WS)}, {s(sCSO)} offen offset:{64 * q} sc1'
              for h in range(2) for q in range(3)]
        red = [f'v_add_f32 v{C + i}, v{C + i}, v{C + 12 + i}' for i in range(12)]
        for ror in (8, 4, 2, 1):
            red += [f'v_add_f32_dpp v{C + i}, v{C + i}, v{C + i} row_ror:{ror} row_mask:0xf bank_mask:0xf' for i in range(12)]
        return ad, ld, red

    def rot_bases(self):
        R_ = self.mapr
        L = [f's_and_b32 {s(sT0)}, {s(sR)}, {R_ - 1}',
             f's_and_b32 {s(sT1)}, {s(sC)}, {32 // R_ - 1}',
             f's_add_u32 {s(sT1)}, {s(sT1)}, {s(sT0)}',
             f's_mul_i32 {s(sT2)}, {s(sT1)}, 21846', f's_lshr_b32 {s(sT2)}, {s(sT2)}, 16', f's_mul_i32 {s(sT2)}, {s(sT2)}, 3',
             f's_sub_u32 {s(sT1)}, {s(sT1)}, {s(sT2)}',
             f's_sub_u32 {s(sT2)}, {s(sT0)}, 5', f's_min_u32 {s(sT0)}, {s(sT0)}, {s(sT2)}']
        if not self.rot:
            L.append(f's_mov_b32 {s(sT0)}, 0')
        if not self.rot2:
            L.append(f's_mov_b32 {s(sT1)}, 0')
        L += [f's_mul_i32 {s(sRB)}, {s(sC2)}, {80 * 128}', f's_add_u32 {s(sRB)}, {s(sRB)}, 81920', f's_lshl_b32 {s(sT2)}, {s(sT0)}, 14',
              f's_sub_u32 {s(sRB)}, {s(sRB)}, {s(sT2)}',
              f's_sub_u32 {s(sT2)}, {s(sRB)}, 81920', f's_min_u32 {s(sU1)}, {s(sRB)}, {s(sT2)}',
              f's_lshl_b32 {s(sRA)}, {s(sWAVE)}, 11', f's_add_u32 {s(sRA)}, {s(sRA)}, {s(sU1)}',
              f's_sub_u32 {s(sT2)}, {s(sRA)}, 81920', f's_min_u32 {s(sRA)}, {s(sRA)}, {s(sT2)}',
              f's_add_u32 {s(sRB)}, {s(sU1)}, 8192',
              f's_sub_u32 {s(sT2)}, {s(sRB)}, 81920', f's_min_u32 {s(sRB)}, {s(sRB)}, {s(sT2)}',
              f's_sub_u32 {s(sU1)}, {s(sU1)}, 1024', f's_cmp_gt_u32 {s(sU1)}, {81920 - 10240 - 1024}',
              f's_cselect_b32 {s(sU1)}, 16384, 0']
        L += [f's_mul_i32 {s(sU2)}, {s(sR)}, {HS}', f's_lshl_b32 {s(sU3)}, {s(sWAVE)}, 12',
              f's_add_u32 {s(sU2)}, {s(sU2)}, {s(sU3)}', f's_add_u32 {s(sU2)}, {s(sU2)}, {H_OFF}']
        for g in range(5):
            L += [f's_mul_i32 {s(sG13 + g)}, {s(sT0)}, 12288', f's_add_u32 {s(sG13 + g)}, {s(sG13 + g)}, {s(sW13)}',
                  f's_lshl_b32 {s(sGH + g)}, {s(sT0)}, 14', f's_add_u32 {s(sGH + g)}, {s(sGH + g)}, {s(sU2)}']
            if g < 4:
                L += [f's_add_u32 {s(sT0)}, {s(sT0)}, 1', f's_sub_u32 {s(sT2)}, {s(sT0)}, 5', f's_min_u32 {s(sT0)}, {s(sT0)}, {s(sT2)}']
        for g in range(3):
            L += [f's_mul_i32 {s(sG2 + g)}, {s(sT1)}, 20480', f's_add_u32 {s(sG2 + g)}, {s(sG2 + g)}, {s(sW2)}',
                  f's_lshl_b32 {s(sGHH + g)}, {s(sT1)}, 12', f's_add_u32 {s(sGHH + g)}, {s(sGHH + g)}, {s(sHH)}']
            if g < 2:
                L += [f's_add_u32 {s(sT1)}, {s(sT1)}, 1', f's_sub_u32 {s(sT2)}, {s(sT1)}, 3', f's_min_u32 {s(sT1)}, {s(sT1)}, {s(sT2)}']
        L += [f's_lshl_b32 {s(sCSO)}, {s(sC)}, 2', f's_add_u32 {s(sCSO)}, {s(sCSO)}, {s(sWAVE)}', f's_mul_i32 {s(sCSO)}, {s(sCSO)}, 192',
              f's_add_u32 {s(sCSO)}, {s(sCSO)}, {CSP}']
        return L

    def w13_item(self, n):
        L = []
        if n % 4 == 0:
            L.append(f's_add_u32 {s(sL0)}, {s(sG13 + n // 12)}, {4096 * ((n % 12) // 4)}')
        L.append(f'buffer_load_dwordx4 {a(4 * n, 4)}, v2, {srd(SRD_WS)}, {s(sL0)} offen offset:{1024 * (n & 3)} sc1')
        return L

    def w2reg(self, n):
        if n < 26:
            return 148 + 4 * n
        if n < 30:
            return 256 + 240 + 4 * (n - 26)
        return 256 + 4 * (n - 30)

    def w2_item(self, n):
        L = []
        if n % 4 == 0:
            L.append(f's_add_u32 {s(sL1)}, {s(sG2 + n // 20)}, {4096 * ((n % 20) // 4)}')
        L.append(f'buffer_load_dwordx4 {R(self.w2reg(n), 4)}, v2, {srd(SRD_WS)}, {s(sL1)} offen offset:{1024 * (n & 3)} sc1')
        return L

    def hhreg(self, n):
        return 256 + 120 + 4 * n

    def hh_item(self, hf, n):
        L = []
        m2, kk = n // 12, n % 12
        if n % 4 == 0:
            L.append(f's_add_u32 {s(sH0)}, {s(sGHH + kk // 4)}, {(64 * hf + m2) * HHS}')
        L.append(f'buffer_load_dwordx4 {R(self.hhreg(n), 4)}, v2, {srd(SRD_WS)}, {s(sH0)} offen offset:{1024 * (kk & 3)} sc1')
        return L

    def h_item(self, hf, n):
        A = self.A
        j, i = n >> 2, n & 3
        g = []
        if i == 0:
            lds = (H2B + 16384 * j) if hf else (H1A + 16384 * j if j < 2 else H1B + 16384 * (j - 2))
            g += [f's_add_u32 {s(sU2)}, {s(sGH + j)}, {16 * hf * HS}', f's_add_u32 m0, {s(sU3)}, {lds}']
        g.append(lambda: A.I(f'buffer_load_dwordx4 v2, {srd(SRD_WS)}, {s(sU2)} offen offset:{1024 * i} sc1 lds', tag=('h', hf, n)))
        return g

    def plan_loads(self):
        slots = [('h1', k) for k in range(20)] + [('e1', q) for q in range(3)] + [('h2', k) for k in range(20)] + \
                [('e2', q) for q in range(3)] + [('g2', k) for k in range(12)]
        pos = {x: i for i, x in enumerate(slots)}
        cap = {'h1': self.pace, 'h2': self.pace, 'e1': self.epace, 'e2': self.epace, 'g2': 2}
        lat = self.lat
        streams = []
        pre = 8
        streams.append([(0, pos[('h1', 4 * (n >> 2) - 1)] - lat, self.h_item(0, n)) for n in range(pre, 20)])
        streams.append([(0, pos[('h1', n // 3)] - lat, self.w13_item(n)) for n in range(self.nearly, 60)])
        r2 = pos[('h1', self.b2k + 2)]
        streams[0] += [(r2, (pos[('h1', 19)] if n < 4 else pos[('h2', 4 * (n >> 2) - 1)]) - lat, self.h_item(1, n)) for n in range(20)]
        rw = pos[('h1', self.w2k + 2)]
        streams.append([(rw if n < 30 else pos[('h2', (4 * (n - 30) + 3) // 12 + 1)], pos[('g2', n // 10)] - lat, self.w2_item(n)) for n in range(60)])
        rc = pos[('h2', self.c1k + 2)]
        streams.append([(max(rc, pos[('h2', 10 + n // 3 + 1)]), pos[('g2', n // 2)] - lat - 1, self.hh_item(0, n)) for n in range(24)])
        plan = {x: [] for x in slots}
        ptr = [0] * len(streams)
        late = 0
        for i, x in enumerate(slots):
            k = 0
            while True:
                cand = [(st[ptr[j]][1], j) for j, st in enumerate(streams) if ptr[j] < len(st) and st[ptr[j]][0] <= i]
                if not cand:
                    break
                d, j = min(cand)
                if k >= cap[x[0]] and d + lat - 1 > i:
                    break
                if d < i:
                    late += 1
                plan[x].append(streams[j][ptr[j]][2])
                ptr[j] += 1
                k += 1
        assert all(ptr[j] == len(st) for j, st in enumerate(streams))
        self.plan = plan
        self.late = late

    ALO = 256 + 112

    def conv_prep(self):
        A = self.A
        XS = self.XS
        kt = [(KTBL >> (4 * sh)) & 15 for sh in range(8)]
        A.I(f's_mul_i32 {s(sT3)}, {s(sWAVE)}, {THALF}')
        A.I(f'v_add_u32 v9, {s(sT3)}, v2')
        A.I(f'v_add_u32 v8, {TLB}, v9')
        for i in range(4):
            if i == (2 if self.skpos < 2 else 0):
                if self.skpos == 2:
                    self.ssmk_loads()
                self.arrive_a()
            X = XS + 8 * i
            T = 32 + 24 * (i & 1)
            Y, O0, O1 = T, T + 6, T + 12
            base = 'v8' if i < 2 else 'v9'

            def wr(sh, reg):
                off = kt[sh] * TPITCH + (64 * (i & 1) + (1 if sh else 2)) * 16
                A.I(f'ds_write_b128 {base}, {v(reg, 4)} offset:{off}')
            wr(0, X + 4)
            wr(4, X + 2)
            for e in range(6):
                A.I(f'v_mov_b32 v{Y + e}, v{X + 1 + e}')
            wr(2, Y)
            wr(6, Y + 2)
            for e in range(6):
                A.I(f'v_alignbit_b32 v{O0 + e}, v{X + e + 1}, v{X + e}, 16')
            wr(1, O0)
            wr(5, O0 + 2)
            for e in range(6):
                A.I(f'v_alignbit_b32 v{O1 + e}, v{X + e + 2}, v{X + e + 1}, 16')
            wr(3, O1)
            wr(7, O1 + 2)
        A.I('v_lshlrev_b32 v10, 2, v1')
        A.I(f's_mov_b32 {s(sT2)}, {KTBL:#x}')
        A.I(f'v_bfe_u32 v10, {s(sT2)}, v10, 4')
        A.I(f'v_mul_u32_u24 v10, {TPITCH}, v10')
        A.I('v_cmp_eq_u32 vcc, 0, v1')
        A.I('v_cndmask_b32_e64 v11, 0, 16, vcc')
        A.I(f'v_add3_u32 v11, v10, v11, {s(sT3)}')
        A.I(f'v_add_u32 v10, {TLB}, v11')
        for e in range(4):
            A.I(f'v_mov_b32 v{28 + e}, 0')
        A.I('s_mov_b64 exec, 0xff')
        A.I('ds_write_b128 v10, v[28:31]')
        A.I('ds_read_b128 v[24:27], v10 offset:2048')
        A.I('ds_write_b128 v11, v[24:27]')
        A.I('s_mov_b64 exec, -1')
        A.I('v_lshrrev_b32 v12, 4, v1')
        A.I('v_and_b32 v13, 15, v1')
        A.I('v_lshl_add_u32 v14, v12, 3, v13')
        A.I('v_add_u32 v14, 1, v14')
        A.I('v_and_b32 v15, 7, v14')
        A.I('v_lshlrev_b32 v15, 2, v15')
        A.I(f'v_bfe_u32 v15, {s(sT2)}, v15, 4')
        A.I(f'v_mul_u32_u24 v15, {TPITCH}, v15')
        A.I('v_lshrrev_b32 v14, 3, v14')
        A.I('v_lshlrev_b32 v14, 4, v14')
        A.I(f'v_add3_u32 v9, v14, v15, {s(sT3)}')
        A.I(f'v_add_u32 v8, {TLB}, v9')
        for p in range(32):
            A.I(f'ds_read_b128 {R(self.ALO + 16 * (p & 7) + 4 * (p >> 3), 4)}, v8 offset:{64 * p}')
        A.I(f's_mul_i32 {s(sT3)}, {s(sWAVE)}, {2 * RP}')
        A.I(f's_add_u32 {s(sT3)}, {s(sT3)}, {KVX}')
        A.I('v_lshlrev_b32 v10, 1, v13')
        A.I('v_sub_u32 v10, v10, v12')
        A.I('v_add_u32 v10, 5, v10')
        A.I('v_lshlrev_b32 v10, 4, v10')
        A.I(f'v_add_u32 v10, {s(sT3)}, v10')
        A.I('v_lshlrev_b32 v11, 5, v13')
        A.I('v_lshl_add_u32 v11, v12, 3, v11')
        A.I(f's_add_u32 {s(sT2)}, {s(sT3)}, {RP + 512}')
        A.I(f'v_add_u32 v11, {s(sT2)}, v11')
        A.I('v_lshrrev_b32 v14, 1, v12')
        A.I('v_lshl_add_u32 v14, v13, 1, v14')
        A.I('v_lshlrev_b32 v14, 6, v14')
        A.I('v_and_b32 v15, 1, v12')
        A.I('v_lshlrev_b32 v16, 4, v15')
        A.I(f'v_add_u32 v14, {STL}, v14')
        A.I('v_add_u32 v14, v14, v16')
        A.I('v_lshrrev_b32 v16, 2, v13')
        A.I('v_lshl_add_u32 v15, v15, 2, v16')
        A.I(f'v_mul_u32_u24 v15, {HS}, v15')
        A.I(f's_bfe_u32 {s(sT2)}, {s(sD)}, 0x20001')
        A.I('v_and_b32 v16, 3, v13')
        A.I(f'v_xor_b32 v16, {s(sT2)}, v16')
        A.I('v_lshlrev_b32 v16, 5, v16')
        A.I('v_lshrrev_b32 v17, 1, v12')
        A.I('v_lshlrev_b32 v17, 4, v17')
        A.I('v_add3_u32 v15, v15, v16, v17')
        A.I(f's_and_b32 {s(sT2)}, {s(sD)}, 1')
        A.I(f's_lshl_b32 {s(sT2)}, {s(sT2)}, 4')
        A.I(f's_lshr_b32 {s(sDV)}, {s(sDV)}, {s(sT2)}')
        A.I(f's_and_b32 {s(sDV)}, {s(sDV)}, 0xffff')
        A.I('v_lshl_add_u32 v16, v12, 3, v13')
        A.I('v_sub_u32 v16, 15, v16')
        A.I('v_and_b32 v17, 1, v16')
        A.I('v_lshlrev_b32 v17, 4, v17')
        A.I(f'v_lshlrev_b32_e64 v17, v17, {s(sDV)}')
        A.I('v_lshrrev_b32 v16, 1, v16')
        for e in range(4):
            A.I(f'v_cmp_eq_u32 vcc, {e}, v16')
            A.I(f'v_cndmask_b32 v{28 + e}, 0, v17, vcc')
        A.I('v_lshlrev_b32 v16, 4, v0')
        A.I('v_and_b32 v17, 7, v0')
        A.I(f'v_mul_u32_u24 v17, {RP}, v17')
        A.I('v_lshrrev_b32 v19, 3, v0')
        A.I(f'v_add_u32 v17, {KVX}, v17')
        for x in self.rot_bases():
            A.I(x)
        A.I('v_lshl_add_u32 v17, v19, 4, v17')
        for e in range(4):
            A.I(f'v_mov_b32 v{24 + e}, 0')
        A.wait_all()

    def conv(self):
        A = self.A
        ACC, VB, AH, STG, XQ, TMP, PK = 32, 64, 128, 160, 192, 224, 244
        A.I(f's_lshr_b32 {s(sT0)}, {s(sD)}, 2')
        A.I(f's_mul_i32 {s(sT0)}, {s(sT0)}, {TS}')
        A.I(f's_add_u32 {s(sT0)}, {s(sT0)}, {T_OFF}')
        A.I(f's_lshl_b32 {s(sT1)}, {s(sWAVE)}, 11')
        A.I(f's_add_u32 m0, {s(sT1)}, {STL}')
        A.I(f's_add_u32 {s(sT1)}, {s(sT1)}, {STATS}')
        for x in self.poll_kind('A'):
            A.I(x)
        self.only_wave(0, lambda: self.poll_global(SY_A))
        self.barrier()
        self.stamp('A_seen')

        def tloads(hf):
            for i in range(4 * hf, 4 * hf + 4):
                A.I(f'buffer_load_dwordx4 {v(STG + 4 * i, 4)}, v16, {srd(SRD_WS)}, {s(sT0)} offen sc1')
                A.I(f's_add_u32 {s(sT0)}, {s(sT0)}, 4096')
            for i in range(2):
                A.I(f'buffer_load_dwordx4 v2, {srd(SRD_WS)}, {s(sT1)} offen offset:{1024 * i} sc1 lds', tag=('st', hf, i))
            if hf == 0:
                A.I('s_add_u32 m0, m0, 8192')
                A.I(f's_add_u32 {s(sT1)}, {s(sT1)}, 8192')
        tloads(0)
        if self.t2pos == 0:
            tloads(1)
        for x in self.poll_kind('W'):
            A.I(x)
        A.I('ds_write_b128 v17, v[24:27]')
        for i in range(4):
            A.I(f'ds_write_b128 v17, {v(STG + 4 * i, 4)} offset:{512 + 512 * i}')
            self.stamp(f'T{i}', fine=5)
            if i == 0 and self.t2pos == 1:
                tloads(1)
        A.wait_vm(('st', 0, 1))
        self.stamp(f'Tst', fine=5)
        A.wait_all(vm=False)
        self.barrier()
        self.stamp('T_staged')
        AD = {'th': 9, 'kv': 10, 'x': 11, 'st': 14, 'ho': 15}

        def vread(buf, tau, mu):
            return f'ds_read_b128 {v(VB + 32 * buf + 4 * tau, 4)}, v{AD["kv"]} offset:{(32 * tau + 28 - 4 * mu) * 16}'

        def aread(buf, c, mu):
            return f'ds_read_b128 {v(AH + 16 * buf + 4 * (c - 4), 4)}, v{AD["th"]} offset:{64 * (8 * c + mu - 32)}'

        def qprep(t):
            tt = t & 3
            x0 = TMP + 10 * (t & 1)
            q = XQ + 8 * tt
            L = [f'ds_read_b64 {v(x0, 2)}, v{AD["x"]} offset:{512 * t}',
                 f'ds_read_b128 {v(x0 + 2, 4)}, v{AD["st"]} offset:{2048 * t}',
                 f'ds_read_b128 {v(x0 + 6, 4)}, v{AD["st"]} offset:{2048 * t + 32}']
            M = [f'v_lshlrev_b32 v{q}, 16, v{x0}', f'v_and_b32 v{q + 1}, {s(sMASK)}, v{x0}',
                 f'v_lshlrev_b32 v{q + 2}, 16, v{x0 + 1}', f'v_and_b32 v{q + 3}, {s(sMASK)}, v{x0 + 1}']
            M += [f'v_fma_f32 v{q + 4 + i}, v{q + i}, v{x0 + 2 + i}, v{x0 + 6 + i}' for i in range(4)]
            return L, M

        def areg(buf, c, mu):
            return R(self.ALO + 16 * mu + 4 * c, 4) if c < 4 else v(AH + 16 * buf + 4 * (c - 4), 4)

        def half(hf, extra, pre, items):
            ts = list(range(4 * hf + 3, 4 * hf - 1, -1))
            ntau = 4 * hf + 4
            for mu in range(8):
                self.stamp(f'c{hf}m{mu}', fine=1)
                buf = mu & 1
                main = []
                if mu == 0:
                    for t in ts:
                        main.append(f'v_mfma_f32_16x16x32_bf16 {v(ACC + 4 * t, 4)}, v[28:31], {v(VB + 4 * t, 4)}, 0')
                for c in range(ntau):
                    for t in ts:
                        if c <= t:
                            main.append(f'v_mfma_f32_16x16x32_bf16 {v(ACC + 4 * t, 4)}, {areg(buf, c, mu)}, {v(VB + 32 * buf + 4 * (t - c), 4)}, {v(ACC + 4 * t, 4)}')
                fill = []
                if mu < 7:
                    order = list(range(ntau - 1, -1, -1))
                    fill += [vread(buf ^ 1, tau, mu + 1) for tau in order]
                    if hf:
                        fill += [aread(buf ^ 1, c, mu + 1) for c in range(4, 8)]
                fill += extra.get(mu, [])
                self.interleave2(main, fill, items.get(mu, []), head=pre.get(mu, []))

        def epilogue(hf):
            self.stamp(f'c{hf}epi', fine=1)
            A.I(f's_lshl_b32 {s(sT0)}, {s(sD)}, 7')
            A.I(f's_add_u32 {s(sT0)}, {s(sT0)}, {H_OFF + 16 * hf * HS}')
            for tp in range(2):
                pk = PK + 4 * tp
                for dt in range(2):
                    t = 4 * hf + 2 * tp + dt
                    q = XQ + 8 * (t & 3)
                    for i in range(2):
                        A.I(f'v_pk_fma_f32 {v(q + 2 * i, 2)}, {v(q + 4 + 2 * i, 2)}, {v(ACC + 4 * t + 2 * i, 2)}, {v(q + 2 * i, 2)}')
                    A.I(f'v_cvt_pk_bf16_f32 v{pk + 2 * dt}, v{q}, v{q + 1}')
                    A.I(f'v_cvt_pk_bf16_f32 v{pk + 2 * dt + 1}, v{q + 2}, v{q + 3}')
                A.I(f'v_permlane16_swap_b32 v{pk}, v{pk + 2}')
                A.I(f'v_permlane16_swap_b32 v{pk + 1}, v{pk + 3}')
                A.I(f'buffer_store_dwordx4 {v(pk, 4)}, v{AD["ho"]}, {srd(SRD_WS)}, {s(sT0)} offen sc1', tag=(f'h{hf + 1}st', tp))
                if tp == 0:
                    A.I(f's_add_u32 {s(sT0)}, {s(sT0)}, {8 * HS}')

        def qextra(hf):
            ex = {}
            for j in range(4):
                L, M = qprep(4 * hf + j)
                ex.setdefault(j + 1, []).extend(L)
                ex.setdefault(j + 2, []).extend(M)
            return ex
        for tau in range(3, -1, -1):
            A.I(vread(0, tau, 0))
        if self.t2pos == 2:
            tloads(1)
        ex = qextra(0)
        wr = [f'ds_write_b128 v17, {v(STG + 4 * i, 4)} offset:{512 + 512 * i}' for i in range(4, 8)]
        mv = []
        for k, (name, r) in enumerate(list(AD.items())):
            mv.append(f'v_mov_b32 v{STG + k}, v{r}')
        ex.setdefault(0, []).extend(mv)
        ex.setdefault(6, []).extend(wr[:2])
        ex.setdefault(7, []).extend(wr[2:] + [vread(0, tau, 0) for tau in range(3, -1, -1)] + [aread(0, c, 0) for c in range(4, 8)])
        half(0, ex, {}, {})
        A.wait_vm(('st', 1, 1))
        A.wait_all(vm=False)
        self.barrier()
        for tau in range(7, 3, -1):
            A.I(vread(0, tau, 0))
        epilogue(0)
        self.stamp('conv_h1')
        for k, name in enumerate(list(AD.keys())):
            AD[name] = STG + k
        ex = qextra(1)
        pre, items = {}, {}

        def arrive_b1():
            A.wait_vm(('h1st', 1))
            self.barrier()
            self.signal_global(SY_B1)

        def nonce_update():
            A.I(f's_cmp_eq_u32 {s(sD)}, 0')
            A.I(f's_cselect_b32 {s(sT1)}, 0, 0x7ff00000')
            A.I(f's_add_u32 {s(sT1)}, {s(sT1)}, {NONCE}')
            A.I('s_mov_b64 exec, 1')
            A.I(f'buffer_store_dword v6, v2, {srd(SRD_WS)}, {s(sT1)} offen sc1')
            A.I('s_mov_b64 exec, -1')
        pre.setdefault(self.b1mu + 1, []).append(arrive_b1)
        pre.setdefault(self.wmu - 1, []).append(lambda: self.apoll_issue(5, CNT + SY_W))
        pre.setdefault(self.wmu, []).append(lambda: self.apoll_check(5))
        ex.setdefault(self.wmu, []).extend(self.poll_kind('B'))
        for mu in range(self.wmu, 7):
            n0 = (mu - self.wmu) * self.wpace
            assert n0 + self.wpace <= 28 + 4 * mu
            items[mu] = [self.w13_item(n) for n in range(n0, n0 + self.wpace)]
        ad, ld, red = self.cs_parts()
        ex.setdefault(0, []).extend(ad)
        items[self.wmu] = [[x] for x in ld[:3]] + items[self.wmu]
        items[self.wmu + 1] = [[x] for x in ld[3:]] + items[self.wmu + 1]
        G = self.g1_consts() + red
        quota = {1: 20, 2: 14, 3: 16, 4: 16, 5: 20, 6: 28, 7: 40}
        k = 0
        for mu in range(1, 8):
            ex.setdefault(mu, []).extend(G[k:k + quota[mu]])
            k += quota[mu]
        assert k >= len(G), (k, len(G))
        ex.setdefault(0, []).append(nonce_update)
        pre.setdefault(self.b1k, []).append(lambda: self.apoll_issue(5, CNT + SY_B1))
        pre.setdefault(7, []).append(lambda: self.apoll_check(5))
        items[7] = [self.h_item(0, n) for n in range(8)]
        half(1, ex, pre, items)
        epilogue(1)
        self.stamp('conv_h2')

    ACC1, GR, SM, CS, ONE, HF, RES = 32, 80, 84, 88, 28, 104, 136

    def w13(self, kap, q):
        return 256 + 12 * kap + 4 * q

    def g1_consts(self):
        F = ['v_lshrrev_b32 v12, 2, v1', 'v_lshlrev_b32 v13, 7, v12', 'v_and_b32 v14, 3, v1',
             'v_lshl_add_u32 v13, v14, 3, v13', 'v_bfe_u32 v14, v1, 3, 2', f'v_xor_b32 v15, {s(sWAVE)}, v14']
        F += [f's_lshl_b32 {s(sT1)}, {s(sCH)}, 1', f'v_xor_b32 v16, {s(sT1)}, v14', 'v_lshl_add_u32 v17, v16, 5, v13',
              f'v_add_u32 v13, {H1A}, v13']
        for u in range(4):
            F.append(f'v_xor_b32 v16, {u}, v15')
            F.append(f'v_lshl_add_u32 v{8 + u}, v16, 5, v13')
        F += ['v_and_b32 v16, 15, v1', 'v_lshlrev_b32 v16, 4, v16', f'v_add_u32 v16, {s(sU1)}, v16', f'v_add_u32 v16, {H1A}, v16']
        for u in range(4):
            F += [f's_xor_b32 {s(sT0)}, {s(sWAVE)}, {u}', f's_lshl_b32 {s(sT0)}, {s(sT0)}, 8', f'v_add_u32 v{19 + u}, {s(sT0)}, v16']
        F += ['v_lshrrev_b32 v16, 4, v1', f'v_xor_b32 v16, {s(sWAVE)}, v16', f'v_mul_u32_u24 v16, {HHS}, v16',
              'v_and_b32 v23, 15, v1', 'v_lshl_add_u32 v23, v23, 4, v16', 'v_and_b32 v16, 3, v1']
        for i in range(1, 4):
            F.append(f'v_cmp_eq_u32 {s(30 + 2 * i, 2)}, {i}, v16')
        F += [f's_mul_i32 {s(sU0)}, {s(sR)}, {4 * HHS}', f's_lshl_b32 {s(sT1)}, {s(sC)}, 2', f's_add_u32 {s(sT1)}, {s(sT1)}, {s(sWAVE)}',
              f's_mul_i32 {s(sT1)}, {s(sT1)}, 768', f's_add_u32 {s(sU0)}, {s(sU0)}, {s(sT1)}', f's_add_u32 {s(sU0)}, {s(sU0)}, {HH}']
        F += [f's_mul_i32 {s(sT0)}, {s(sWAVE)}, 5120', f'v_add_u32 v25, {s(sT0)}, v2',
              f's_lshl_b32 {s(sT0)}, {s(sWAVE)}, 10', f'v_add_u32 v26, {s(sT0)}, v2',
              'v_and_b32 v27, 15, v1', 'v_mul_u32_u24 v27, 1280, v27', 'v_lshrrev_b32 v16, 4, v1', 'v_lshl_add_u32 v27, v16, 3, v27']
        F += [f's_lshl_b32 {s(sT0)}, {s(sR)}, 1', f's_add_u32 {s(sT0)}, {s(sT0)}, {s(sCH)}', f's_mul_i32 {s(sT0)}, {s(sT0)}, {32 * 1280}',
              f's_mul_i32 {s(sT1)}, {s(sC2)}, 160', f's_add_u32 {s(sOU4)}, {s(sT0)}, {s(sT1)}',
              f's_lshl_b32 {s(sT1)}, {s(sWAVE)}, 5', f's_add_u32 {s(sOUT)}, {s(sOU4)}, {s(sT1)}']
        F += ['v_and_b32 v24, 7, v1', 'v_max_u32 v24, 5, v24', 'v_and_b32 v16, 56, v1', 'v_lshlrev_b32 v16, 5, v16',
              'v_lshl_add_u32 v24, v24, 4, v16', f's_lshl_b32 {s(sT0)}, {s(sX)}, 11', f'v_add_u32 v24, {s(sT0)}, v24']
        F += [f'v_mov_b32 v{self.ONE + i}, 0x3f803f80' for i in range(4)]
        return F

    def g1_half(self, hf):
        A = self.A
        ACC, GR, SM, CS, ONE, HF = self.ACC1, self.GR, self.SM, self.CS, self.ONE, self.HF
        pre = {}

        def add(k, items):
            pre.setdefault(k, []).extend(items)

        def arrive(tag, sig):
            def f():
                A.wait_vm(tag)
                self.barrier()
                sig()
            return f
        if hf == 0:
            add(self.b2sig, [arrive(('h2st', 1), lambda: self.signal_global(SY_B2))])
            add(self.w2k, [lambda: self.apoll_issue(24, CNT + SY_W2)])
            add(self.w2k + 2, [lambda: self.apoll_check(24)])
            add(self.b2k, [lambda: self.apoll_issue(5, CNT + SY_B2)])
            add(self.b2k + 2, [lambda: self.apoll_check(5)])
        else:
            add(self.c1sig, [arrive(('hhst', 0), lambda: self.signal_c(0))])
            add(self.c1k, [lambda: self.apoll_issue(7, CNT + SY_C)])
            add(self.c1k + 2, [lambda: self.apoll_check(7)])
        seg = {0: H1A, 8: H1B, 20: H2B} if hf == 0 else {0: H2B, 10: H2B + 40960}

        def segbase(kap):
            return max(k for k in seg if k <= kap)

        def reads(kap):
            buf = kap & 1
            L = []
            for u in range(4):
                for hh in range(2):
                    L.append(f'ds_read_b64_tr_b16 {v(HF + 16 * buf + 4 * u + 2 * hh, 2)}, v{8 + u} offset:{(kap - segbase(kap)) * 4096 + 2048 * hh}')
            return L

        def rebase(kap):
            d = seg[kap] - seg[segbase(kap - 1)]
            return [f'v_add_u32 v{8 + u}, {d}, v{8 + u}' for u in range(4)]

        def chunk_ready(j):
            def f():
                A.wait_vm(('h', hf, 4 * j + 3))
                self.barrier()
            return f
        if hf == 0:
            A.wait_all(vm=False)
            chunk_ready(0)()
            self.stamp(f'h{hf + 1}_first')
            for x in reads(0):
                A.I(x)
        T = 104

        def resid():
            L = []
            for k, sr in enumerate((sRA, sRB)):
                if hf == 0:
                    L += [f's_add_u32 {s(sT0 + k)}, {s(sr)}, {H1A}', f's_sub_u32 {s(sT2)}, {s(sT0 + k)}, 163840', f's_min_u32 {s(sT0 + k)}, {s(sT0 + k)}, {s(sT2)}']
                else:
                    L += [f's_add_u32 {s(sT0 + k)}, {s(sr)}, {H2B}']
            L += [f'v_add_u32 v14, {s(sT0)}, v17', 'v_xor_b32 v15, 32, v14',
                  f's_and_b32 {s(sT2)}, {s(sWAVE)}, 1', f's_lshl_b32 {s(sT2)}, {s(sT2)}, 5', f'v_xor_b32 v16, {s(sT2)}, v17', f'v_add_u32 v16, {s(sT1)}, v16']
            return L
        for kap in range(20):
            self.stamp(f'h{hf + 1}k{kap}', fine=2 + hf)
            buf = kap & 1
            fr = lambda u: v(HF + 16 * buf + 4 * u, 4)
            main = [f'v_mfma_f32_16x16x32_bf16 {v(GR, 4)}, {fr(0)}, {fr(0)}, {v(GR, 4) if kap else 0}',
                    f'v_mfma_f32_16x16x32_bf16 {v(SM, 4)}, {v(ONE, 4)}, {fr(0)}, {v(SM, 4) if kap else 0}']
            for u in range(4):
                for q in range(3):
                    ac = v(ACC + 4 * (3 * u + q), 4)
                    main.append(f'v_mfma_f32_16x16x32_bf16 {ac}, {R(self.w13(kap, q), 4)}, {fr(u)}, {ac if kap else 0}')
            items = self.plan[(f'h{hf + 1}', kap)]
            fill = []
            if kap < 19:
                if (kap + 1) % 4 == 0:
                    fill.append(chunk_ready((kap + 1) // 4))
                if kap + 1 in seg:
                    fill += rebase(kap + 1)
                fill += reads(kap + 1)
                if hf == 0 and kap < 2:
                    fill += [f'v_mov_b32 v{CS + i}, v{self.CST + i}' for i in range(6 * kap, 6 * kap + 6)]
                if kap == 16:
                    fill += resid()
                if kap == 17:
                    fill += [f'ds_read_b64_tr_b16 {v(self.RES + 6 * hf + 2 * n, 2)}, v{14 + n}' for n in range(3)]
                self.interleave2(main, fill, items, head=pre.get(kap, []))
            else:
                assert kap not in pre
                fill += (rebase(20) if hf == 0 else [])
                st0 = 2 if hf == 0 else 4
                fill += [f'v_cndmask_b32 v{T}, v{GR}, v{GR + 1}, {s(32, 2)}',
                         f'v_cndmask_b32 v{T}, v{T}, v{GR + 2}, {s(34, 2)}',
                         f'v_cndmask_b32 v{T}, v{T}, v{GR + 3}, {s(36, 2)}',
                         f'v_mul_f32 v{T + 4}, 0xbacccccd, v{SM}',
                         f'v_mul_f32 v{T}, 0x3acccccd, v{T}',
                         f'v_fma_f32 v{T}, -v{T + 4}, v{T + 4}, v{T}',
                         f'v_max_f32 v{T}, 0, v{T}',
                         f'v_add_f32 v{T + 6}, 0x3727c5ac, v{T}',
                         f'v_rsq_f32 v{T + 5}, v{T + 6}',
                         f'v_mov_b32 v{T + 7}, 0',
                         f'v_mul_f32 v{T + 5}, 0xbfb8aa3b, v{T + 5}']

                def stw():
                    A.I('s_mov_b32 exec_lo, 0x00f0000f')
                    A.I('s_mov_b32 exec_hi, 0xf0000f00')
                    A.I(f'ds_write_b128 v19, {v(T + 4, 4)}')
                    A.I('s_mov_b64 exec, -1')
                fill.append(stw)
                self.interleave(main[:-2], fill, start=st0)
                self.emit(main[-2])
                self.emit(main[-1])
                for it in items:
                    for x in it:
                        self.emit(x)
        if hf == 0:
            A.wait_vm(('h', 1, 3))
        A.wait_all(vm=False)
        self.barrier()
        self.stamp(f'g1h{hf + 1}_mfma')
        ST, E = 120, 112
        for u in range(4):
            A.I(f'ds_read_b128 {v(ST + 4 * u, 4)}, v{19 + u}')
        if hf == 0:
            for u in range(4):
                A.I(f'v_add_u32 v{19 + u}, {H2B - H1A}, v{19 + u}')
        for q in range(3):
            cg, cu = v(CS + 4 * q, 2), v(CS + 4 * q + 2, 2)
            self.stamp(f'e{hf + 1}q{q}', fine=2 + hf)
            M = []
            for u in range(4):
                ac = ACC + 4 * (3 * u + q)
                st = ST + 4 * u
                M.append(f'v_pk_fma_f32 {v(ac, 2)}, {cg}, {v(st, 2)}, {v(ac, 2)} op_sel_hi:[1,0,1]')
                M.append(f'v_pk_mul_f32 {v(E + 2 * u, 2)}, {v(ac, 2)}, {v(st, 2)} op_sel:[0,1] op_sel_hi:[1,1]')
            for u in range(4):
                ac = ACC + 4 * (3 * u + q)
                st = ST + 4 * u
                M.append(f'v_exp_f32 v{E + 2 * u}, v{E + 2 * u}')
                M.append(f'v_pk_fma_f32 {v(ac + 2, 2)}, {cu}, {v(st, 2)}, {v(ac + 2, 2)} op_sel_hi:[1,0,1]')
                M.append(f'v_exp_f32 v{E + 2 * u + 1}, v{E + 2 * u + 1}')
                M.append(f'v_pk_mul_f32 {v(ac, 2)}, {v(ac, 2)}, {v(ac + 2, 2)}')
            for u in range(4):
                st = ST + 4 * u
                M.append(f'v_pk_fma_f32 {v(E + 2 * u, 2)}, {v(E + 2 * u, 2)}, {v(st + 2, 2)}, {v(st + 2, 2)} op_sel_hi:[1,0,0]')
            pk = GR + 4 * (q & 1)
            for u in range(4):
                M.append(f'v_rcp_f32 v{E + 2 * u}, v{E + 2 * u}')
                if u:
                    ac = ACC + 4 * (3 * (u - 1) + q)
                    M.append(f'v_pk_mul_f32 {v(ac, 2)}, {v(ac, 2)}, {v(E + 2 * (u - 1), 2)}')
                M.append(f'v_rcp_f32 v{E + 2 * u + 1}, v{E + 2 * u + 1}')
                if u:
                    M.append(f'v_cvt_pk_bf16_f32 v{pk + u - 1}, v{ac}, v{ac + 1}')
            ac = ACC + 4 * (9 + q)
            M.append(f'v_pk_mul_f32 {v(ac, 2)}, {v(ac, 2)}, {v(E + 6, 2)}')
            M.append(f'v_cvt_pk_bf16_f32 v{pk + 3}, v{ac}, v{ac + 1}')
            self.interleave2(M, [], self.plan[(f'e{hf + 1}', q)])
            A.I(f'v_permlane32_swap_b32 v{pk}, v{pk + 2}')
            if q == 2 and hf == 0:
                for x in reads(20):
                    A.I(x)
            A.I(f'v_permlane32_swap_b32 v{pk + 1}, v{pk + 3}')
            A.I(f'v_permlane16_swap_b32 v{pk}, v{pk + 1}')
            A.I(f'v_permlane16_swap_b32 v{pk + 2}, v{pk + 3}')
            A.I(f'buffer_store_dwordx4 {v(pk, 4)}, v23, {srd(SRD_WS)}, {s(sU0)} offen offset:{256 * q} sc1', tag=('hhst', hf))
        A.I(f's_add_u32 {s(sU0)}, {s(sU0)}, {64 * HHS}')
        A.I('s_nop 1')
        self.stamp(f'g1h{hf + 1}_epi')

    def g2_reduce(self, p, packed):
        A = self.A
        hf, m2 = p >> 1, p & 1
        ACC = 32 + 20 * (p & 1)
        base = RED + 20480 * (p & 1)
        P, T = 72, 104
        wr = [f'ds_write_b128 v25, {v(ACC + 4 * t, 4)} offset:{base + 1024 * t}' for t in range(5)]

        def sync():
            A.wait_all(vm=False)
            self.barrier()
        rd = [f'ds_read_b128 {v(P + 4 * w, 4)}, v26 offset:{base + 5120 * w}' for w in range(4)]
        rd += [f'ds_read_b128 {v(P + 16 + 4 * w, 4)}, v2 offset:{base + 5120 * w + 4096}' for w in range(4)]
        un = []
        for k, rs in enumerate((self.RES + 6 * hf + 2 * m2, self.RES + 6 * hf + 4)):
            un += [f'v_lshlrev_b32 v{T + 4 * k}, 16, v{rs}', f'v_and_b32 v{T + 4 * k + 1}, {s(sMASK)}, v{rs}',
                   f'v_lshlrev_b32 v{T + 4 * k + 2}, 16, v{rs + 1}', f'v_and_b32 v{T + 4 * k + 3}, {s(sMASK)}, v{rs + 1}']
        rowoff = (1024 * hf + 16 * m2) * 1280
        un += [f's_add_u32 {s(sT0)}, {s(sOUT)}, {rowoff}', f's_add_u32 {s(sT1)}, {s(sOU4)}, {rowoff + 128}',
               lambda: [A.I(f's_cmp_eq_u32 {s(sWAVE)}, {p}'), A.I(f's_cselect_b32 {s(sT1)}, {s(sT1)}, 0x7ff00000')]]
        fin = []
        for k in range(2):
            q = P + 16 * k
            t = T + 4 * k
            if packed:
                for (d, x) in ((t, q), (q + 4, q + 8), (t, q + 12), (t, q + 4)):
                    fin += [f'v_pk_add_f32 {v(d + 2 * h, 2)}, {v(d + 2 * h, 2)}, {v(x + 2 * h, 2)}' for h in range(2)]
            else:
                for x in (q, q + 4, q + 8, q + 12):
                    fin += [f'v_add_f32 v{t + i}, v{t + i}, v{x + i}' for i in range(4)]
            fin += [f'v_cvt_pk_bf16_f32 v{q}, v{t}, v{t + 1}', f'v_cvt_pk_bf16_f32 v{q + 1}, v{t + 2}, v{t + 3}',
                    f'buffer_store_dwordx2 {v(q, 2)}, v27, {srd(SRD_OUT)}, {s(sT0 + k)} offen']
        return wr, un, sync, rd, fin

    def g2(self):
        A = self.A

        def arrive_c2():
            A.wait_vm(('hhst', 1))
            self.barrier()
            self.signal_c(1)

        def mf(p, kk):
            ACC = 32 + 20 * (p & 1)
            return [f'v_mfma_f32_16x16x32_bf16 {v(ACC + 4 * t, 4)}, {R(self.w2reg(5 * kk + t), 4)}, {R(self.hhreg(12 * (p & 1) + kk), 4)}, {v(ACC + 4 * t, 4) if kk else 0}'
                    for t in range(5)]

        def standalone(p, items=()):
            wr, un, sync, rd, fin = self.g2_reduce(p, True)
            self.interleave2(wr + un + [sync] + rd + fin, [], list(items))
        for hf in range(2):
            if hf == 1:
                self.apoll_check(7)
                self.stamp('C2_seen')
                for n in range(self.hh2pre):
                    for x in self.hh_item(1, n):
                        A.I(x)
                nxt = self.hh2pre + self.hh2mid
                standalone(1, [self.hh_item(1, n) for n in range(self.hh2pre, nxt)])
                self.stamp('g2h1_done')
            wr, un, sync, rd, fin = self.g2_reduce(2 * hf, False)
            sched = {6: ['s_nop 0', 's_nop 0'] + wr[:3], 7: wr[3:] + un, 8: [sync] + rd, 9: fin[:13], 10: fin[13:26], 11: fin[26:]}
            for k2 in range(12):
                self.stamp(f'g{hf + 1}k{k2}', fine=4)
                p = 2 * hf + k2 // 6
                kk = 2 * (k2 % 6)
                main = mf(p, kk) + mf(p, kk + 1)
                fill = []
                if hf == 0:
                    items = self.plan[('g2', k2)]
                    if k2 == self.c2sig:
                        fill.append(arrive_c2)
                else:
                    items = [self.hh_item(1, n) for n in range(nxt, min(24, nxt + 2))]
                    nxt = min(24, nxt + 2)
                fill += sched.get(k2, [])
                self.interleave2(main, fill, items, start=2 if k2 == 6 else 0)
            self.stamp(f'g2h{hf + 1}_mfma')
            if hf == 0:
                self.apoll_issue(7, CNT + SY_C + 16384)
        standalone(3)
        self.stamp('g2h2_done')

    def build(self):
        A = self.A
        self.prologue()
        self.p0()
        A.I(f's_cmp_lt_u32 {s(sIDX)}, 20')
        A.I('s_cbranch_scc1 L_conv')
        st = A.fork()
        self.formatter()
        st1 = A.fork()
        A.I('s_branch L_gemm')
        A.label('L_conv')
        A.restore(st)
        self.conv_prep()
        self.stamp('prep_done')
        self.conv()
        st2 = A.fork()
        A.label('L_gemm')
        A.join([st1, st2])
        if self.stop == 1:
            self.end()
            return self.finish()
        self.plan_loads()
        self.g1_half(0)
        self.g1_half(1)
        self.g2()
        self.flush_stamps()
        return self.finish()

    def finish(self):
        body = self.A.text()
        hdr = open('cdna_kernels/' + NAME + '.s.ref').read().split('; Override launch')[0]
        out = hdr
        out += '; Single persistent kernel, one workgroup per CU (generated by tools/gen.py)\n'
        out += '; @launch grid=(256,1,1) block=(256,1,1) lds=163840\n'
        out += '.amdgcn_target "amdgcn-amd-amdhsa--gfx950"\n.text\n'
        out += f'.globl {NAME}_kernel\n.p2align 8\n.type {NAME}_kernel,@function\n{NAME}_kernel:\n'
        out += body
        out += 'L_end:\n    s_endpgm\nL_code_end:\n'
        out += '.set CODE_PF_MAX, (L_code_end - ' + NAME + '_kernel - 4) & 0xffffff80\n'
        out += f'''.section .rodata,"a"
.p2align 6
.amdhsa_kernel {NAME}_kernel
  .amdhsa_next_free_vgpr 512
  .amdhsa_next_free_sgpr 100
  .amdhsa_accum_offset 256
  .amdhsa_group_segment_fixed_size 0
  .amdhsa_kernarg_size 104
  .amdhsa_user_sgpr_count 2
  .amdhsa_user_sgpr_kernarg_segment_ptr 1
  .amdhsa_system_sgpr_workgroup_id_x 1
  .amdhsa_float_denorm_mode_32 3
.end_amdhsa_kernel
'''
        return out


if __name__ == '__main__':
    import argparse
    ap = argparse.ArgumentParser()
    ap.add_argument('-o', default='cdna_kernels/' + NAME + '.s')
    ap.add_argument('--stop', type=int, default=99)
    ap.add_argument('--prof', action='store_true')
    ap.add_argument('--mapr', type=int, default=8)
    ap.add_argument('--probe', default=None)
    ap.add_argument('--opts', default='')
    args = ap.parse_args()
    g = Gen(stop=args.stop, prof=args.prof, mapr=args.mapr, probe=args.probe.split(',') if args.probe else None,
            **{k.split('=')[0]: int(k.split('=')[1]) for k in args.opts.split(',') if k})
    txt = g.build()
    open(args.o, 'w').write(txt)
    print('instructions', g.A.nins, g.A.stats, 'late', g.late, [len(x) for x in g.plan.values()])
```

```python
import sys
sys.path.insert(0, 'tools')
from asmlib import *

NAME = 'sequential_preLN__ssm_conv_h3__glu_gated_swiglu__prompt'

CNT = 0
SY_A, SY_W, SY_B1, SY_B2 = 0, 16384, 32768, 49152
SY_W2 = SY_W + 128
SY_C = 65536
NONCE = 98304
STATS = 102400
T_OFF, TS = 262144, 32896
H_OFF, HS = 5767168, 82048
CSP = 8396800
WF13 = 8650752
WF2 = 12582912
HH, HHS = 14680064, 49408
SX = HH + 128 * HHS
PROF = SX + 524288
WS_SIZE = PROF + 262144

TPITCH = 131 * 16
THALF = 8 * TPITCH
TL_ALL = 4 * THALF
KTBL = 0x64175302
RP = 4624
TLB, THB = TL_ALL, 0
KVX = TL_ALL
STL = TL_ALL + 40960
H1A, H1B, H2B = 131072, 0, 49152
RED = 0

sWAVE, sX, sIDX, sB = 3, 4, 5, 6
sSELLO, sSELHI, sMASK = 8, 9, 10
sT0, sT1, sT2, sT3 = 12, 13, 14, 15
sCNT = 11
sD = 16
sR, sC, sC2, sCH = 17, 18, 19, 20
sDV = 21
sU0, sU1, sU2, sU3 = 22, 23, 24, 25
sPROF = 26
sTM = 28
sEX = 30
SRD_X, SRD_K, SRD_V, SRD_SH, SRD_SK, SRD_W1, SRD_W3, SRD_W2, SRD_OUT, SRD_WS, SRD_DBG = 44, 48, 52, 56, 60, 64, 68, 72, 76, 80, 84
sDP = 88
sPC = 90
sPL = 27
sSG = 43
sW13, sW2, sHH = 88, 89, 40
sL0, sL1 = 41, 42
sH0 = 86
sG13, sGH, sG2, sGHH = 44, 49, 54, 57
sSXP, sSXG = 48, 94
sRA, sRB, sCSO, sOUT, sOU4 = 84, 85, 87, 95, 100
STG0 = 0
XI, XIP = 2 * TL_ALL, 1344
FW13F, FW13C = TL_ALL, 145408
FW3D, FWU = 4224, 8448
FW2 = TL_ALL + 41216
sFU = 101
sFB = 94
sNC = 92


def srd(b):
    return s(b, 4)


class Gen:
    def __init__(self, stop=99, prof=False, mapr=8, probe=None, early_dma=1, b1mu=1, wmu=1, wpace=6, b2k=10, c1k=10, c1sig=5, c2sig=5, w2a=12, clk=0, wsoff=0, fnt=1, skpos=0, warm=0, pace=3, epace=3, lat=3, hpre=8, w2k=4, w2pos=1, fine=0, rot=0, rot2=0, t2pos=1, b1k=5, sk=13, c2k=10, hh2pre=8, b2sig=3, hh2mid=6, a2i=-1, a2mu=2, w0mu=6, w0pace=2, apos=2, b1mid=1, eu=3, fpos=0, hlate=1, pd=4, cpos=0, cupos=1, c2p=2, ksplit=6, ost=1, wiss=6, csk=6, pfm=0, gk=13, gc=17):
        self.gk, self.gc = gk, gc
        self.pfm = pfm
        self.wiss, self.csk = wiss, csk
        self.ksplit, self.ost = ksplit, ost
        self.c2p = c2p
        self.cpos, self.cupos = cpos, cupos
        self.hlate, self.pd = hlate, pd
        self.eu, self.fpos = eu, fpos
        self.b1mid = b1mid
        self.apos = apos
        self.a2i, self.a2mu, self.w0mu, self.w0pace = a2i, a2mu, w0mu, w0pace
        self.hh2mid = hh2mid
        self.b2sig = b2sig
        self.rot, self.rot2, self.t2pos, self.b1k, self.sk, self.c2k, self.hh2pre = rot, rot2, t2pos, b1k, sk, c2k, hh2pre
        self.fine = fine
        self.w2pos = w2pos
        self.epace, self.lat, self.hpre, self.w2k = epace, lat, hpre, w2k
        self.skpos, self.warm, self.pace = skpos, warm, pace
        nw = 0
        for mu in range(wmu, 7):
            nw = min(nw + (wpace // 2 if mu == 0 else wpace), 28 + 4 * mu, 60)
        self.nearly = nw
        self.fnt = 'nt ' if fnt else ''
        self.wsoff = wsoff
        self.clk = clk
        self.probe = probe
        self.early_dma, self.b1mu, self.wmu, self.wpace = early_dma, b1mu, wmu, wpace
        self.b2k, self.c1k, self.c1sig, self.c2sig, self.w2a = b2k, c1k, c1sig, c2sig, w2a
        self.A = Asm()
        self.stop = stop
        self.prof = prof
        self.mapr = mapr
        self.nstamp = 0
        self.stamp_names = []

    def stamp(self, name, fine=0):
        if self.probe and name in self.probe:
            k = 96 if name == self.probe[0] else 98
            self.A.I(f's_memrealtime {s(k, 2)}')
            self.A.hard_wait('lgkmcnt(0)')
        if not self.prof:
            return
        if fine and fine != self.fine:
            return
        if self.fine == 99 and name not in ('start', 'g2h2_done'):
            return
        A = self.A
        if name in self.stamp_names:
            idx = self.stamp_names.index(name)
        else:
            idx = len(self.stamp_names)
            self.stamp_names.append(name)
        assert idx < 63
        A._push(Ins(f'v_writelane_b32 v18, {s(sTM)}, {s(sPROF)}'.replace(s(sPROF), 'm0') if False else f's_nop 0'))
        A.lines.pop()
        A.lines.append(f'    s_mov_b32 s7, m0')
        A.lines.append(f'    s_mov_b32 m0, {s(sPROF)}')
        A.lines.append(f'    v_writelane_b32 v18, {s(sTM)}, m0')
        A.lines.append(f'    s_mov_b32 m0, s7')
        A.lines.append(f'    s_mov_b32 {s(sPROF)}, {idx}')
        A.lines.append(f'    {"s_memtime" if self.clk else "s_memrealtime"} {s(sTM, 2)}')
        if not fine:
            A.hard_wait('lgkmcnt(0)')

    def flush_stamps(self):
        if self.probe:
            A = self.A
            A.I('s_cmp_lg_u32 s2, 9')
            A.I('s_cbranch_scc1 L_end')
            A.I('s_sub_u32 s98, s98, s96')
            A.I('s_mul_i32 s98, s98, 10')
            A.I('s_memrealtime s[96:97]')
            A.hard_wait('lgkmcnt(0)')
            A.label('L_probe')
            A.I(f's_memrealtime {s(sTM, 2)}')
            A.hard_wait('lgkmcnt(0)')
            A.I(f's_sub_u32 {s(sTM)}, {s(sTM)}, s96')
            A.I(f's_cmp_lt_u32 {s(sTM)}, s98')
            A.I('s_cbranch_scc1 L_probe')
        if not self.prof:
            return
        A = self.A
        A.hard_wait('lgkmcnt(0)')
        A.lines.append(f'    s_mov_b32 m0, {s(sPROF)}')
        A.lines.append(f'    v_writelane_b32 v18, {s(sTM)}, m0')
        A.I(f's_lshl_b32 {s(sT0)}, s2, 2')
        A.I(f's_add_u32 {s(sT0)}, {s(sT0)}, {s(sWAVE)}')
        A.I(f's_lshl_b32 {s(sT0)}, {s(sT0)}, 8')
        A.I(f's_add_u32 {s(sT0)}, {s(sT0)}, {PROF}')
        A.I('v_lshlrev_b32 v252, 2, v1')
        A.I(f'buffer_store_dword v18, v252, {srd(SRD_WS)}, {s(sT0)} offen')
        A.I('s_mov_b64 exec, -1')

    def interleave(self, main, fill, per=2, start=0):
        A = self.A
        n = len(main) - start
        k = 0
        for i, m in enumerate(main):
            self.emit(m)
            if i < start:
                continue
            upto = min(len(fill), k + per, -(-len(fill) * (i - start + 1) // n) if n else len(fill))
            while k < upto:
                self.emit(fill[k])
                k += 1
        while k < len(fill):
            self.emit(fill[k])
            k += 1

    def interleave2(self, main, fill, items, start=0, head=()):
        n = len(main)
        gaps = [[] for _ in range(n)]
        full = [False] * n
        m = len(items)
        for i, it in enumerate(items):
            g = min(n - 1, max(1, int((i + 0.7) * n / m)))
            assert not full[g]
            gaps[g - 1] += it[:-1]
            gaps[g].append(it[-1])
            full[g] = True
        if head:
            full[0] = True
        room = [0 if (full[g] or g < start) else max(0, 2 - len(gaps[g])) for g in range(n)]
        tot = sum(room)
        k = 0
        acc = 0
        for g in range(n):
            self.emit(main[g])
            if g == 0:
                for x in head:
                    self.emit(x)
            acc += room[g]
            upto = min(len(fill), k + room[g], -(-len(fill) * acc // tot) if tot else 0)
            while k < upto:
                self.emit(fill[k])
                k += 1
            for x in gaps[g]:
                self.emit(x)
        while k < len(fill):
            self.emit(fill[k])
            k += 1

    def emit(self, x):
        if callable(x):
            x()
        else:
            self.A.I(x)

    def only_wave(self, w, body):
        A = self.A
        L = A.newlabel('L_skip')
        A.I(f's_cmp_lg_u32 {s(sWAVE)}, {w}')
        A.I(f's_cbranch_scc1 {L}')
        st = A.fork()
        body()
        st2 = A.fork()
        A.label(L)
        A.join([st, st2])

    PV = 252

    def poll_test(self):
        A = self.A
        P = self.PV
        A.I(f'v_cmp_eq_u64 vcc, {s(sNC, 2)}, {v(P, 2)}')
        A.I(f'v_cmp_eq_u64 {s(sEX, 2)}, {s(sNC, 2)}, {v(P + 2, 2)}')
        A.I(f's_and_b64 vcc, vcc, {s(sEX, 2)}')
        A.I('s_cmp_eq_u64 vcc, -1')

    def poll_loop(self, voff):
        A = self.A
        Ll, Ld = A.newlabel('L_poll'), A.newlabel('L_polld')
        A.I(f's_mov_b32 {s(sCNT)}, 0x20000')
        A.label(Ll)
        A.I(f'buffer_load_dwordx4 {v(self.PV, 4)}, v{voff}, {srd(SRD_WS)}, {s(sPL)} offen sc1')
        A.hard_wait('vmcnt(0)')
        self.poll_test()
        A.I(f's_cbranch_scc1 {Ld}')
        A.I(f's_sub_u32 {s(sCNT)}, {s(sCNT)}, 1')
        A.I(f's_cbranch_scc0 {Ll}')
        A.label(Ld)

    def poll_kind(self, kind, reg=5):
        return [x.replace('v5', f'v{reg}') for x in self.poll_kind5(kind)]

    def poll_kind5(self, kind):
        L = ['v_and_b32 v5, 7, v1']
        if kind == 'A1':
            L = ['v_and_b32 v5, 3, v1']
        if kind == 'A2':
            L = ['v_and_b32 v5, 3, v1', 'v_add_u32 v5, 12, v5']
        if kind == 'B':
            L.append('v_min_u32 v5, 4, v5')
        if kind == 'W':
            L.append('v_max_u32 v5, 5, v5')
        L += [f'v_and_b32 v{self.PV}, 56, v1', f'v_lshlrev_b32 v{self.PV}, 5, v{self.PV}', f'v_lshl_add_u32 v5, v5, 4, v{self.PV}',
              f's_lshl_b32 {s(sPL)}, {s(sX)}, 11', f'v_add_u32 v5, {s(sPL)}, v5']
        return L

    def signal_global(self, sy):
        A = self.A
        if sy is not None:
            A.I(f's_mov_b32 {s(sSG)}, {CNT + sy}')
        A.I('s_mov_b64 exec, 3')
        A.I(f'buffer_atomic_swap v6, v4, {srd(SRD_WS)}, {s(sSG)} offen sc1')
        A.I('s_mov_b64 exec, -1')

    def poll_global(self, sy):
        A = self.A
        A.I(f's_mov_b32 {s(sPL)}, {CNT + sy}')
        self.poll_loop(5)

    def signal_c(self, half):
        A = self.A
        A.I(f's_mov_b32 {s(sSG)}, {CNT + SY_C + half * 16384}')
        A.I('s_mov_b64 exec, 1')
        A.I(f'buffer_atomic_swap v6, v3, {srd(SRD_WS)}, {s(sSG)} offen sc1')
        A.I('s_mov_b64 exec, -1')

    def poll_c(self, half):
        A = self.A
        A.I(f's_mov_b32 {s(sPL)}, {CNT + SY_C + half * 16384}')
        self.poll_loop(7)

    def apoll_issue(self, voff, off):
        A = self.A
        A.I(f's_mov_b32 {s(sPL)}, {off}')
        A.I(f'buffer_load_dwordx4 {v(self.PV, 4)}, v{voff}, {srd(SRD_WS)}, {s(sPL)} offen sc1')

    def apoll_check(self, voff):
        A = self.A
        L = A.newlabel('L_ok')
        self.poll_test()
        A.I(f's_cbranch_scc1 {L}')
        st = A.fork()
        self.poll_loop(voff)
        A.label(L)
        A.restore(st)

    def barrier(self):
        self.A.I('s_barrier')

    def end(self):
        self.flush_stamps()
        self.A.I('s_branch L_end')

    def prologue(self):
        A = self.A
        if self.probe and 'entry' in self.probe:
            A.lines.append('    s_memrealtime s[96:97]')
        A.I('s_load_dwordx16 s[64:79], s[0:1], 0')
        A.I('s_load_dwordx8 s[32:39], s[0:1], 64')
        A.I(f's_load_dwordx2 {s(SRD_WS, 2)}, s[0:1], 96')
        A.I('s_cmp_ge_u32 s2, 256')
        A.I('s_cbranch_scc1 L_end')
        A.I('v_lshrrev_b32 v2, 6, v0')
        A.I('v_and_b32 v1, 63, v0')
        A.I(f'v_readfirstlane_b32 {s(sWAVE)}, v2')
        A.I(f's_and_b32 {s(sX)}, s2, 7')
        A.I(f's_lshr_b32 {s(sIDX)}, s2, 3')
        A.I(f's_lshl_b32 {s(sB)}, {s(sX)}, 4')
        A.I(f's_and_b32 {s(sT0)}, s2, 128')
        A.I(f's_add_u32 {s(sB)}, {s(sB)}, {s(sT0)}')
        A.I(f's_and_b32 {s(sT0)}, {s(sIDX)}, 15')
        A.I(f's_add_u32 {s(sB)}, {s(sB)}, {s(sT0)}')
        A.I(f's_mul_i32 {s(sT1)}, {s(sB)}, 10240')
        if self.prof:
            A.I('v_mov_b32 v18, 0')
            A.I(f's_mov_b32 {s(sPROF)}, 63')
            A.I(f's_mov_b32 {s(sTM)}, 0')
            A.I('s_mov_b32 m0, 0')
        L = A.newlabel('L_nopf')
        A.I(f's_cmp_lg_u32 {s(sWAVE)}, 3')
        A.I(f's_cbranch_scc1 {L}')
        A.I(f's_getpc_b64 {s(sPC, 2)}')
        A.label('L_pc')
        A.I(f's_sub_u32 {s(sPC)}, {s(sPC)}, L_pc-{NAME}_kernel')
        A.I(f's_subb_u32 {s(sPC + 1)}, {s(sPC + 1)}, 0')
        A.I(f's_lshl_b32 {s(sT2)}, {s(sIDX)}, 11')
        A.I('v_lshlrev_b32 v9, 7, v1')
        A.I(f'v_add_u32 v9, {s(sT2)}, v9')
        A.I('v_min_u32 v9, CODE_PF_MAX, v9')
        A.I('s_mov_b64 exec, 0xffff')
        A.lines.append(f'    global_load_dword v{self.PV}, v9, {s(sPC, 2)}')
        A.I('s_mov_b64 exec, -1')
        A.I(f's_cmp_lt_u32 {s(sIDX)}, 20')
        A.I('s_cbranch_scc1 L_p0_stc')
        A.I('s_branch L_p0_stf')
        A.label(L)
        A.I(f's_cmp_ge_u32 {s(sIDX)}, 20')
        A.I('s_cbranch_scc1 L_p0_kvf')

    def srd_words(self):
        A = self.A
        for b, size in ((SRD_K, 2621440), (SRD_V, 2621440), (SRD_X, 2621440), (SRD_SH, 5120), (SRD_WS, WS_SIZE)):
            A.I(f's_mov_b32 {s(b + 2)}, {size}')
            A.I(f's_mov_b32 {s(b + 3)}, 0x20000')
        A.I(f's_mov_b32 {s(SRD_SK + 3)}, 0x20000')
        A.I(f's_mul_i32 {s(sD)}, {s(sX)}, 20')
        A.I(f's_add_u32 {s(sD)}, {s(sD)}, {s(sIDX)}')
        A.I(f's_lshl_b32 {s(sD)}, {s(sD)}, 2')
        A.I(f's_add_u32 {s(sD)}, {s(sD)}, {s(sWAVE)}')
        A.I(f's_movk_i32 {s(SRD_SK + 2)}, 4096')
        A.I(f's_mov_b32 {s(sSELLO)}, 0x05040100')
        A.I(f's_mov_b32 {s(sSELHI)}, 0x07060302')
        A.I(f's_mov_b32 {s(sMASK)}, 0xffff0000')

    def srd_rest(self, fmt=False):
        A = self.A
        A.I(f's_load_dword {s(sNC)}, {s(SRD_WS, 2)}, {NONCE}')
        A.I(f's_mov_b64 {s(SRD_W1, 2)}, s[78:79]')
        A.I(f's_mov_b64 {s(SRD_W3, 2)}, s[32:33]')
        for b in (SRD_W1, SRD_W3):
            A.I(f's_mov_b32 {s(b + 2)}, 1966080')
            A.I(f's_mov_b32 {s(b + 3)}, 0x20000')
        if fmt:
            A.I(f's_mov_b64 {s(SRD_W2, 2)}, s[34:35]')
            A.I(f's_mov_b32 {s(SRD_W2 + 2)}, 1966080')
            A.I(f's_mov_b32 {s(SRD_W2 + 3)}, 0x20000')
        else:
            A.I(f's_lshl_b32 {s(sT2)}, {s(sD)}, 1')
            A.I(f's_and_b32 {s(sT2)}, {s(sT2)}, -4')
            A.I(f's_load_dword {s(sDV)}, s[74:75], {s(sT2)}')
            A.I(f's_lshl_b32 {s(sT0)}, {s(sD)}, 12')
            A.I(f's_add_u32 {s(SRD_SK)}, s72, {s(sT0)}')
            A.I(f's_addc_u32 {s(SRD_SK + 1)}, s73, 0')
        A.I(f's_mov_b64 {s(SRD_OUT, 2)}, s[36:37]')
        A.I(f's_mov_b32 {s(SRD_OUT + 2)}, 2621440')
        A.I(f's_mov_b32 {s(SRD_OUT + 3)}, 0x20000')

    def common_consts(self):
        A = self.A
        A.I('v_lshlrev_b32 v2, 4, v1')
        A.I(f's_lshl_b32 {s(sT2)}, {s(sWAVE)}, 12')
        A.I(f's_lshl_b32 {s(sT3)}, {s(sX)}, 8')
        A.I(f's_add_u32 {s(sT2)}, {s(sT2)}, {s(sT3)}')
        A.I(f's_lshl_b32 {s(sT3)}, {s(sIDX)}, 2')
        A.I(f's_add_u32 {s(sT2)}, {s(sT2)}, {s(sT3)}')
        A.I(f'v_lshl_add_u32 v4, v1, 11, {s(sT2)}')
        if self.mapr == 2:
            A.I(f's_lshr_b32 {s(sR)}, {s(sIDX)}, 4')
            A.I(f's_lshl_b32 {s(sT2)}, {s(sX)}, 1')
            A.I(f's_add_u32 {s(sR)}, {s(sR)}, {s(sT2)}')
            A.I(f's_and_b32 {s(sC)}, {s(sIDX)}, 15')
        elif self.mapr == 8:
            A.I(f's_lshr_b32 {s(sR)}, {s(sIDX)}, 2')
            A.I(f's_lshr_b32 {s(sT2)}, {s(sX)}, 2')
            A.I(f's_lshl_b32 {s(sT2)}, {s(sT2)}, 3')
            A.I(f's_add_u32 {s(sR)}, {s(sR)}, {s(sT2)}')
            A.I(f's_and_b32 {s(sC)}, {s(sIDX)}, 3')
            A.I(f's_and_b32 {s(sT2)}, {s(sX)}, 3')
            A.I(f's_lshl_b32 {s(sT2)}, {s(sT2)}, 2')
            A.I(f's_add_u32 {s(sC)}, {s(sC)}, {s(sT2)}')
        else:
            A.I(f's_lshr_b32 {s(sR)}, {s(sIDX)}, 3')
            A.I(f's_lshr_b32 {s(sT2)}, {s(sX)}, 1')
            A.I(f's_lshl_b32 {s(sT2)}, {s(sT2)}, 2')
            A.I(f's_add_u32 {s(sR)}, {s(sR)}, {s(sT2)}')
            A.I(f's_and_b32 {s(sC)}, {s(sIDX)}, 7')
            A.I(f's_and_b32 {s(sT2)}, {s(sX)}, 1')
            A.I(f's_lshl_b32 {s(sT2)}, {s(sT2)}, 3')
            A.I(f's_add_u32 {s(sC)}, {s(sC)}, {s(sT2)}')
        A.I(f's_and_b32 {s(sC2)}, {s(sC)}, 7')
        A.I(f's_lshr_b32 {s(sCH)}, {s(sC)}, 3')
        nrep = self.mapr // 2
        A.I(f's_lshl_b32 {s(sT2)}, {s(sR)}, 10')
        A.I(f's_lshl_b32 {s(sT3)}, {s(sWAVE)}, 8')
        A.I(f's_add_u32 {s(sT3)}, {s(sT3)}, {s(sT2)}')
        A.I(f's_lshl_b32 {s(sSG)}, {s(sC)}, 2')
        A.I(f's_add_u32 {s(sT3)}, {s(sT3)}, {s(sSG)}')
        A.I(f's_cmp_lt_u32 {s(sWAVE)}, {nrep}')
        A.I(f's_cselect_b32 {s(sT3)}, {s(sT3)}, 0x7ff00000')
        A.I(f'v_mov_b32 v3, {s(sT3)}')
        A.I(f's_lshr_b32 {s(sT3)}, {s(sC)}, {({1: 4, 2: 3, 4: 2})[nrep]}')
        A.I(f's_lshl_b32 {s(sT3)}, {s(sT3)}, 8')
        A.I(f's_add_u32 {s(sT2)}, {s(sT2)}, {s(sT3)}')
        A.I('v_and_b32 v7, 3, v1')
        A.I(f'v_lshl_add_u32 v7, v7, 4, {s(sT2)}')
        A.I(f's_lshl_b32 {s(sT2)}, {s(sC)}, 2')
        A.I(f's_add_u32 {s(sT2)}, {s(sT2)}, {s(sWAVE)}')
        A.I(f's_mul_i32 {s(sW13)}, {s(sT2)}, 61440')
        A.I(f's_add_u32 {s(sW13)}, {s(sW13)}, {WF13}')
        A.I(f's_lshl_b32 {s(sT2)}, {s(sC2)}, 2')
        A.I(f's_add_u32 {s(sT2)}, {s(sT2)}, {s(sWAVE)}')
        A.I(f's_mul_i32 {s(sW2)}, {s(sT2)}, 61440')
        A.I(f's_add_u32 {s(sW2)}, {s(sW2)}, {WF2}')
        A.I(f's_lshl_b32 {s(sT2)}, {s(sR)}, 1')
        A.I(f's_add_u32 {s(sT2)}, {s(sT2)}, {s(sCH)}')
        A.I(f's_mul_i32 {s(sHH)}, {s(sT2)}, {2 * HHS}')
        A.I(f's_mul_i32 {s(sT2)}, {s(sWAVE)}, 12288')
        A.I(f's_add_u32 {s(sHH)}, {s(sHH)}, {s(sT2)}')
        A.I(f's_add_u32 {s(sHH)}, {s(sHH)}, {HH}')

    XS = 208

    def ssmk_loads(self):
        A = self.A
        if self.isfmt:
            for u in range(self.eu):
                self.unit_dma(u, True)
            return
        A.I('v_subrev_u32 v5, 16, v2')
        for i in range(4):
            if i == 0:
                A.I(f'buffer_load_dwordx4 {v(self.XS, 4)}, v5, {srd(SRD_SK)}, 0 offen nt')
            else:
                A.I(f'buffer_load_dwordx4 {v(self.XS + 8 * i, 4)}, v2, {srd(SRD_SK)}, 0 offen offset:{1024 * i - 16} nt')
            self.tag_sk = A.I(f'buffer_load_dwordx4 {v(self.XS + 8 * i + 4, 4)}, v2, {srd(SRD_SK)}, 0 offen offset:{1024 * i} nt')
        if self.cupos == 0:
            self.unit_dma(0, False)
            self.unit_dma(1, False)

    def p0_kv(self, fmt):
        A = self.A
        SH, KR, VR, S, KF, KV, O, VF = 32, 40, 62, 78, 94, 138, 94, 174
        A.I('v_lshlrev_b32 v2, 3, v0')
        A.I(f'v_add_u32 v78, {s(sT1)}, v2')
        A.I('v_subrev_u32 v79, 3840, v78')
        A.I('v_lshlrev_b32 v80, 5, v0')
        A.I(f's_movk_i32 {s(sCNT)}, 160')
        self.srd_words()
        self.common_consts()
        A.I('v_mul_u32_u24 v206, 144, v0')
        A.I(f'v_add_u32 v206, {STG0}, v206')
        self.rb_consts()
        A.I(f'v_cmp_gt_u32 {s(sEX, 2)}, {s(sCNT)}, v0')
        A.wait_all()
        self.stamp('start')
        A.I(f's_mov_b64 {s(SRD_K, 2)}, s[66:67]')
        A.I(f's_mov_b64 {s(SRD_SH, 2)}, s[70:71]')
        A.I(f's_mov_b64 {s(SRD_V, 2)}, s[68:69]')
        A.I(f's_mov_b32 {s(sT2)}, 5120')
        A.I(f's_mov_b64 exec, {s(sEX, 2)}')
        for j in range(3):
            A.I(f'buffer_load_dwordx2 {v(KR + 2 * j, 2)}, v79, {srd(SRD_K)}, 0 offen offset:{1280 * j} nt')

        def rows(dst, sr):
            for j in range(8):
                so = '0' if j < 4 else s(sT2)
                A.I(f'buffer_load_dwordx2 {v(dst + 2 * j, 2)}, v78, {srd(sr)}, {so} offen offset:{1280 * (j & 3)} nt')
        rows(KR + 6, SRD_K)
        A.I(f'buffer_load_dwordx4 {v(SH, 4)}, v80, {srd(SRD_SH)}, 0 offen')
        A.I(f'buffer_load_dwordx4 {v(SH + 4, 4)}, v80, {srd(SRD_SH)}, 0 offen offset:16')
        rows(VR, SRD_V)
        A.I('s_mov_b64 exec, -1')
        self.srd_rest(fmt)
        self.unit_consts0(fmt)
        if not fmt and self.cpos == 0:
            self.conv_consts()
        self.isfmt = fmt
        sk = self.fpos if fmt else self.skpos
        if sk == 0:
            self.ssmk_loads()
        for j in range(11):
            for e in range(2):
                A.I(f'v_lshlrev_b32 v{KF + 4 * j + 2 * e}, 16, v{KR + 2 * j + e}')
                A.I(f'v_and_b32 v{KF + 4 * j + 2 * e + 1}, {s(sMASK)}, v{KR + 2 * j + e}')
            if j == 0 and sk == 1:
                self.ssmk_loads()
        if sk == 2:
            self.ssmk_loads()
        if not fmt and self.cupos == 2:
            self.unit_dma(0, False)
            self.unit_dma(1, False)
        for c in range(4):
            A.I(f'v_lshlrev_b32 v{S + 0 + c}, 16, v{SH + 2 * c}')
            A.I(f'v_and_b32 v{S + 4 + c}, {s(sMASK)}, v{SH + 2 * c}')
            A.I(f'v_lshlrev_b32 v{S + 8 + c}, 16, v{SH + 2 * c + 1}')
            A.I(f'v_and_b32 v{S + 12 + c}, {s(sMASK)}, v{SH + 2 * c + 1}')
        for tap in range(4):
            for t in range(8):
                for e in range(2):
                    d = v(KV + 4 * t + 2 * e, 2)
                    kk = v(KF + 4 * (t + 3 - tap) + 2 * e, 2)
                    ss = v(S + 4 * tap + 2 * e, 2)
                    if tap == 0:
                        A.I(f'v_pk_mul_f32 {d}, {kk}, {ss}')
                    else:
                        A.I(f'v_pk_fma_f32 {d}, {kk}, {ss}, {d}')
        for t in range(8):
            for e in range(2):
                A.I(f'v_lshlrev_b32 v{VF + 4 * t + 2 * e}, 16, v{VR + 2 * t + e}')
                A.I(f'v_and_b32 v{VF + 4 * t + 2 * e + 1}, {s(sMASK)}, v{VR + 2 * t + e}')
        self.stamp('kv_landed')
        if sk == 3:
            self.ssmk_loads()
        if not fmt and self.cupos == 3:
            self.unit_dma(0, False)
            self.unit_dma(1, False)
        for t in range(8):
            for e in range(2):
                d = v(KV + 4 * t + 2 * e, 2)
                A.I(f'v_pk_mul_f32 {d}, {d}, {v(VF + 4 * t + 2 * e, 2)}')
        A.I(f's_mov_b64 exec, {s(sEX, 2)}')
        for c in range(4):
            for e in range(4):
                A.I(f'v_cvt_pk_bf16_f32 v{O + 8 * c + e}, v{KV + 4 * (7 - 2 * e) + c}, v{KV + 4 * (6 - 2 * e) + c}')
            A.I(f'ds_write_b128 v206, {v(O + 8 * c, 4)} offset:{32 * c}')
        A.I('s_mov_b64 exec, -1')

    def unit_ids(self, u, fmt):
        A = self.A
        if fmt or u == 0:
            A.I(f's_add_u32 {s(sT3)}, {s(sFU)}, {u}')
        else:
            A.I(f's_lshl_b32 {s(sT3)}, {s(sX)}, 2')
            A.I(f's_add_u32 {s(sT3)}, {s(sT3)}, {s(sIDX)}')
            A.I(f's_add_u32 {s(sT3)}, {s(sT3)}, 432')
        A.I(f's_mul_i32 {s(sT0)}, {s(sT3)}, 2731')
        A.I(f's_lshr_b32 {s(sT0)}, {s(sT0)}, 16')
        A.I(f's_mul_i32 {s(sT2)}, {s(sT0)}, 24')
        A.I(f's_sub_u32 {s(sT3)}, {s(sT3)}, {s(sT2)}')

    def unit_dma(self, u, fmt):
        A = self.A
        self.unit_ids(u, fmt)
        A.I(f's_mul_i32 {s(sT2)}, {s(sT0)}, {32 * 24}')
        A.I(f's_add_u32 {s(sT2)}, {s(sT2)}, {s(sT3)}')
        A.I(f's_lshl_b32 {s(sT2)}, {s(sT2)}, 7')
        if not fmt and u == 1:
            A.I(f's_cmp_ge_u32 {s(sIDX)}, 16')
            A.I(f's_cselect_b32 {s(sT2)}, {s(sT2)}, 0x7ff00000')
        A.I(f's_lshl_b32 {s(sT0)}, {s(sWAVE)}, 10')
        A.I(f's_add_u32 m0, {s(sT0)}, {(FW13F if fmt else FW13C) + FWU * u}')
        A.I(f'buffer_load_dwordx4 v207, {srd(SRD_W1)}, {s(sT2)} offen {self.fnt}lds')
        A.I(f's_add_u32 m0, m0, {FW3D}')
        A.I(f'buffer_load_dwordx4 v207, {srd(SRD_W3)}, {s(sT2)} offen {self.fnt}lds', tag=('fw', u))

    def unit_consts0(self, fmt):
        A = self.A
        if fmt:
            self.fmt_ids()
        else:
            A.I(f's_lshr_b32 {s(sFU)}, {s(sD)}, 2')
            A.I(f's_add_u32 {s(sFU)}, {s(sFU)}, 288')
        A.I('v_lshrrev_b32 v207, 3, v0')
        A.I('v_mul_u32_u24 v207, 3072, v207')
        A.I('v_and_b32 v171, 7, v1')
        A.I('v_lshl_add_u32 v207, v171, 4, v207')

    FA, SEL, CSD, FRAW, FOUT = 88, 92, 100, 104, 128

    def unit_consts1(self, fmt):
        A = self.A
        FA, SEL = self.FA, self.SEL
        t0, t1 = 104, 105
        A.I(f'v_lshrrev_b32 v{t0}, 4, v1')
        A.I(f'v_lshlrev_b32 v{FA}, 9, v{t0}')
        A.I(f'v_bfe_u32 v{t1}, v1, 2, 2')
        A.I(f'v_lshl_add_u32 v{FA}, v{t1}, 5, v{FA}')
        A.I(f'v_and_b32 v{t1}, 1, v1')
        A.I(f'v_lshl_add_u32 v{FA}, v{t1}, 4, v{FA}')
        A.I(f'v_bfe_u32 v{t1}, v1, 1, 1')
        A.I(f'v_mul_u32_u24 v{t1}, {FW3D}, v{t1}')
        A.I(f's_lshl_b32 {s(sT0)}, {s(sWAVE)}, 2')
        A.I(f's_add_u32 {s(sT0)}, {s(sT0)}, {FW13F if fmt else FW13C}')
        A.I(f'v_add3_u32 v{FA}, v{FA}, v{t1}, {s(sT0)}')
        if fmt:
            A.I(f'v_bfe_u32 v{FA + 2}, v1, 2, 2')
            A.I(f'v_lshl_add_u32 v{FA + 2}, v{FA + 2}, 3, v{t0}')
            A.I(f'v_mul_u32_u24 v{FA + 2}, 320, v{FA + 2}')
            A.I(f'v_and_b32 v{t1}, 3, v1')
            A.I(f'v_lshl_add_u32 v{FA + 2}, v{t1}, 3, v{FA + 2}')
            A.I(f's_and_b32 {s(sT0)}, {s(sWAVE)}, 1')
            A.I(f's_mul_i32 {s(sT0)}, {s(sT0)}, 1280')
            A.I(f's_lshr_b32 {s(sT2)}, {s(sWAVE)}, 1')
            A.I(f's_mul_i32 {s(sT3)}, {s(sT2)}, 160')
            A.I(f's_add_u32 {s(sT0)}, {s(sT0)}, {s(sT3)}')
            A.I(f's_add_u32 {s(sT0)}, {s(sT0)}, {FW2}')
            A.I(f'v_add_u32 v{FA + 2}, {s(sT0)}, v{FA + 2}')
        A.I(f'v_and_b32 v{t0}, 15, v1')
        A.I(f'v_and_b32 v{FA + 3}, 48, v1')
        A.I(f'v_lshl_add_u32 v{FA + 3}, v{t0}, 6, v{FA + 3}')
        A.I(f'v_mov_b32 v{t1}, 0x3f803f80')
        for i in range(2):
            A.I(f'v_cmp_eq_u32 vcc, {i}, v{t0}')
            for e in range(4):
                A.I(f'v_cndmask_b32 v{SEL + 4 * i + e}, 0, v{t1}, vcc')

    def unit_read(self, u):
        for j in range(8):
            self.A.I(f'ds_read_b32 v{self.FRAW + 8 * u + j}, v{self.FA} offset:{FWU * u + ((j & 3) + 16 * (j >> 2)) * 128}')

    def unit_store(self, u, fmt):
        A = self.A
        FA, SEL, CSD, RAW, OUT = self.FA, self.SEL, self.CSD, self.FRAW + 8 * u, self.FOUT + 8 * (u & 1)
        self.unit_ids(u, fmt)
        A.I(f's_lshl_b32 {s(sL1)}, {s(sT3)}, 2')
        A.I(f's_add_u32 {s(sL1)}, {s(sL1)}, {s(sWAVE)}')
        A.I(f's_lshl_b32 {s(sL1)}, {s(sL1)}, 1')
        A.I(f's_mul_i32 {s(sH0)}, {s(sT0)}, 192')
        A.I(f's_add_u32 {s(sH0)}, {s(sH0)}, {s(sL1)}')
        A.I(f's_lshl_b32 {s(sH0)}, {s(sH0)}, 6')
        A.I(f's_add_u32 {s(sH0)}, {s(sH0)}, {CSP}')
        A.I(f's_mul_i32 {s(sL0)}, {s(sT0)}, 3072')
        A.I(f's_add_u32 {s(sL0)}, {s(sL0)}, {WF13}')
        for i in range(2):
            for jj in range(4):
                sel = sSELHI if i & 1 else sSELLO
                A.I(f'v_perm_b32 v{OUT + 4 * i + jj}, v{RAW + 2 * jj + 1}, v{RAW + 2 * jj}, {s(sel)}')
            A.I(f's_add_u32 {s(sT0)}, {s(sL1)}, {i}')
            A.I(f's_mul_i32 {s(sT1)}, {s(sT0)}, 21846')
            A.I(f's_lshr_b32 {s(sT1)}, {s(sT1)}, 16')
            A.I(f's_mul_i32 {s(sT1)}, {s(sT1)}, 57')
            A.I(f's_add_u32 {s(sT0)}, {s(sT0)}, {s(sT1)}')
            A.I(f's_lshl_b32 {s(sT0)}, {s(sT0)}, 10')
            A.I(f's_add_u32 {s(sT0)}, {s(sT0)}, {s(sL0)}')
            A.I(f'v_mfma_f32_16x16x32_bf16 {v(CSD, 4)}, {v(OUT + 4 * i, 4)}, {v(SEL + 4 * i, 4)}, {v(CSD, 4) if i else 0}')
            A.I(f'buffer_store_dwordx4 {v(OUT + 4 * i, 4)}, v2, {srd(SRD_WS)}, {s(sT0)} offen sc1')
        A.I('s_mov_b32 exec_lo, 0x00030003')
        A.I('s_mov_b32 exec_hi, 0x00030003')
        A.I(f'buffer_store_dwordx4 {v(CSD, 4)}, v{FA + 3}, {srd(SRD_WS)}, {s(sH0)} offen sc1', tag=('fst', u))
        A.I('s_mov_b64 exec, -1')

    def fmt_w2dma(self):
        A = self.A
        A.I(f's_lshl_b32 {s(sT2)}, {s(sU2)}, 2')
        A.I(f's_add_u32 {s(sT2)}, {s(sT2)}, {s(sWAVE)}')
        A.I(f's_mul_i32 {s(sT2)}, {s(sT2)}, {16 * 1280}')
        A.I(f's_mul_i32 {s(sT3)}, {s(sU3)}, 320')
        A.I(f's_add_u32 {s(sT2)}, {s(sT2)}, {s(sT3)}')
        A.I(f's_mul_i32 {s(sT0)}, {s(sWAVE)}, 5120')
        A.I(f's_add_u32 m0, {s(sT0)}, {FW2}')
        for i in range(5):
            A.I(f'v_add_u32 v121, {64 * i}, v1')
            A.I('v_mul_u32_u24 v122, 3277, v121')
            A.I('v_lshrrev_b32 v122, 16, v122')
            A.I('v_mul_u32_u24 v122, 960, v122')
            A.I('v_lshl_add_u32 v123, v121, 4, v122')
            t2 = A.I(f'buffer_load_dwordx4 v123, {srd(SRD_W2)}, {s(sT2)} offen {self.fnt}lds')
            A.I('s_add_u32 m0, m0, 1024')
        return t2

    def fmt_ids(self):
        A = self.A
        A.I(f's_mul_i32 {s(sU2)}, {s(sX)}, 12')
        A.I(f's_add_u32 {s(sU2)}, {s(sU2)}, {s(sIDX)}')
        A.I(f's_sub_u32 {s(sU2)}, {s(sU2)}, 20')
        A.I(f's_mul_i32 {s(sFU)}, {s(sU2)}, 3')
        A.I(f's_and_b32 {s(sU3)}, {s(sU2)}, 3')
        A.I(f's_lshr_b32 {s(sU2)}, {s(sU2)}, 2')

    def p0_stats(self, fmt):
        A = self.A
        FR, G_, S_, ONE, XT = 32, 72, 76, 80, 84
        A.I('v_and_b32 v127, 7, v1')
        A.I('v_mul_u32_u24 v132, 1280, v127')
        A.I('v_bfe_u32 v125, v1, 3, 1')
        A.I('v_lshlrev_b32 v125, 6, v125')
        A.I('v_and_or_b32 v125, v1, 48, v125')
        A.I('v_add_u32 v132, v132, v125')
        A.I(f'v_mul_u32_u24 v124, {XIP}, v127')
        A.I(f'v_add_u32 v124, {XI}, v124')
        A.I('v_add_u32 v124, v124, v125')
        self.srd_words()
        self.common_consts()
        A.I('v_bfe_u32 v125, v1, 2, 2')
        A.I(f'v_mul_u32_u24 v125, {XIP}, v125')
        A.I('v_lshrrev_b32 v126, 4, v1')
        A.I('v_lshl_add_u32 v125, v126, 5, v125')
        A.I('v_and_b32 v127, 3, v1')
        A.I('v_lshl_add_u32 v125, v127, 3, v125')
        A.I(f'v_add_u32 v125, {XI}, v125')
        A.I('v_lshrrev_b32 v131, 2, v1')
        A.I('v_mul_u32_u24 v131, 144, v131')
        A.I('v_lshl_add_u32 v131, v127, 5, v131')
        A.I(f'v_add_u32 v131, {STG0 + 16}, v131')
        A.I('v_and_b32 v126, 15, v1')
        A.I('v_lshrrev_b32 v128, 2, v126')
        A.I('v_lshl_add_u32 v128, v128, 4, v126')
        A.I('v_lshlrev_b32 v128, 2, v128')
        A.I(f'v_add_u32 v132, {s(sT1)}, v132')
        self.rb_consts()
        A.wait_all(vm=False)
        self.stamp('start')
        A.I(f's_mov_b64 {s(SRD_X, 2)}, s[64:65]')
        for f in range(10):
            A.I(f'buffer_load_dwordx4 {v(FR + 4 * f, 4)}, v132, {srd(SRD_X)}, 0 offen offset:{128 * f} nt')
        self.srd_rest(fmt)
        self.unit_consts0(fmt)
        if not fmt and self.cpos == 0:
            self.conv_consts()
        self.isfmt = fmt
        sk = self.fpos if fmt else self.skpos
        if sk == 0:
            self.ssmk_loads()
        for i in range(4):
            A.I(f'v_mov_b32 v{ONE + i}, 0x3f803f80')
        for f in range(10):
            fr = v(FR + 4 * f, 4)
            A.I(f'ds_write_b128 v124, {fr} offset:{128 * f}')
            if (f == 0 and sk == 1) or (f == 5 and sk == 2) or (f == 9 and sk == 3):
                self.ssmk_loads()
            if not fmt and ((f == 5 and self.cupos == 2) or (f == 9 and self.cupos == 3)):
                self.unit_dma(0, False)
                self.unit_dma(1, False)
            A.I(f'v_mfma_f32_16x16x32_bf16 {v(G_, 4)}, {fr}, {fr}, {v(G_, 4) if f else 0}')
            A.I(f'ds_read_b64_tr_b16 {v(XT + 4 * f, 2)}, v125 offset:{128 * f}')
            A.I(f'v_mfma_f32_16x16x32_bf16 {v(S_, 4)}, {v(ONE, 4)}, {fr}, {v(S_, 4) if f else 0}')
            A.I(f'ds_read_b64_tr_b16 {v(XT + 4 * f + 2, 2)}, v125 offset:{128 * f + 4 * XIP}')
        self.stamp('kv_landed')
        for f in range(10):
            A.I(f'ds_write_b128 v131, {v(XT + 4 * f, 4)} offset:{2304 * f}')
        for i in range(1, 4):
            A.I(f'v_cmp_eq_u32 vcc, {i}, v127')
            A.I(f'v_cndmask_b32 v{G_}, v{G_}, v{G_ + i}, vcc')
        A.I(f'ds_bpermute_b32 v129, v128, v{G_}')
        A.I(f'v_add_f32_dpp v130, v{S_}, v{S_} row_ror:8 row_mask:0xf bank_mask:0xf')
        A.I('v_add_f32_dpp v129, v129, v129 row_ror:8 row_mask:0xf bank_mask:0xf')
        A.I('v_mul_f32 v130, 0x3acccccd, v130')
        A.I('v_mul_f32 v129, 0x3acccccd, v129')
        A.I('v_fma_f32 v129, -v130, v130, v129')
        A.I('v_max_f32 v129, 0, v129')
        A.I('v_add_f32 v129, 0x3727c5ac, v129')
        A.I('v_rsq_f32 v129, v129')
        A.I('v_cmp_gt_u32 vcc, 8, v126')
        A.I('v_mul_f32_e64 v130, -v130, v129')
        A.I('v_cndmask_b32 v129, v130, v129, vcc')
        A.I('v_lshlrev_b32 v125, 2, v1')
        A.I(f's_lshl_b32 {s(sT2)}, {s(sB)}, 6')
        A.I(f's_add_u32 {s(sT2)}, {s(sT2)}, {STATS}')
        A.I('s_mov_b64 exec, 0xffff')
        A.I(f'buffer_store_dword v129, v125, {srd(SRD_WS)}, {s(sT2)} offen sc1')
        A.I('s_mov_b64 exec, -1')

    def rb_consts(self):
        A = self.A
        A.I('v_lshrrev_b32 v170, 3, v1')
        A.I('v_and_b32 v171, 7, v1')
        A.I('v_lshlrev_b32 v171, 4, v171')
        A.I('v_mul_u32_u24 v172, 144, v170')
        A.I(f's_mul_i32 {s(sT3)}, {s(sWAVE)}, {40 * 144}')
        A.I(f's_add_u32 {s(sT3)}, {s(sT3)}, {STG0}')
        A.I(f'v_add3_u32 v172, v172, v171, {s(sT3)}')
        A.I(f'v_mul_u32_u24 v173, {TS}, v170')
        A.I(f's_mul_i32 {s(sT2)}, {s(sWAVE)}, {40 * TS}')
        A.I(f's_lshl_b32 {s(sT3)}, {s(sB)}, 7')
        A.I(f's_add_u32 {s(sT2)}, {s(sT2)}, {s(sT3)}')
        A.I(f'v_add3_u32 v173, v173, v171, {s(sT2)}')

    def p0(self, fmt):
        A = self.A
        tg = 'f' if fmt else 'c'
        st = A.fork()
        keep = A.lines
        A.lines = []
        A.label(f'L_p0_st{tg}')
        self.p0_stats(fmt)
        st1 = A.fork()
        A.I(f's_branch L_p0_join{tg}')
        self.outline.append(A.lines)
        A.lines = keep
        A.label(f'L_p0_kv{tg}')
        A.restore(st)
        self.p0_kv(fmt)
        st2 = A.fork()
        A.label(f'L_p0_join{tg}')
        A.join([st1, st2])
        RB = 140
        A.hard_wait('lgkmcnt(0)')
        self.barrier()
        for i in range(5):
            A.I(f'ds_read_b128 {v(RB + 4 * i, 4)}, v172 offset:{1152 * i}')
        A.I(f's_mul_i32 {s(sNC)}, {s(sNC)}, 1664525')
        A.I(f's_add_u32 {s(sNC)}, {s(sNC)}, 1013904223')
        A.I(f's_mov_b32 {s(sNC + 1)}, {s(sNC)}')
        A.I(f'v_mov_b32 v6, {s(sNC)}')
        for i in range(5):
            A.I(f's_mov_b32 {s(sT2)}, {T_OFF + i * 8 * TS}')
            self.tag_t = A.I(f'buffer_store_dwordx4 {v(RB + 4 * i, 4)}, v173, {srd(SRD_WS)}, {s(sT2)} offen sc1')
        self.stamp('p0_stores')
        if not fmt and self.skpos == 4:
            self.ssmk_loads()

    def arrive_a(self):
        A = self.A
        A.wait_vm(self.tag_t)
        self.stamp('p0_drained')
        self.barrier()
        A.I(f's_and_b32 {s(sSG)}, s2, 128')
        A.I(f's_add_u32 {s(sSG)}, {s(sSG)}, {CNT + SY_A}')
        self.signal_global(None)

    def formatter(self):
        A = self.A
        sVH = 32
        A.I(f's_lshr_b32 {s(sVH)}, {s(sWAVE)}, 1')
        for u in range(self.eu, 3):
            self.unit_dma(u, True)
        self.unit_consts1(True)
        self.arrive_a()
        if self.eu < 3:
            A.wait_vm(('fw', 2))
            self.barrier()
        self.stamp('fmt_landed')
        for u in range(3):
            self.unit_read(u)
        for u in range(3):
            self.unit_store(u, True)
        self.stamp('fmt_stores')
        self.tag_w = ('fst', 2)
        t2 = self.fmt_w2dma()
        A.I(f's_lshl_b32 {s(sU3)}, {s(sU3)}, 1')
        A.I(f's_add_u32 {s(sU3)}, {s(sU3)}, {s(sVH)}')
        A.I(f's_mul_i32 {s(sU3)}, {s(sU3)}, 48')
        A.I(f's_lshl_b32 {s(sU2)}, {s(sU2)}, 1')
        A.I(f's_and_b32 {s(sT0)}, {s(sWAVE)}, 1')
        A.I(f's_add_u32 {s(sU2)}, {s(sU2)}, {s(sT0)}')
        A.I(f's_add_u32 {s(sU2)}, {s(sU2)}, {s(sU3)}')
        A.I(f's_mul_i32 {s(sU2)}, {s(sU2)}, 5120')
        A.I(f's_add_u32 {s(sU2)}, {s(sU2)}, {WF2}')
        for x in self.poll_kind('A'):
            A.I(x)
        A.wait_vm(self.tag_w)
        self.barrier()
        self.signal_global(SY_W)
        self.stamp('fmt_done')
        A.wait_vm(t2)
        self.barrier()
        W2R = 144
        for t in range(5):
            A.I(f'ds_read_b64_tr_b16 {v(W2R + 4 * t, 2)}, v{self.FA + 2} offset:{32 * t}')
            A.I(f'ds_read_b64_tr_b16 {v(W2R + 4 * t + 2, 2)}, v{self.FA + 2} offset:{32 * 320 + 32 * t}')
        for t in range(5):
            if t == 4:
                A.I(f's_add_u32 {s(sU2)}, {s(sU2)}, 4096')
            A.I(f'buffer_store_dwordx4 {v(W2R + 4 * t, 4)}, v2, {srd(SRD_WS)}, {s(sU2)} offen offset:{1024 * (t & 3)} sc1')
        for x in self.rot_bases() + self.g1_consts():
            A.I(x)
        A.wait_all()
        self.only_wave(0, lambda: self.poll_global(SY_W))
        self.barrier()
        self.signal_global(SY_W2)
        self.stamp('W_seen')
        A.I('v_mov_b32 v4, 0x7ff00000')
        ad, ld, red = self.cs_parts()
        if self.pfm & 1:
            self.pf(12, s(sW13))()
        for x in ad:
            A.I(x)
        for n in range(self.nearly):
            for x in self.w13_item(n):
                A.I(x)
        self.stamp('W13_loaded')
        for x in self.poll_kind('B'):
            A.I(x)
        self.only_wave(0, lambda: self.poll_global(SY_B1))
        self.barrier()
        self.stamp('B1_seen')
        for n in range(8):
            if n == 4 and self.pfm & 4:
                for x in self.pf_h(0):
                    self.emit(x)
            for x in self.h_item(0, n):
                self.emit(x)
        for i in range(2):
            A.I(f'buffer_store_dword v6, v4, {srd(SRD_WS)}, 0 offen', tag=('h2st', i))

    CST = 168

    def cs_parts(self):
        C = self.CST
        ad = ['v_and_b32 v166, 15, v1', 'v_mul_u32_u24 v167, 12288, v166', 'v_cmp_gt_u32 vcc, 16, v166'][:2]
        ad += ['v_and_or_b32 v167, v1, 48, v167',
               'v_lshrrev_b32 v166, 2, v166', 'v_lshlrev_b32 v166, 28, v166',
               f'v_add_u32 v166, {16 * 12288}, v166', 'v_add_u32 v166, v166, v167']
        ld = [f'buffer_load_dwordx4 {v(C + 12 * h + 4 * q, 4)}, v{167 - h}, {srd(SRD_WS)}, {s(sCSO)} offen offset:{64 * q} sc1'
              for h in range(2) for q in range(3)]
        D = self.CS
        red = [f'v_add_f32 v{D + i}, v{C + i}, v{C + 12 + i}' for i in range(12)]
        for ror in (8, 4, 2, 1):
            red += [f'v_add_f32_dpp v{D + i}, v{D + i}, v{D + i} row_ror:{ror} row_mask:0xf bank_mask:0xf' for i in range(12)]
        return ad, ld, red

    def rot_bases(self):
        L = [f's_lshr_b32 {s(sT0)}, {s(sC)}, 2', f's_mov_b32 {s(sT1)}, 0']
        L += [f's_mul_i32 {s(sRB)}, {s(sC2)}, {80 * 128}', f's_add_u32 {s(sRB)}, {s(sRB)}, 81920', f's_mul_i32 {s(sT2)}, {s(sT0)}, 20480',
              f's_sub_u32 {s(sRB)}, {s(sRB)}, {s(sT2)}',
              f's_sub_u32 {s(sT2)}, {s(sRB)}, 81920', f's_min_u32 {s(sU1)}, {s(sRB)}, {s(sT2)}',
              f's_lshl_b32 {s(sRA)}, {s(sWAVE)}, 11', f's_add_u32 {s(sRA)}, {s(sRA)}, {s(sU1)}',
              f's_sub_u32 {s(sT2)}, {s(sRA)}, 81920', f's_min_u32 {s(sRA)}, {s(sRA)}, {s(sT2)}',
              f's_add_u32 {s(sRB)}, {s(sU1)}, 8192',
              f's_sub_u32 {s(sT2)}, {s(sRB)}, 81920', f's_min_u32 {s(sRB)}, {s(sRB)}, {s(sT2)}',
              f's_sub_u32 {s(sU1)}, {s(sU1)}, 1024', f's_cmp_gt_u32 {s(sU1)}, {81920 - 10240 - 1024}',
              f's_cselect_b32 {s(sU1)}, 16384, 0']
        L += [f's_mul_i32 {s(sU2)}, {s(sR)}, {HS}', f's_lshl_b32 {s(sU3)}, {s(sWAVE)}, 12', f's_add_u32 {s(sU2)}, {s(sU2)}, {H_OFF}',
              f's_mul_i32 {s(sT3)}, {s(sT0)}, 20480', f's_add_u32 {s(sT3)}, {s(sT3)}, {s(sU3)}']
        for g in range(5):
            L += [f's_sub_u32 {s(sT2)}, {s(sT3)}, 81920', f's_min_u32 {s(sT3)}, {s(sT3)}, {s(sT2)}', f's_add_u32 {s(sGH + g)}, {s(sT3)}, {s(sU2)}']
            if g < 4:
                L += [f's_add_u32 {s(sT3)}, {s(sT3)}, 16384']
        for g in range(4):
            L += [f's_add_u32 {s(sT2)}, {s(sT0)}, {g}', f's_and_b32 {s(sT2)}, {s(sT2)}, 3', f's_mul_i32 {s(sT2)}, {s(sT2)}, 15360',
                  f's_add_u32 {s(sG13 + g)}, {s(sT2)}, {s(sW13)}']
        L += [f's_lshl_b32 {s(sT2)}, {s(sR)}, 14', f's_lshl_b32 {s(sT3)}, {s(sWAVE)}, 8', f's_add_u32 {s(sT2)}, {s(sT2)}, {s(sT3)}',
              f's_add_u32 {s(sT2)}, {s(sT2)}, {SX}', f's_lshl_b32 {s(sT3)}, {s(sC)}, 10', f's_add_u32 {s(sSXP)}, {s(sT2)}, {s(sT3)}',
              f's_and_b32 {s(sT3)}, {s(sT3)}, 3072', f's_add_u32 {s(sSXG)}, {s(sT2)}, {s(sT3)}']
        for g in range(3):
            L += [f's_mul_i32 {s(sG2 + g)}, {s(sT1)}, 20480', f's_add_u32 {s(sG2 + g)}, {s(sG2 + g)}, {s(sW2)}',
                  f's_lshl_b32 {s(sGHH + g)}, {s(sT1)}, 12', f's_add_u32 {s(sGHH + g)}, {s(sGHH + g)}, {s(sHH)}']
            if g < 2:
                L += [f's_add_u32 {s(sT1)}, {s(sT1)}, 1', f's_sub_u32 {s(sT2)}, {s(sT1)}, 3', f's_min_u32 {s(sT1)}, {s(sT1)}, {s(sT2)}']
        L += [f's_lshl_b32 {s(sCSO)}, {s(sC)}, 2', f's_add_u32 {s(sCSO)}, {s(sCSO)}, {s(sWAVE)}', f's_mul_i32 {s(sCSO)}, {s(sCSO)}, 192',
              f's_add_u32 {s(sCSO)}, {s(sCSO)}, {CSP}']
        return L

    def pf(self, voff, soff):
        def f():
            A = self.A
            ins = Ins(f'buffer_load_dword v0, v{voff}, {srd(SRD_WS)}, {soff} offen sc1')
            A._push(ins)
            A.ntag += 1
            A.st.vm.append((A.ntag, set()))
        return f

    def pf_consts(self):
        assert self.mapr == 8
        return [f's_and_b32 {s(sT0)}, {s(sR)}, 7', f's_mul_i32 {s(sT0)}, {s(sT0)}, 60', 'v_min_u32 v12, 59, v1', f'v_add_lshl_u32 v12, v12, {s(sT0)}, 7',
                f's_and_b32 {s(sT0)}, {s(sC)}, 3', f's_lshl_b32 {s(sT0)}, {s(sT0)}, 2', f's_add_u32 {s(sT0)}, {s(sT0)}, {s(sWAVE)}',
                f's_mul_i32 {s(sT0)}, {s(sT0)}, 40', 'v_min_u32 v13, 39, v1', f'v_add_lshl_u32 v13, v13, {s(sT0)}, 7',
                f's_mul_i32 {s(sT0)}, {s(sR)}, {HS}', f'v_add_u32 v13, {s(sT0)}, v13']

    def pf_hh_consts(self):
        return [f's_and_b32 {s(sT0)}, {s(sC)}, 3', f's_mul_i32 {s(sT0)}, {s(sT0)}, 24', 'v_and_b32 v12, 31, v1', 'v_min_u32 v12, 23, v12',
                f'v_add_lshl_u32 v12, v12, {s(sT0)}, 7', 'v_lshrrev_b32 v13, 5, v1', f'v_mul_u32_u24 v13, {HHS}, v13', 'v_add_u32 v12, v12, v13']

    def pf_h(self, hf):
        return [f's_mov_b32 {s(sSG)}, {H_OFF + 16 * hf * HS}', self.pf(13, s(sSG))]

    def pf_hh(self, hf):
        return [f's_add_u32 {s(sSG)}, {s(sHH)}, {64 * hf * HHS}', self.pf(12, s(sSG))]

    def w13_item(self, n):
        L = []
        m = n % 15
        if m % 4 == 0:
            L.append(f's_add_u32 {s(sL0)}, {s(sG13 + n // 15)}, {4096 * (m // 4)}')
        L.append(f'buffer_load_dwordx4 {a(4 * n, 4)}, v2, {srd(SRD_WS)}, {s(sL0)} offen offset:{1024 * (m & 3)} sc1')
        return L

    def w2reg(self, n):
        if n < 26:
            return 148 + 4 * n
        if n < 30:
            return 256 + 240 + 4 * (n - 26)
        return 256 + 4 * (n - 30)

    def w2_item(self, n):
        L = []
        if n % 4 == 0:
            L.append(f's_add_u32 {s(sL1)}, {s(sG2 + n // 20)}, {4096 * ((n % 20) // 4)}')
        L.append(f'buffer_load_dwordx4 {R(self.w2reg(n), 4)}, v2, {srd(SRD_WS)}, {s(sL1)} offen offset:{1024 * (n & 3)} sc1')
        return L

    def hhreg(self, n):
        return 256 + 120 + 4 * n

    def hh_item(self, hf, n):
        L = []
        m2, kk = n // 12, n % 12
        if n % 4 == 0:
            L.append(f's_add_u32 {s(sH0)}, {s(sGHH + kk // 4)}, {(64 * hf + m2) * HHS}')
        L.append(f'buffer_load_dwordx4 {R(self.hhreg(n), 4)}, v2, {srd(SRD_WS)}, {s(sH0)} offen offset:{1024 * (kk & 3)} sc1')
        return L

    def h_item(self, hf, n):
        A = self.A
        j, i = n >> 2, n & 3
        g = []
        if i == 0:
            lds = (H2B + 16384 * j) if hf else (H1A + 16384 * j if j < 2 else H1B + 16384 * (j - 2))
            g += [f's_add_u32 {s(sU2)}, {s(sGH + j)}, {16 * hf * HS}', f's_add_u32 m0, {s(sU3)}, {lds}']
        g.append(lambda: A.I(f'buffer_load_dwordx4 v2, {srd(SRD_WS)}, {s(sU2)} offen offset:{1024 * i} sc1 lds', tag=('h', hf, n)))
        return g

    def plan_loads(self):
        slots = [('h1', k) for k in range(20)] + [('e1', q) for q in range(3)] + [('h2', k) for k in range(20)] + \
                [('e2', q) for q in range(3)] + [('g2', k) for k in range(12)]
        pos = {x: i for i, x in enumerate(slots)}
        cap = {'h1': self.pace, 'h2': self.pace, 'e1': self.epace, 'e2': self.epace, 'g2': 2}
        lat = self.lat
        streams = []
        pre = 8
        streams.append([(0, pos[('h1', 4 * (n >> 2) - 1)] - lat, self.h_item(0, n)) for n in range(pre, 20)])
        streams.append([(0, pos[('h1', n // 3)] - lat, self.w13_item(n)) for n in range(self.nearly, 60)])
        streams.append([(0, pos[('h1', self.csk)] - lat, [x]) for x in self.cs_parts()[1]])
        r2 = pos[('h1', self.b2k + self.pd)]
        streams[0] += [(r2, (pos[('h1', 19)] - 1 if n < 4 else pos[('h2', 4 * (n >> 2) - 1)]) - lat, self.h_item(1, n)) for n in range(20)]
        rw = pos[('h1', max(self.w2k + self.pd, self.csk + 2))]
        streams.append([(rw if n < 30 else pos[('h2', (4 * (n - 30) + 3) // 12 + 1)], pos[('g2', n // 10)] - lat, self.w2_item(n)) for n in range(60)])
        rc = pos[('h2', self.c1k + self.pd)]
        streams.append([(max(rc, pos[('h2', 10 + n // 3 + 1)]), pos[('g2', min(n // 2, 6))] - lat - 1, self.hh_item(0, n)) for n in range(24)])
        plan = {x: [] for x in slots}
        ptr = [0] * len(streams)
        late = 0
        for i, x in enumerate(slots):
            k = 0
            while True:
                cand = [(st[ptr[j]][1], j) for j, st in enumerate(streams) if ptr[j] < len(st) and st[ptr[j]][0] <= i]
                if not cand:
                    break
                d, j = min(cand)
                if k >= cap[x[0]] and d + lat - 1 > i:
                    break
                if d < i:
                    late += 1
                plan[x].append(streams[j][ptr[j]][2])
                ptr[j] += 1
                k += 1
        assert all(ptr[j] == len(st) for j, st in enumerate(streams))
        self.plan = plan
        self.late = late

    ALO = 256 + 112

    def toep_build(self, i):
        A = self.A
        kt = [(KTBL >> (4 * sh)) & 15 for sh in range(8)]
        X = self.XS + 8 * i
        T = 32 + 24 * (i & 1)
        Y, O0, O1 = T, T + 6, T + 12
        base = 'v240' if i < 2 else 'v241'

        def wr(sh, reg):
            off = kt[sh] * TPITCH + (64 * (i & 1) + (1 if sh else 2)) * 16
            A.I(f'ds_write_b128 {base}, {v(reg, 4)} offset:{off}')
        wr(0, X + 4)
        wr(4, X + 2)
        for e in range(6):
            A.I(f'v_mov_b32 v{Y + e}, v{X + 1 + e}')
        wr(2, Y)
        wr(6, Y + 2)
        for e in range(6):
            A.I(f'v_alignbit_b32 v{O0 + e}, v{X + e + 1}, v{X + e}, 16')
        wr(1, O0)
        wr(5, O0 + 2)
        for e in range(6):
            A.I(f'v_alignbit_b32 v{O1 + e}, v{X + e + 2}, v{X + e + 1}, 16')
        wr(3, O1)
        wr(7, O1 + 2)

    def conv_consts(self):
        A = self.A
        A.I(f's_mul_i32 {s(sT3)}, {s(sWAVE)}, {THALF}')
        A.I(f'v_add_u32 v241, {s(sT3)}, v2')
        A.I(f'v_add_u32 v240, {TLB}, v241')
        A.I('v_lshlrev_b32 v10, 2, v1')
        A.I(f's_mov_b32 {s(sT2)}, {KTBL:#x}')
        A.I(f'v_bfe_u32 v10, {s(sT2)}, v10, 4')
        A.I(f'v_mul_u32_u24 v10, {TPITCH}, v10')
        A.I('v_cmp_eq_u32 vcc, 0, v1')
        A.I('v_cndmask_b32_e64 v11, 0, 16, vcc')
        A.I(f'v_add3_u32 v243, v10, v11, {s(sT3)}')
        A.I(f'v_add_u32 v242, {TLB}, v243')
        A.I('v_lshrrev_b32 v12, 4, v1')
        A.I('v_and_b32 v13, 15, v1')
        A.I('v_lshl_add_u32 v14, v12, 3, v13')
        A.I('v_add_u32 v14, 1, v14')
        A.I('v_and_b32 v15, 7, v14')
        A.I('v_lshlrev_b32 v15, 2, v15')
        A.I(f'v_bfe_u32 v15, {s(sT2)}, v15, 4')
        A.I(f'v_mul_u32_u24 v15, {TPITCH}, v15')
        A.I('v_lshrrev_b32 v14, 3, v14')
        A.I('v_lshlrev_b32 v14, 4, v14')
        A.I(f'v_add3_u32 v9, v14, v15, {s(sT3)}')
        A.I(f'v_add_u32 v251, {TLB}, v9')
        A.I(f's_mul_i32 {s(sT3)}, {s(sWAVE)}, {2 * RP}')
        A.I(f's_add_u32 {s(sT3)}, {s(sT3)}, {KVX}')
        A.I('v_lshlrev_b32 v10, 1, v13')
        A.I('v_sub_u32 v10, v10, v12')
        A.I('v_add_u32 v10, 5, v10')
        A.I('v_lshlrev_b32 v10, 4, v10')
        A.I(f'v_add_u32 v10, {s(sT3)}, v10')
        A.I('v_lshlrev_b32 v11, 5, v13')
        A.I('v_lshl_add_u32 v11, v12, 3, v11')
        A.I(f's_add_u32 {s(sT2)}, {s(sT3)}, {RP + 512}')
        A.I(f'v_add_u32 v11, {s(sT2)}, v11')
        A.I('v_lshrrev_b32 v14, 1, v12')
        A.I('v_lshl_add_u32 v14, v13, 1, v14')
        A.I('v_lshlrev_b32 v14, 6, v14')
        A.I('v_and_b32 v15, 1, v12')
        A.I('v_lshlrev_b32 v16, 4, v15')
        A.I(f'v_add_u32 v14, {STL}, v14')
        A.I('v_add_u32 v14, v14, v16')
        A.I('v_lshrrev_b32 v16, 2, v13')
        A.I('v_lshl_add_u32 v15, v15, 2, v16')
        A.I(f'v_mul_u32_u24 v15, {HS}, v15')
        A.I(f's_bfe_u32 {s(sT2)}, {s(sD)}, 0x20001')
        A.I('v_and_b32 v16, 3, v13')
        A.I(f'v_xor_b32 v16, {s(sT2)}, v16')
        A.I('v_lshlrev_b32 v16, 5, v16')
        A.I('v_lshrrev_b32 v17, 1, v12')
        A.I('v_lshlrev_b32 v17, 4, v17')
        A.I('v_add3_u32 v15, v15, v16, v17')
        A.I('v_lshl_add_u32 v28, v12, 3, v13')
        A.I('v_sub_u32 v28, 15, v28')
        A.I('v_lshlrev_b32 v16, 4, v0')
        A.I('v_and_b32 v17, 7, v0')
        A.I(f'v_mul_u32_u24 v17, {RP}, v17')
        A.I('v_lshrrev_b32 v19, 3, v0')
        A.I(f'v_add_u32 v17, {KVX}, v17')
        for x in self.rot_bases():
            A.I(x)
        A.I('v_lshl_add_u32 v17, v19, 4, v17')
        for k, r in enumerate((9, 10, 11, 14, 15, 16, 17)):
            A.I(f'v_mov_b32 v{244 + k}, v{r}')
        for x in self.g1_consts()[:-4]:
            A.I(x)

    def conv_prep(self):
        A = self.A
        if self.cpos == 1:
            self.conv_consts()
        A.I(f's_and_b32 {s(sT2)}, {s(sD)}, 1')
        A.I(f's_lshl_b32 {s(sT2)}, {s(sT2)}, 4')
        A.I(f's_lshr_b32 {s(sDV)}, {s(sDV)}, {s(sT2)}')
        A.I(f's_and_b32 {s(sDV)}, {s(sDV)}, 0xffff')
        A.I('v_and_b32 v15, 1, v28')
        A.I('v_lshlrev_b32 v15, 4, v15')
        A.I(f'v_lshlrev_b32_e64 v15, v15, {s(sDV)}')
        A.I('v_lshrrev_b32 v16, 1, v28')
        for e in range(4):
            A.I(f'v_cmp_eq_u32 vcc, {e}, v16')
            A.I(f'v_cndmask_b32 v{28 + e}, 0, v15, vcc')
        for e in range(4):
            A.I(f'v_mov_b32 v{80 + e}, 0')
        if self.cpos == 1:
            pass
        if self.cupos == 1:
            self.unit_dma(0, False)
            self.unit_dma(1, False)
        self.unit_consts1(False)
        for i in range(2):
            if i == self.apos:
                self.arrive_a()
            self.toep_build(i)
        if self.apos == 2:
            self.arrive_a()
        if self.cupos == 1:
            A.wait_vm(('fw', 1))
            self.barrier()
        self.unit_read(0)
        self.unit_store(0, False)
        L = A.newlabel('L_u2')
        A.I(f's_cmp_lt_u32 {s(sIDX)}, 16')
        A.I(f's_cbranch_scc1 {L}')
        st = A.fork()
        self.unit_read(1)
        self.unit_store(1, False)
        st2 = A.fork()
        A.label(L)
        A.join([st, st2])
        A.I('s_mov_b64 exec, 0xff')
        A.I('ds_write_b128 v242, v[80:83]')
        A.I('ds_read_b128 v[84:87], v242 offset:2048')
        A.I('s_mov_b64 exec, -1')
        for p in range(32):
            A.I(f'ds_read_b128 {R(self.ALO + 16 * (p & 7) + 4 * (p >> 3), 4)}, v251 offset:{64 * p}')
        A.I('s_mov_b64 exec, 0xff')
        A.I('ds_write_b128 v243, v[84:87]')
        A.I('s_mov_b64 exec, -1')
        if not self.hlate:
            self.toep_build(2)
            self.toep_build(3)
        A.wait_all()
        self.barrier()
        self.signal_global(SY_W)

    def conv(self):
        A = self.A
        ACC, VB, AH, STG, XQ, TMP, PK = 32, 64, 128, 160, 192, 224, 224
        A.I(f's_lshr_b32 {s(sT0)}, {s(sD)}, 2')
        A.I(f's_mul_i32 {s(sT0)}, {s(sT0)}, {TS}')
        A.I(f's_add_u32 {s(sT0)}, {s(sT0)}, {T_OFF}')
        A.I(f's_lshl_b32 {s(sT1)}, {s(sWAVE)}, 11')
        A.I(f's_add_u32 m0, {s(sT1)}, {STL}')
        A.I(f's_add_u32 {s(sT1)}, {s(sT1)}, {STATS}')
        for x in self.poll_kind('A1'):
            A.I(x)
        self.only_wave(0, lambda: self.poll_global(SY_A))
        self.barrier()
        self.stamp('A_seen')

        def titems():
            L = []
            for i in range(4, 8):
                L.append(([f's_add_u32 {s(sT0)}, {s(sT0)}, 4096'] if i > 4 else []) +
                         [f'buffer_load_dwordx4 {v(STG + 4 * i, 4)}, v249, {srd(SRD_WS)}, {s(sT0)} offen sc1'])
            for i in range(2):
                L.append([lambda i=i: A.I(f'buffer_load_dwordx4 v2, {srd(SRD_WS)}, {s(sT1)} offen offset:{1024 * i} sc1 lds', tag=('st', 1, i))])
            return L

        def tloads(hf):
            for i in range(4 * hf, 4 * hf + 4):
                A.I(f'buffer_load_dwordx4 {v(STG + 4 * i, 4)}, v249, {srd(SRD_WS)}, {s(sT0)} offen sc1')
                A.I(f's_add_u32 {s(sT0)}, {s(sT0)}, 4096')
            for i in range(2):
                A.I(f'buffer_load_dwordx4 v2, {srd(SRD_WS)}, {s(sT1)} offen offset:{1024 * i} sc1 lds', tag=('st', hf, i))
            if hf == 0:
                A.I('s_add_u32 m0, m0, 8192')
                A.I(f's_add_u32 {s(sT1)}, {s(sT1)}, 8192')
        tloads(0)
        for x in self.poll_kind('A2'):
            A.I(x)
        if self.a2i < 0:
            self.apoll_issue(5, CNT + SY_A)
        A.I('ds_write_b128 v250, v[80:83]')
        if self.hlate:
            self.toep_build(2)
            self.toep_build(3)
        for i in range(4):
            A.I(f'ds_write_b128 v250, {v(STG + 4 * i, 4)} offset:{512 + 512 * i}')
            self.stamp(f'T{i}', fine=5)
            if i == self.a2i:
                self.apoll_issue(5, CNT + SY_A)
        A.wait_vm(('st', 0, 1))
        self.stamp(f'Tst', fine=5)
        A.wait_all(vm=False)
        self.barrier()
        self.stamp('T_staged')
        AD = {'th': 244, 'kv': 245, 'x': 246, 'st': 247, 'ho': 248}

        def vread(buf, tau, mu):
            return f'ds_read_b128 {v(VB + 32 * buf + 4 * tau, 4)}, v{AD["kv"]} offset:{(32 * tau + 28 - 4 * mu) * 16}'

        def aread(buf, c, mu):
            return f'ds_read_b128 {v(AH + 16 * buf + 4 * (c - 4), 4)}, v{AD["th"]} offset:{64 * (8 * c + mu - 32)}'

        def qprep(t):
            tt = t & 3
            x0 = TMP + 10 * (t & 1)
            q = XQ + 8 * tt
            L = [f'ds_read_b64 {v(x0, 2)}, v{AD["x"]} offset:{512 * t}',
                 f'ds_read_b128 {v(x0 + 2, 4)}, v{AD["st"]} offset:{2048 * t}',
                 f'ds_read_b128 {v(x0 + 6, 4)}, v{AD["st"]} offset:{2048 * t + 32}']
            M = [f'v_lshlrev_b32 v{q}, 16, v{x0}', f'v_and_b32 v{q + 1}, {s(sMASK)}, v{x0}',
                 f'v_lshlrev_b32 v{q + 2}, 16, v{x0 + 1}', f'v_and_b32 v{q + 3}, {s(sMASK)}, v{x0 + 1}']
            M += [f'v_fma_f32 v{q + 4 + i}, v{q + i}, v{x0 + 2 + i}, v{x0 + 6 + i}' for i in range(4)]
            return L, M

        def areg(buf, c, mu):
            return R(self.ALO + 16 * mu + 4 * c, 4) if c < 4 else v(AH + 16 * buf + 4 * (c - 4), 4)

        def half(hf, extra, pre, items):
            ts = list(range(4 * hf + 3, 4 * hf - 1, -1))
            ntau = 4 * hf + 4
            for mu in range(8):
                self.stamp(f'c{hf}m{mu}', fine=1)
                buf = mu & 1
                main = []
                if mu == 0 and hf == 1:
                    def sync2():
                        A.wait_vm(('st', 1, 1))
                        A.wait_all(vm=False)
                        self.barrier()
                    p1 = [f'v_mfma_f32_16x16x32_bf16 {v(ACC + 4 * t, 4)}, {areg(0, t - tau, 0)}, {v(VB + 4 * tau, 4)}, {v(ACC + 4 * t, 4) if tau < 3 else 0}'
                          for tau in range(3, -1, -1) for t in range(4, 8)]
                    g1 = {0: [wr[0]], 2: [wr[1]], 4: [wr[2]], 6: [wr[3]], 9: [sync2, vread(0, 4, 0)], 10: [vread(0, 5, 0), vread(0, 6, 0)], 11: [vread(0, 7, 0)]}
                    for i, x in enumerate(p1):
                        self.emit(x)
                        for y in g1.get(i, []):
                            self.emit(y)
                    for tau in range(4, 8):
                        main.append(f'v_mfma_f32_16x16x32_bf16 {v(ACC + 4 * tau, 4)}, v[28:31], {v(VB + 4 * tau, 4)}, {v(ACC + 4 * tau, 4)}')
                        for t in range(tau, 8):
                            main.append(f'v_mfma_f32_16x16x32_bf16 {v(ACC + 4 * t, 4)}, {areg(0, t - tau, 0)}, {v(VB + 4 * tau, 4)}, {v(ACC + 4 * t, 4)}')
                elif mu == 0:
                    for t in ts:
                        main.append(f'v_mfma_f32_16x16x32_bf16 {v(ACC + 4 * t, 4)}, v[28:31], {v(VB + 4 * t, 4)}, 0')
                for c in range(ntau):
                    for t in ts:
                        if c <= t and not (mu == 0 and hf == 1):
                            main.append(f'v_mfma_f32_16x16x32_bf16 {v(ACC + 4 * t, 4)}, {areg(buf, c, mu)}, {v(VB + 32 * buf + 4 * (t - c), 4)}, {v(ACC + 4 * t, 4)}')
                fill = []
                if mu < 7:
                    order = list(range(ntau - 1, -1, -1))
                    fill += [vread(buf ^ 1, tau, mu + 1) for tau in order]
                    if hf:
                        fill += [aread(buf ^ 1, c, mu + 1) for c in range(4, 8)]
                fill += extra.get(mu, [])
                self.interleave2(main, fill, items.get(mu, []), head=pre.get(mu, []))

        def epilogue(hf):
            self.stamp(f'c{hf}epi', fine=1)
            A.I(f's_lshl_b32 {s(sT0)}, {s(sD)}, 7')
            A.I(f's_add_u32 {s(sT0)}, {s(sT0)}, {H_OFF + 16 * hf * HS}')
            for tp in range(2):
                pk = PK + 4 * tp
                for dt in range(2):
                    t = 4 * hf + 2 * tp + dt
                    q = XQ + 8 * (t & 3)
                    for i in range(2):
                        A.I(f'v_pk_fma_f32 {v(q + 2 * i, 2)}, {v(q + 4 + 2 * i, 2)}, {v(ACC + 4 * t + 2 * i, 2)}, {v(q + 2 * i, 2)}')
                    A.I(f'v_cvt_pk_bf16_f32 v{pk + 2 * dt}, v{q}, v{q + 1}')
                    A.I(f'v_cvt_pk_bf16_f32 v{pk + 2 * dt + 1}, v{q + 2}, v{q + 3}')
                A.I(f'v_permlane16_swap_b32 v{pk}, v{pk + 2}')
                A.I(f'v_permlane16_swap_b32 v{pk + 1}, v{pk + 3}')
                A.I(f'buffer_store_dwordx4 {v(pk, 4)}, v{AD["ho"]}, {srd(SRD_WS)}, {s(sT0)} offen sc1', tag=(f'h{hf + 1}st', tp))
                if tp == 0:
                    A.I(f's_add_u32 {s(sT0)}, {s(sT0)}, {8 * HS}')

        def qextra(hf):
            ex = {}
            for j in range(4):
                L, M = qprep(4 * hf + j)
                ex.setdefault(j + 1, []).extend(L)
                ex.setdefault(j + 2, []).extend(M)
            return ex
        for tau in range(3, -1, -1):
            A.I(vread(0, tau, 0))
        ex = qextra(0)
        wr = [f'ds_write_b128 v250, {v(STG + 4 * i, 4)} offset:{512 + 512 * i}' for i in range(4, 8)]
        ex.setdefault(7, []).extend([vread(0, tau, 0) for tau in range(3, -1, -1)] + [aread(0, c, 0) for c in range(4, 8)])
        ad, ld, red = self.cs_parts()
        pre0 = {self.a2mu: [lambda: self.apoll_check(5)]}
        ex.setdefault(5, []).extend(self.poll_kind('A'))
        TI = titems()
        it0 = {self.a2mu: TI[:2], self.a2mu + 1: TI[2:4], self.a2mu + 2: TI[4:]}
        nw = 0
        if self.wiss < 8:
            pre0[self.wiss] = [lambda: self.apoll_issue(5, CNT + SY_W)]
        half(0, ex, pre0, it0)
        epilogue(0)
        self.stamp('conv_h1')
        ex = qextra(1)
        pre, items = {}, {}

        def arrive_b1():
            A.wait_vm(('h1st', 1))
            self.barrier()
            self.signal_global(SY_B1)

        def nonce_update():
            A.I(f's_cmp_eq_u32 {s(sD)}, 0')
            A.I(f's_cselect_b32 {s(sT1)}, 0, 0x7ff00000')
            A.I(f's_add_u32 {s(sT1)}, {s(sT1)}, {NONCE}')
            A.I('s_mov_b64 exec, 1')
            A.I(f'buffer_store_dword v6, v2, {srd(SRD_WS)}, {s(sT1)} offen sc1')
            A.I('s_mov_b64 exec, -1')
        if self.b1mid:
            ex.setdefault(self.b1mu, []).insert(0, arrive_b1)
        else:
            pre.setdefault(self.b1mu + 1, []).append(arrive_b1)
        ex.setdefault(1, []).extend(ad)
        if self.wiss >= 8:
            pre.setdefault(self.wiss - 8, []).append(lambda: self.apoll_issue(5, CNT + SY_W))
        pre.setdefault(self.wmu, []).append(lambda: self.apoll_check(5))
        if self.pfm & 1:
            pre[self.wmu].append(self.pf(12, s(sW13)))
        ex.setdefault(self.wmu, []).extend(self.poll_kind('B'))
        for mu in range(self.wmu, 7):
            m = min(nw + (self.wpace // 2 if mu == 0 else self.wpace), 28 + 4 * mu, 60)
            items[mu] = [self.w13_item(n) for n in range(nw, m)]
            nw = m
        assert nw == self.nearly, nw
        ex.setdefault(6, []).extend([nonce_update] + self.g1_consts()[-4:])
        pre.setdefault(self.b1k, []).append(lambda: self.apoll_issue(5, CNT + SY_B1))
        pre.setdefault(7, []).append(lambda: self.apoll_check(5))
        items[7] = [self.h_item(0, n) for n in range(8)]
        if self.pfm & 4:
            items[7].insert(4, self.pf_h(0))
        half(1, ex, pre, items)
        epilogue(1)
        self.stamp('conv_h2')

    ACC1, GR, SM, CS, ONE, HF, RES = 32, 80, 84, 88, 28, 104, 136

    def w13(self, kap, q):
        return 256 + 12 * kap + 4 * q

    def g1_consts(self):
        F = ['v_lshrrev_b32 v12, 2, v1', 'v_lshlrev_b32 v13, 7, v12', 'v_and_b32 v14, 3, v1',
             'v_lshl_add_u32 v13, v14, 3, v13', 'v_bfe_u32 v14, v1, 3, 2', f'v_xor_b32 v15, {s(sWAVE)}, v14']
        F += [f's_lshl_b32 {s(sT1)}, {s(sCH)}, 1', f'v_xor_b32 v16, {s(sT1)}, v14', 'v_lshl_add_u32 v17, v16, 5, v13',
              f'v_add_u32 v13, {H1A}, v13']
        for u in range(4):
            F.append(f'v_xor_b32 v16, {u}, v15')
            F.append(f'v_lshl_add_u32 v{8 + u}, v16, 5, v13')
        F += ['v_and_b32 v16, 15, v1', 'v_lshlrev_b32 v16, 4, v16', f'v_add_u32 v16, {s(sU1)}, v16', f'v_add_u32 v16, {H1A}, v16']
        for u in range(4):
            F += [f's_xor_b32 {s(sT0)}, {s(sWAVE)}, {u}', f's_lshl_b32 {s(sT0)}, {s(sT0)}, 8', f'v_add_u32 v{19 + u}, {s(sT0)}, v16']
        F += ['v_lshrrev_b32 v16, 4, v1', f'v_xor_b32 v16, {s(sWAVE)}, v16', f'v_mul_u32_u24 v16, {HHS}, v16',
              'v_and_b32 v23, 15, v1', 'v_lshl_add_u32 v23, v23, 4, v16', 'v_and_b32 v16, 3, v1']
        for i in range(1, 4):
            F.append(f'v_cmp_eq_u32 {s(30 + 2 * i, 2)}, {i}, v16')
        F += [f's_mul_i32 {s(sU0)}, {s(sR)}, {4 * HHS}', f's_lshl_b32 {s(sT1)}, {s(sC)}, 2', f's_add_u32 {s(sT1)}, {s(sT1)}, {s(sWAVE)}',
              f's_mul_i32 {s(sT1)}, {s(sT1)}, 768', f's_add_u32 {s(sU0)}, {s(sU0)}, {s(sT1)}', f's_add_u32 {s(sU0)}, {s(sU0)}, {HH}']
        F += [f's_mul_i32 {s(sT0)}, {s(sWAVE)}, 5120', f'v_add_u32 v25, {s(sT0)}, v2',
              f's_lshl_b32 {s(sT0)}, {s(sWAVE)}, 10', f'v_add_u32 v26, {s(sT0)}, v2',
              'v_and_b32 v27, 15, v1', 'v_mul_u32_u24 v27, 1280, v27', 'v_lshrrev_b32 v16, 4, v1', 'v_lshl_add_u32 v27, v16, 3, v27']
        F += [f's_lshl_b32 {s(sT0)}, {s(sR)}, 1', f's_add_u32 {s(sT0)}, {s(sT0)}, {s(sCH)}', f's_mul_i32 {s(sT0)}, {s(sT0)}, {32 * 1280}',
              f's_mul_i32 {s(sT1)}, {s(sC2)}, 160', f's_add_u32 {s(sOU4)}, {s(sT0)}, {s(sT1)}',
              f's_lshl_b32 {s(sT1)}, {s(sWAVE)}, 5', f's_add_u32 {s(sOUT)}, {s(sOU4)}, {s(sT1)}']
        F += ['v_and_b32 v24, 7, v1', 'v_max_u32 v24, 5, v24', 'v_and_b32 v16, 56, v1', 'v_lshlrev_b32 v16, 5, v16',
              'v_lshl_add_u32 v24, v24, 4, v16', f's_lshl_b32 {s(sT0)}, {s(sX)}, 11', f'v_add_u32 v24, {s(sT0)}, v24']
        F += ['v_and_b32 v12, 15, v1', 'v_lshlrev_b32 v12, 4, v12', 'v_and_b32 v13, 48, v1', 'v_lshl_add_u32 v13, v13, 8, v12']
        F += [f'v_mov_b32 v{self.ONE + i}, 0x3f803f80' for i in range(4)]
        return F

    def g1_half(self, hf):
        A = self.A
        ACC, GR, SM, CS, ONE, HF = self.ACC1, self.GR, self.SM, self.CS, self.ONE, self.HF
        pre = {}

        def add(k, items):
            pre.setdefault(k, []).extend(items)

        def arrive(tag, sig):
            def f():
                A.wait_vm(tag)
                self.barrier()
                sig()
            return f
        if hf == 0:
            add(self.b2sig, [arrive(('h2st', 1), lambda: self.signal_global(SY_B2))])
            add(self.w2k, [lambda: self.apoll_issue(24, CNT + SY_W2)])
            add(self.w2k + self.pd, [lambda: self.apoll_check(24)] + ([self.pf(12, s(sW2))] if self.pfm & 2 else []))
            add(self.b2k, [lambda: self.apoll_issue(5, CNT + SY_B2)])
            add(self.b2k + self.pd, [lambda: self.apoll_check(5)] + (self.pf_h(1) if self.pfm & 8 else []))
        else:
            add(self.c1sig, [arrive(('hhst', 0), lambda: self.signal_c(0))])
            add(self.c1k, [lambda: self.apoll_issue(7, CNT + SY_C)])
            add(self.c1k + self.pd, [lambda: self.apoll_check(7)] + (self.pf_hh(0) if self.pfm & 16 else []))
        seg = {0: H1A, 8: H1B, 20: H2B} if hf == 0 else {0: H2B, 10: H2B + 40960}

        def segbase(kap):
            return max(k for k in seg if k <= kap)

        def reads(kap):
            buf = kap & 1
            L = []
            for u in range(4):
                for hh in range(2):
                    L.append(f'ds_read_b64_tr_b16 {v(HF + 16 * buf + 4 * u + 2 * hh, 2)}, v{8 + u} offset:{(kap - segbase(kap)) * 4096 + 2048 * hh}')
            return L

        def rebase(kap):
            d = seg[kap] - seg[segbase(kap - 1)]
            return [f'v_add_u32 v{8 + u}, {d}, v{8 + u}' for u in range(4)]

        def chunk_ready(j):
            def f():
                A.wait_vm(('h', hf, 4 * j + 3))
                self.barrier()
            return f
        if hf == 0:
            A.wait_all(vm=False)
            chunk_ready(0)()
            self.stamp(f'h{hf + 1}_first')
            for x in reads(0):
                A.I(x)
        T = 104

        def resid():
            L = []
            for k, sr in enumerate((sRA, sRB)):
                if hf == 0:
                    L += [f's_add_u32 {s(sT0 + k)}, {s(sr)}, {H1A}', f's_sub_u32 {s(sT2)}, {s(sT0 + k)}, 163840', f's_min_u32 {s(sT0 + k)}, {s(sT0 + k)}, {s(sT2)}']
                else:
                    L += [f's_add_u32 {s(sT0 + k)}, {s(sr)}, {H2B}']
            L += [f'v_add_u32 v14, {s(sT0)}, v17', 'v_xor_b32 v15, 32, v14',
                  f's_and_b32 {s(sT2)}, {s(sWAVE)}, 1', f's_lshl_b32 {s(sT2)}, {s(sT2)}, 5', f'v_xor_b32 v16, {s(sT2)}, v17', f'v_add_u32 v16, {s(sT1)}, v16']
            return L
        ST, E, PQ = 104, 120, 100

        def publish():
            A.I(f's_add_u32 {s(sSG)}, {s(sSXP)}, {262144 * hf}')
            A.I('s_mov_b32 exec_lo, 0x00f0000f')
            A.I('s_mov_b32 exec_hi, 0xf0000f00')
            A.I(f'buffer_store_dwordx4 {v(PQ, 4)}, v12, {srd(SRD_WS)}, {s(sSG)} offen sc1')
            A.I('s_mov_b64 exec, -1')
        gload = f'buffer_load_dwordx4 {v(GR, 4)}, v13, {srd(SRD_WS)}, {s(sSXG)} offen sc1'

        def gtest():
            A.I(f'v_cmp_eq_u32 vcc, {s(sNC)}, v{GR + 1}')
            A.I(f'v_cmp_eq_u32 {s(sEX, 2)}, {s(sNC)}, v{GR + 3}')
            A.I(f's_and_b64 vcc, vcc, {s(sEX, 2)}')
            A.I('s_cmp_eq_u64 vcc, -1')

        def gcheck():
            L, Ll = A.newlabel('L_gok'), A.newlabel('L_gl')
            gtest()
            A.I(f's_cbranch_scc1 {L}')
            st = A.fork()
            A.I(f's_mov_b32 {s(sCNT)}, 0x20000')
            A.label(Ll)
            A.I(gload)
            A.hard_wait('vmcnt(0)')
            gtest()
            A.I(f's_cbranch_scc1 {L}')
            A.I(f's_sub_u32 {s(sCNT)}, {s(sCNT)}, 1')
            A.I(f's_cbranch_scc0 {Ll}')
            A.label(L)
            A.restore(st)

        def stw():
            A.I('s_mov_b64 exec, 0xffff')
            A.I(f'ds_write_b128 v19, {v(SM, 4)}', tag=('stw', hf))
            A.I('s_mov_b64 exec, -1')

        def stsync():
            if hf == 0:
                A.wait_vm(('h', 1, 3))
            A.wait_lg(('stw', hf))
            self.barrier()
        xf = {}
        xf[5] = [f'v_mov_b32 v{PQ + 1}, v6', f'v_mov_b32 v{PQ + 3}, v6', f'v_mov_b32 v{PQ}, v{SM}',
                 f'v_cndmask_b32 v{PQ + 2}, v{GR}, v{GR + 1}, {s(32, 2)}',
                 f'v_cndmask_b32 v{PQ + 2}, v{PQ + 2}, v{GR + 2}, {s(34, 2)}',
                 f'v_cndmask_b32 v{PQ + 2}, v{PQ + 2}, v{GR + 3}, {s(36, 2)}', publish]
        add(self.gk, [gload])
        add(self.gc, [gcheck])
        fz = [f'v_permlane32_swap_b32 v{GR}, v{GR + 2}', f'v_add_f32 v{GR}, v{GR}, v{GR + 2}', f'v_mov_b32 v{GR + 1}, v{GR}',
              f's_add_u32 {s(sSXG)}, {s(sSXG)}, 262144',
              f'v_permlane16_swap_b32 v{GR}, v{GR + 1}', f'v_add_f32 v{GR}, v{GR}, v{GR + 1}', f'v_mov_b32 v{GR + 1}, v{GR}', 's_nop 0',
              f'v_permlane32_swap_b32 v{GR}, v{GR + 1}',
              f'v_mul_f32 v{SM}, 0xbacccccd, v{GR}',
              f'v_mul_f32 v{GR + 1}, 0x3acccccd, v{GR + 1}',
              f'v_fma_f32 v{GR + 1}, -v{SM}, v{SM}, v{GR + 1}',
              f'v_max_f32 v{GR + 1}, 0, v{GR + 1}',
              f'v_add_f32 v{SM + 2}, 0x3727c5ac, v{GR + 1}',
              f'v_rsq_f32 v{SM + 1}, v{SM + 2}',
              f'v_mov_b32 v{SM + 3}, 0',
              f'v_mul_f32 v{SM + 1}, 0xbfb8aa3b, v{SM + 1}',
              stw]
        assert self.gc <= 17
        xf.setdefault(self.gc, []).extend(fz[:9])
        xf.setdefault(self.gc + 1, []).extend(fz[9:])
        for kap in range(20):
            self.stamp(f'h{hf + 1}k{kap}', fine=2 + hf)
            buf = kap & 1
            fr = lambda u: v(HF + 16 * buf + 4 * u, 4)
            main = []
            if kap < 5:
                main = [f'v_mfma_f32_16x16x32_bf16 {v(GR, 4)}, {fr(0)}, {fr(0)}, {v(GR, 4) if kap else 0}',
                        f'v_mfma_f32_16x16x32_bf16 {v(SM, 4)}, {v(ONE, 4)}, {fr(0)}, {v(SM, 4) if kap else 0}']
            order = [(u, q) for u in range(4) for q in range(3)] if kap < 19 else [(u, q) for q in range(3) for u in range(4)]
            for u, q in order:
                ac = v(ACC + 4 * (3 * u + q), 4)
                main.append(f'v_mfma_f32_16x16x32_bf16 {ac}, {R(self.w13(kap, q), 4)}, {fr(u)}, {ac if kap else 0}')
            items = self.plan[(f'h{hf + 1}', kap)]
            fill = []
            if kap < 19:
                if (kap + 1) % 4 == 0:
                    fill.append(chunk_ready((kap + 1) // 4))
                if kap + 1 in seg:
                    fill += rebase(kap + 1)
                fill += reads(kap + 1)
                if hf == 0 and self.csk <= kap < self.csk + 10:
                    fill += self.cs_parts()[2][6 * (kap - self.csk):6 * (kap - self.csk) + 6]
                if kap == 14:
                    fill += resid()
                if kap == 16:
                    fill += [f'ds_read_b64_tr_b16 {v(self.RES + 6 * hf + 2 * n, 2)}, v{14 + n}' for n in range(3)]
            else:
                fill += [stsync] + [f'ds_read_b128 {v(ST + 4 * u, 4)}, v{19 + u}' for u in range(4)]
                if hf == 0:
                    fill += rebase(20) + [f'v_add_u32 v{19 + u}, {H2B - H1A}, v{19 + u}' for u in range(4)]
            fill += xf.get(kap, [])
            self.interleave2(main, fill, items, head=pre.get(kap, []))
        self.stamp(f'g1h{hf + 1}_mfma')
        for q in range(3):
            cg, cu = v(CS + 4 * q, 2), v(CS + 4 * q + 2, 2)
            self.stamp(f'e{hf + 1}q{q}', fine=2 + hf)
            M = []
            for u in range(4):
                ac = ACC + 4 * (3 * u + q)
                st = ST + 4 * u
                M.append(f'v_pk_fma_f32 {v(ac, 2)}, {cg}, {v(st, 2)}, {v(ac, 2)} op_sel_hi:[1,0,1]')
                M.append(f'v_pk_mul_f32 {v(E + 2 * u, 2)}, {v(ac, 2)}, {v(st, 2)} op_sel:[0,1] op_sel_hi:[1,1]')
            for u in range(4):
                ac = ACC + 4 * (3 * u + q)
                st = ST + 4 * u
                M.append(f'v_exp_f32 v{E + 2 * u}, v{E + 2 * u}')
                M.append(f'v_pk_fma_f32 {v(ac + 2, 2)}, {cu}, {v(st, 2)}, {v(ac + 2, 2)} op_sel_hi:[1,0,1]')
                M.append(f'v_exp_f32 v{E + 2 * u + 1}, v{E + 2 * u + 1}')
                M.append(f'v_pk_mul_f32 {v(ac, 2)}, {v(ac, 2)}, {v(ac + 2, 2)}')
            for u in range(4):
                st = ST + 4 * u
                M.append(f'v_pk_fma_f32 {v(E + 2 * u, 2)}, {v(E + 2 * u, 2)}, {v(st + 2, 2)}, {v(st + 2, 2)} op_sel_hi:[1,0,0]')
            pk = GR + 4 * (q & 1)
            for u in range(4):
                M.append(f'v_rcp_f32 v{E + 2 * u}, v{E + 2 * u}')
                if u:
                    ac = ACC + 4 * (3 * (u - 1) + q)
                    M.append(f'v_pk_mul_f32 {v(ac, 2)}, {v(ac, 2)}, {v(E + 2 * (u - 1), 2)}')
                M.append(f'v_rcp_f32 v{E + 2 * u + 1}, v{E + 2 * u + 1}')
                if u:
                    M.append(f'v_cvt_pk_bf16_f32 v{pk + u - 1}, v{ac}, v{ac + 1}')
            ac = ACC + 4 * (9 + q)
            M.append(f'v_pk_mul_f32 {v(ac, 2)}, {v(ac, 2)}, {v(E + 6, 2)}')
            M.append(f'v_cvt_pk_bf16_f32 v{pk + 3}, v{ac}, v{ac + 1}')
            self.interleave2(M, [], self.plan[(f'e{hf + 1}', q)])
            A.I(f'v_permlane32_swap_b32 v{pk}, v{pk + 2}')
            if q == 2 and hf == 0:
                for x in reads(20):
                    A.I(x)
            A.I(f'v_permlane32_swap_b32 v{pk + 1}, v{pk + 3}')
            A.I(f'v_permlane16_swap_b32 v{pk}, v{pk + 1}')
            A.I(f'v_permlane16_swap_b32 v{pk + 2}, v{pk + 3}')
            A.I(f'buffer_store_dwordx4 {v(pk, 4)}, v23, {srd(SRD_WS)}, {s(sU0)} offen offset:{256 * q} sc1', tag=('hhst', hf))
        A.I(f's_add_u32 {s(sU0)}, {s(sU0)}, {64 * HHS}')
        A.I('s_nop 1')
        self.stamp(f'g1h{hf + 1}_epi')

    def g2_reduce(self, p, packed):
        A = self.A
        hf, m2 = p >> 1, p & 1
        ACC = 32 + 20 * (p & 1)
        base = RED + 20480 * (0, 1, 0, 2)[p]
        P, T = 72, 104 + 8 * (p & 1)
        sO = sT0 + 2 * (p & 1)
        wr = [f'ds_write_b128 v25, {v(ACC + 4 * t, 4)} offset:{base + 1024 * t}' for t in range(5)]

        def sync():
            A.wait_all(vm=False)
            self.barrier()
        rd = [f'ds_read_b128 {v(P + 4 * w, 4)}, v26 offset:{base + 5120 * w}' for w in range(4)]
        rd += [f'ds_read_b128 {v(P + 16 + 4 * w, 4)}, v2 offset:{base + 5120 * w + 4096}' for w in range(4)]
        un = []
        for k, rs in enumerate((self.RES + 6 * hf + 2 * m2, self.RES + 6 * hf + 4)):
            un += [f'v_lshlrev_b32 v{T + 4 * k}, 16, v{rs}', f'v_and_b32 v{T + 4 * k + 1}, {s(sMASK)}, v{rs}',
                   f'v_lshlrev_b32 v{T + 4 * k + 2}, 16, v{rs + 1}', f'v_and_b32 v{T + 4 * k + 3}, {s(sMASK)}, v{rs + 1}']
        rowoff = (1024 * hf + 16 * m2) * 1280
        un += [f's_add_u32 {s(sO)}, {s(sOUT)}, {rowoff}', f's_add_u32 {s(sO + 1)}, {s(sOU4)}, {rowoff + 128}',
               lambda: [A.I(f's_cmp_eq_u32 {s(sWAVE)}, {p}'), A.I(f's_cselect_b32 {s(sO + 1)}, {s(sO + 1)}, 0x7ff00000')]]
        fin = []
        for k in range(2):
            q = P + 16 * k
            t = T + 4 * k
            if packed:
                for (d, x) in ((t, q), (q + 4, q + 8), (t, q + 12), (t, q + 4)):
                    fin += [f'v_pk_add_f32 {v(d + 2 * h, 2)}, {v(d + 2 * h, 2)}, {v(x + 2 * h, 2)}' for h in range(2)]
            else:
                for x in (q, q + 4, q + 8, q + 12):
                    fin += [f'v_add_f32 v{t + i}, v{t + i}, v{x + i}' for i in range(4)]
            fin += [f'v_cvt_pk_bf16_f32 v{q}, v{t}, v{t + 1}', f'v_cvt_pk_bf16_f32 v{q + 1}, v{t + 2}, v{t + 3}',
                    f'buffer_store_dwordx2 {v(q, 2)}, v27, {srd(SRD_OUT)}, {s(sO + k)} offen']
        return wr, un, sync, rd, fin

    def g2(self):
        A = self.A

        def arrive_c2():
            A.wait_vm(('hhst', 1))
            self.barrier()
            self.signal_c(1)

        def mf(p, kk, t):
            ACC = 32 + 20 * (p & 1)
            return f'v_mfma_f32_16x16x32_bf16 {v(ACC + 4 * t, 4)}, {R(self.w2reg(5 * kk + t), 4)}, {R(self.hhreg(12 * (p & 1) + kk), 4)}, {v(ACC + 4 * t, 4) if kk else 0}'

        def kmajor(p, items, heads):
            for k2 in range(6):
                self.stamp(f'g{p}k{k2}', fine=4)
                main = [mf(p, 2 * k2 + e, t) for e in range(2) for t in range(5)]
                fill = self.g2_reduce(p + k2 - 4, True)[1] if k2 >= 4 else []
                self.interleave2(main, fill, items.get(k2, []), head=heads.get(k2, []))

        def tmajor(p, prev, items, heads):
            wr = self.g2_reduce(p, True)[0]
            pw, un, sync, rd, fin = self.g2_reduce(prev, False)
            fills = {2: [sync] + rd, 3: fin[:19], 4: fin[19:]}
            ks = self.ksplit if p == 3 else 0
            seq = [mf(p, kk, t) for kk in range(ks) for t in range(5)] + [mf(p, kk, t) for t in range(5) for kk in range(ks, 12)]
            done = [5 * ks + (12 - ks) * (t + 1) for t in range(5)]
            nwr = 0
            for t in range(5):
                self.stamp(f'g{p}t{t}', fine=4)
                main = seq[12 * t:12 * t + 12]
                its = list(items.get(t, []))
                if t == 0:
                    its += [[x] for x in pw[:3]]
                if t == 1:
                    its += [[x] for x in pw[3:]]
                while nwr < 4 and done[nwr] <= 12 * t:
                    its += [[wr[nwr]]]
                    nwr += 1
                self.interleave2(main, fills.get(t, []), its, head=heads.get(t, []))
            return wr[nwr:]

        def finish(p, w4, items=(), mid=None):
            wr, un, sync, rd, fin = self.g2_reduce(p, True)
            for x in w4 + [sync] + rd:
                self.emit(x)
            if mid:
                mid()
            self.interleave2(fin, [], list(items))
        pl = self.plan
        kmajor(0, {k: pl[('g2', k)] for k in range(6)}, {self.c2sig: [arrive_c2]})
        assert not any(pl[('g2', k)] for k in range(6, 12))
        w4 = tmajor(1, 0, {}, {4: [lambda: self.apoll_issue(7, CNT + SY_C + 16384)]} if self.c2p == 1 else {})
        self.stamp('g2h1_mfma')
        if self.c2p == 2:
            self.apoll_issue(7, CNT + SY_C + 16384)

        def mid():
            self.apoll_check(7)
            self.stamp('C2_seen')
            for n in range(self.hh2pre):
                if n == 2 and self.pfm & 32:
                    for x in self.pf_hh(1):
                        self.emit(x)
                for x in self.hh_item(1, n):
                    A.I(x)
        if self.ost:
            nxt = self.hh2pre
            finish(1, w4)
            mid()
        else:
            nxt = self.hh2pre + self.hh2mid
            finish(1, w4, [self.hh_item(1, n) for n in range(self.hh2pre, nxt)], mid)
        self.stamp('g2h1_done')
        its = {}
        for k2 in range(6):
            m = min(24, nxt + 3)
            its[k2] = [self.hh_item(1, n) for n in range(nxt, m)]
            nxt = m
        assert nxt == 24
        kmajor(2, its, {})
        w4 = tmajor(3, 2, {}, {})
        self.stamp('g2h2_mfma')
        finish(3, w4)
        self.stamp('g2h2_done')

    def build(self):
        A = self.A
        self.outline = []
        self.prologue()
        st = A.fork()
        keep = A.lines
        A.lines = []
        self.p0(True)
        self.formatter()
        st1 = A.fork()
        A.I('s_branch L_gemm')
        self.outline.append(A.lines)
        A.lines = keep
        A.restore(st)
        self.p0(False)
        self.conv_prep()
        self.stamp('prep_done')
        self.conv()
        st2 = A.fork()
        A.label('L_gemm')
        A.join([st1, st2])
        if self.stop == 1:
            self.end()
            return self.finish()
        self.plan_loads()
        self.g1_half(0)
        self.g1_half(1)
        self.g2()
        self.flush_stamps()
        return self.finish()

    def finish(self):
        body = self.A.text()
        hdr = open('cdna_kernels/' + NAME + '.s.ref').read().split('; Override launch')[0]
        out = hdr
        out += '; Single persistent kernel, one workgroup per CU (generated by tools/gen.py)\n'
        out += '; @launch grid=(256,1,1) block=(256,1,1) lds=163840\n'
        out += '.amdgcn_target "amdgcn-amd-amdhsa--gfx950"\n.text\n'
        out += f'.globl {NAME}_kernel\n.p2align 8\n.type {NAME}_kernel,@function\n{NAME}_kernel:\n'
        out += body
        out += 'L_end:\n    s_endpgm\n'
        for L in reversed(self.outline):
            out += '.p2align 6\n' + '\n'.join(L) + '\n'
        out += 'L_code_end:\n'
        out += '.set CODE_PF_MAX, (L_code_end - ' + NAME + '_kernel - 4) & 0xffffff80\n'
        out += f'''.section .rodata,"a"
.p2align 6
.amdhsa_kernel {NAME}_kernel
  .amdhsa_next_free_vgpr 512
  .amdhsa_next_free_sgpr 102
  .amdhsa_accum_offset 256
  .amdhsa_group_segment_fixed_size 0
  .amdhsa_kernarg_size 104
  .amdhsa_user_sgpr_count 2
  .amdhsa_user_sgpr_kernarg_segment_ptr 1
  .amdhsa_system_sgpr_workgroup_id_x 1
  .amdhsa_float_denorm_mode_32 3
.end_amdhsa_kernel
'''
        return out


if __name__ == '__main__':
    import argparse
    ap = argparse.ArgumentParser()
    ap.add_argument('-o', default='cdna_kernels/' + NAME + '.s')
    ap.add_argument('--stop', type=int, default=99)
    ap.add_argument('--prof', action='store_true')
    ap.add_argument('--mapr', type=int, default=8)
    ap.add_argument('--probe', default=None)
    ap.add_argument('--opts', default='')
    args = ap.parse_args()
    g = Gen(stop=args.stop, prof=args.prof, mapr=args.mapr, probe=args.probe.split(',') if args.probe else None,
            **{k.split('=')[0]: int(k.split('=')[1]) for k in args.opts.split(',') if k})
    txt = g.build()
    open(args.o, 'w').write(txt)
    print('instructions', g.A.nins, g.A.stats, 'late', g.late, [len(x) for x in g.plan.values()])
```
